```python
import torch

def _softmax(x, axis=-1):
    return torch.softmax(x, dim=axis)

def _gelu(x):
    return torch.nn.functional.gelu(x, approximate='tanh')

def _silu(x):
    return torch.nn.functional.silu(x)

def _sigmoid(x):
    return torch.sigmoid(x)

def _layernorm(x, axis=-1, eps=1e-05):
    m = x.mean(dim=axis, keepdim=True)
    v = x.var(dim=axis, keepdim=True, unbiased=False)
    return (x - m) / torch.sqrt(v + eps)

def _scatter_add(tgt, idx, src, axis=0):
    return tgt.clone().index_add_(axis, idx, src)

def _segment_sum(src, seg, n):
    out = torch.zeros((n,) + src.shape[1:], dtype=src.dtype)
    return out.index_add_(0, seg, src)

def _pad(x, pw):
    flat = tuple((v for pair in reversed(pw) for v in pair))
    return torch.nn.functional.pad(x, flat)
kernel_name = 'sequential_preLN__memory_aug_recurrent_mem_tr__glu_gated_reglu__prompt'

def setup_inputs():

    _w = lambda a: (lambda t: t.to(torch.bfloat16) if t.is_floating_point() else t)(torch.as_tensor(a))

    def _A_setup():
        B, S, Dm = (1, 2048, 576)
        H, Dh = (32, 128)
        M, seg = (8, 32)
        seg = min(seg, S)
        S = S // seg * seg
        return {'x': _w((lambda *s: torch.randn(*s, dtype=torch.bfloat16) * 0.05)(B, S, Dm)), 'mem0': _w((lambda *s: torch.randn(*s, dtype=torch.bfloat16) * 0.2)(B, M, Dm)), 'Wq': _w((lambda *s: torch.randn(*s, dtype=torch.bfloat16) * 1.6)(Dm, H, Dh) * Dm ** (-0.5)), 'Wk': _w((lambda *s: torch.randn(*s, dtype=torch.bfloat16) * 1.6)(Dm, H, Dh) * Dm ** (-0.5)), 'Wv': _w((lambda *s: torch.randn(*s, dtype=torch.bfloat16) * 0.2)(Dm, H, Dh) * Dm ** (-0.5)), 'Wo': _w((lambda *s: torch.randn(*s, dtype=torch.bfloat16) * 0.2)(H, Dh, Dm) * (H * Dh) ** (-0.5)), 'seg_len': seg}
    _A_in = _A_setup()

    def _B_setup():
        B, S, D, F = (1, 2048, 576, 4608)
        return {'x': _w((lambda *s: torch.randn(*s, dtype=torch.bfloat16) * 0.05)(B, S, D)), 'W_gate': _w((lambda *s: torch.randn(*s, dtype=torch.bfloat16) * 0.2)(D, F) * (2.0 / D) ** 0.5), 'W_up': _w((lambda *s: torch.randn(*s, dtype=torch.bfloat16) * 0.2)(D, F) * (2.0 / D) ** 0.5), 'W_down': _w((lambda *s: torch.randn(*s, dtype=torch.bfloat16) * 0.2)(F, D) * (1.0 / F) ** 0.5)}
    _B_in = _B_setup()
    return {'A_x': _A_in['x'], 'A_mem0': _A_in['mem0'], 'A_Wq': _A_in['Wq'], 'A_Wk': _A_in['Wk'], 'A_Wv': _A_in['Wv'], 'A_Wo': _A_in['Wo'], 'A_seg_len': _A_in['seg_len'], 'B_x': _B_in['x'], 'B_W_gate': _B_in['W_gate'], 'B_W_up': _B_in['W_up'], 'B_W_down': _B_in['W_down']}

def reference(A_x, A_mem0, A_Wq, A_Wk, A_Wv, A_Wo, A_seg_len, B_x, B_W_gate, B_W_up, B_W_down):

    def _A_ref(x, mem0, Wq, Wk, Wv, Wo, seg_len):
        B, S, Dm = x.shape
        H, Dh = (Wq.shape[1], Wq.shape[2])
        M = mem0.shape[1]
        scale = Dh ** (-0.5)
        n_seg = S // seg_len
        L = M + seg_len
        idx = torch.arange(L)
        mask = (idx[:, None] < M) | (idx[:, None] >= idx[None, :])
        mem = mem0
        outs = []
        for s in range(n_seg):
            xs = x[:, s * seg_len:(s + 1) * seg_len, :].clone()
            h = torch.concatenate([mem, xs], axis=1)
            q = torch.einsum('btd,dhe->bhte', h, Wq)
            k = torch.einsum('btd,dhe->bhte', h, Wk)
            v = torch.einsum('btd,dhe->bhte', h, Wv)
            scores = torch.einsum('bhqe,bhke->bhqk', q, k) * scale
            scores = torch.where(mask[None, None], scores, -1000000000.0)
            p = _softmax(scores, axis=-1)
            o = torch.einsum('bhqk,bhke->bhqe', p, v)
            o = torch.einsum('bhte,hed->btd', o, Wo)
            mem = o[:, :M, :].clone()
            outs.append(o[:, M:, :])
        return torch.concatenate(outs, axis=1)

    def _B_ref(x, W_gate, W_up, W_down):
        gate = torch.einsum('bsd,df->bsf', x, W_gate)
        up = torch.einsum('bsd,df->bsf', x, W_up)
        gate = gate * (lambda x, dt: x.to(dt))(gate > 0, gate.dtype)
        h = gate * up
        return torch.einsum('bsf,fd->bsd', h, W_down)
    x = A_x
    h = x + _A_ref(_layernorm(x, axis=-1), A_mem0, A_Wq, A_Wk, A_Wv, A_Wo, A_seg_len)
    h2 = h + _B_ref(_layernorm(h, axis=-1), B_W_gate, B_W_up, B_W_down)
    return h2
```

```python
import re

TRANS = ("v_exp_f32", "v_log_f32", "v_rcp_f32", "v_rsq_f32", "v_sqrt_f32", "v_sin_f32", "v_cos_f32",
         "v_rcp_iflag_f32")


def v(i, n=1):
    assert 0 <= i and i + n <= 256, (i, n)
    return f"v{i}" if n == 1 else f"v[{i}:{i + n - 1}]"


def a(i, n=1):
    assert 0 <= i and i + n <= 256, (i, n)
    return f"a{i}" if n == 1 else f"a[{i}:{i + n - 1}]"


def r(i, n=1):
    if i < 256:
        assert i + n <= 256, (i, n)
        return v(i, n)
    return a(i - 256, n)


def s(i, n=1):
    assert 0 <= i and i + n <= 102, (i, n)
    return f"s{i}" if n == 1 else f"s[{i}:{i + n - 1}]"


_REG = re.compile(r"^(-|abs\(|-abs\(|\|)?([vas])(\d+|\[(\d+):(\d+)\])\)?\|?$")


def regs_of(tok):
    tok = tok.strip()
    if tok in ("vcc",):
        return [("s", "vcc_lo"), ("s", "vcc_hi")]
    if tok in ("vcc_lo", "vcc_hi", "m0", "exec_lo", "exec_hi"):
        return [("s", tok)]
    if tok == "exec":
        return [("s", "exec_lo"), ("s", "exec_hi")]
    m = _REG.match(tok)
    if not m:
        return []
    k = m.group(2)
    if m.group(4) is not None:
        lo, hi = int(m.group(4)), int(m.group(5))
    else:
        lo = hi = int(m.group(3))
    if k == "s":
        return [("s", i) for i in range(lo, hi + 1)]
    off = 256 if k == "a" else 0
    return [("v", off + i) for i in range(lo, hi + 1)]


class Ins:
    __slots__ = ("text", "op", "ops", "mods", "defs", "uses", "kind", "passes", "srcc", "srcab",
                 "label", "target", "cnt", "wide_store", "data", "comment", "auto", "dpp", "nowait")

    def __init__(self, text):
        self.text = text
        self.label = None
        self.target = None
        self.auto = False
        self.defs, self.uses = set(), set()
        self.kind = None
        self.passes = 0
        self.srcc, self.srcab, self.data = set(), set(), set()
        self.cnt = None
        self.wide_store = False
        self.dpp = False
        self.nowait = False
        t = text.split(";")[0].strip()
        if t.endswith(":"):
            self.label = t[:-1]
            self.kind = "label"
            self.op = ""
            return
        if t.startswith(".") or t == "":
            self.kind = "dir"
            self.op = ""
            return
        sp = t.split(None, 1)
        self.op = op = sp[0]
        rest = sp[1] if len(sp) > 1 else ""
        parts = [p.strip() for p in re.split(r",(?![^\[\(]*[\]\)])", rest)] if rest else []
        mods = []
        if parts:
            last = parts[-1].split()
            parts[-1] = last[0] if last else ""
            mods = last[1:]
        self.ops, self.mods = parts, mods
        R = [regs_of(p) for p in parts]
        allr = lambda lst: set(x for l in lst for x in l)
        if op.startswith("v_mfma") or op.startswith("v_smfmac"):
            self.kind = "mfma"
            self.passes = 8 if "32x32" in op else 4
            self.defs = set(R[0])
            if op.startswith("v_smfmac"):
                self.srcc = set(R[0])
                self.srcab = allr(R[1:4])
            else:
                self.srcc = set(R[3])
                self.srcab = allr(R[1:3])
            self.uses = self.srcc | self.srcab
        elif op.startswith("v_"):
            self.kind = "valu"
            self.dpp = any(m.startswith(("row_", "quad_perm", "wave_")) for m in mods) or op.endswith("_dpp")
            base = op.replace("_e32", "").replace("_e64", "").replace("_dpp", "").replace("_sdwa", "")
            if base == "v_nop":
                pass
            elif base.startswith("v_permlane") and "swap" in base or base == "v_swap_b32":
                self.defs = allr(R[0:2])
                self.uses = allr(R[0:2])
            elif base in ("v_add_co_u32", "v_sub_co_u32", "v_addc_co_u32", "v_subb_co_u32", "v_subrev_co_u32",
                          "v_mad_u64_u32", "v_div_scale_f32"):
                self.defs = allr(R[0:2])
                self.uses = allr(R[2:])
            else:
                self.defs = set(R[0])
                self.uses = allr(R[1:])
                if base in ("v_fmac_f32", "v_dot2c_f32_bf16", "v_writelane_b32", "v_pk_fmac_f16") or self.dpp:
                    self.uses |= set(R[0])
                if base.startswith("v_cmpx"):
                    raise ValueError("avoid v_cmpx: " + text)
        elif op.startswith("buffer_") or op.startswith("global_"):
            self.kind = "vmem"
            self.cnt = "vm"
            if op.startswith("buffer_load"):
                if "lds" in mods:
                    self.uses = allr(R) | {("s", "m0")}
                    self.kind = "vmem"
                else:
                    self.defs = set(R[0])
                    self.uses = allr(R[1:])
            elif op.startswith("buffer_store"):
                self.uses = allr(R)
                self.data = set(R[0])
                self.wide_store = len(R[0]) >= 3
            elif op.startswith("buffer_atomic"):
                self.uses = allr(R)
                if "sc0" in mods:
                    self.defs = set(R[0][:1]) if "cmpswap" in op else set(R[0])
            elif op in ("buffer_wbl2", "buffer_inv"):
                pass
            else:
                raise ValueError("unsupported vmem " + text)
        elif op.startswith("ds_"):
            self.kind = "ds"
            self.cnt = "lgkm"
            if op.startswith("ds_read") or op.startswith("ds_bpermute") or op.startswith("ds_swizzle") \
                    or op.startswith("ds_permute") or "_rtn" in op:
                self.defs = set(R[0])
                self.uses = allr(R[1:])
            else:
                self.uses = allr(R)
        elif op.startswith("s_load") or op in ("s_memtime", "s_memrealtime"):
            self.kind = "smem"
            self.cnt = "smem"
            self.defs = set(R[0])
            self.uses = allr(R[1:])
        elif op.startswith("s_"):
            self.kind = "salu"
            if op in ("s_branch",) or op.startswith("s_cbranch"):
                self.target = parts[0]
                if "vcc" in op:
                    self.uses = set(regs_of("vcc"))
            elif op in ("s_waitcnt", "s_barrier", "s_nop", "s_sleep", "s_setprio", "s_endpgm", "s_sethalt"):
                pass
            elif op.startswith("s_cmp") or op.startswith("s_bitcmp"):
                self.uses = allr(R)
            elif op == "s_getreg_b32":
                self.defs = set(R[0])
            elif "saveexec" in op:
                self.defs = set(R[0]) | set(regs_of("exec"))
                self.uses = allr(R[1:]) | set(regs_of("exec"))
            else:
                self.defs = set(R[0])
                self.uses = allr(R[1:])
                if op in ("s_addk_i32", "s_mulk_i32", "s_cmovk_i32", "s_cmov_b32"):
                    self.uses |= set(R[0])
        else:
            raise ValueError("unknown instruction " + text)

    @property
    def states(self):
        if self.kind in ("label", "dir"):
            return 0
        if self.op == "s_nop":
            return int(self.ops[0], 0) + 1
        return 1

    def base(self):
        return self.op.replace("_e32", "").replace("_e64", "").replace("_dpp", "").replace("_sdwa", "")


def isv(x):
    return x[0] == "v"


def need(p, c):
    n = 0
    pv = {x for x in p.defs if isv(x)}
    ps = {x for x in p.defs if not isv(x)}
    if p.kind == "valu":
        cb = c.base() if c.op else ""
        if c.kind == "mfma" and pv & c.uses:
            n = max(n, 2)
        if c.kind == "valu":
            if pv & c.uses:
                if c.dpp or cb.startswith("v_permlane"):
                    n = max(n, 2)
                if cb in ("v_readlane_b32", "v_readfirstlane_b32"):
                    n = max(n, 1)
                if p.base() in TRANS:
                    n = max(n, 1)
            if (pv & (c.uses | c.defs)) and (any(m.startswith(("op_sel", "dst_sel")) for m in p.mods)):
                n = max(n, 1)
            if ps & c.uses:
                n = max(n, 4 if cb in ("v_readlane_b32", "v_writelane_b32") else 2)
        if p.base().startswith("v_dot2") and pv & (c.uses | c.defs) and c.kind in ("valu", "mfma", "vmem", "ds"):
            same_c = c.base() == p.base() and not (pv & set(x for t in c.ops[1:3] for x in regs_of(t)))
            if not same_c:
                n = max(n, 3)
        if c.kind == "vmem" and ps & c.uses:
            n = max(n, 5)
    if p.kind == "mfma":
        big = {4: 8, 8: 12}[p.passes]
        if c.kind == "mfma":
            if p.defs & c.srcab:
                n = max(n, big)
            if p.defs & c.srcc:
                if not (p.defs == c.srcc and p.passes == c.passes):
                    n = max(n, {4: 6, 8: 10}[p.passes])
            elif p.defs & c.defs:
                if not (p.defs == c.defs and p.passes == c.passes):
                    n = max(n, {4: 6, 8: 10}[p.passes])
        elif c.kind in ("valu", "vmem", "ds"):
            if p.defs & (c.uses | c.defs):
                n = max(n, big)
            if c.kind == "valu" and p.srcc & c.defs:
                n = max(n, {4: 3, 8: 7}[p.passes])
    if p.kind == "vmem" and p.wide_store and p.data & c.defs:
        n = max(n, 2 if c.kind in ("valu", "mfma") else 1)
    if p.kind == "salu" and ("s", "m0") in p.defs and c.kind == "vmem" and "lds" in c.mods:
        n = max(n, 1)
    return n


MAXW = 12
CMAX = {"vm": 63, "lgkm": 15}


class Asm:
    def __init__(self):
        self.ins = []
        self._uid = 0
        self.relax = True

    def __call__(self, text):
        for line in text.split("\n"):
            line = line.strip()
            if line:
                self.ins.append(Ins(line))
        return self

    def nw(self, text):
        i = Ins(text.strip())
        i.nowait = True
        self.ins.append(i)

    def label(self, name):
        self.ins.append(Ins(name + ":"))

    def uid(self, base):
        self._uid += 1
        return f"{base}_{self._uid}"

    def _cfg(self):
        lab = {x.label: i for i, x in enumerate(self.ins) if x.label}
        succ = []
        for i, x in enumerate(self.ins):
            sc = []
            if x.op == "s_endpgm":
                pass
            elif x.op == "s_branch":
                sc = [lab[x.target]]
            else:
                if i + 1 < len(self.ins):
                    sc.append(i + 1)
                if x.target:
                    sc.append(lab[x.target])
            succ.append(sc)
        pred = [[] for _ in self.ins]
        for i, sc in enumerate(succ):
            for j in sc:
                pred[j].append(i)
        return succ, pred

    def insert_waits(self):
        while True:
            succ, pred = self._cfg()
            n = len(self.ins)
            state = [None] * n
            state[0] = {}
            entries = [i for i in range(n) if not pred[i]]
            work = []
            for e in entries:
                state[e] = {}
                work.append(e)
            fix = {}
            while work:
                i = work.pop()
                st = dict(state[i])
                x = self.ins[i]
                if x.kind not in ("label", "dir"):
                    touched = (x.uses | x.defs) if not x.nowait else set()
                    req = {}
                    for g in touched:
                        for c in ("vm", "lgkm", "smem"):
                            if (g, c) not in st:
                                continue
                            k = st[(g, c)]
                            cc = "lgkm" if c == "smem" else c
                            k = 0 if c == "smem" else min(k, CMAX[cc])
                            if g not in x.uses and x.cnt == c and c != "smem":
                                continue
                            req[cc] = min(req.get(cc, 99), k)
                    if req:
                        old = fix.get(i, {})
                        for cc, k in req.items():
                            old[cc] = min(old.get(cc, 99), k)
                        fix[i] = old
                        st = self._apply_wait(st, req)
                    if x.op == "s_waitcnt":
                        st = self._apply_wait(st, self._parse_wait(x))
                    if x.cnt and x.cnt != "smem":
                        st = {gc: (k + 1 if gc[1] == x.cnt else k) for gc, k in st.items()}
                    for g in x.defs:
                        for c in ("vm", "lgkm", "smem"):
                            st.pop((g, c), None)
                        if x.cnt:
                            st[(g, x.cnt)] = 0
                for j in succ[i]:
                    if state[j] is None:
                        state[j] = st
                        work.append(j)
                    else:
                        m = dict(state[j])
                        ch = False
                        for gc, k in st.items():
                            if gc not in m or k < m[gc]:
                                m[gc] = k
                                ch = True
                        if ch:
                            state[j] = m
                            work.append(j)
            if not fix:
                return
            out = []
            for i, x in enumerate(self.ins):
                if i in fix:
                    w = Ins("s_waitcnt " + " ".join(f"{c}cnt({k})" for c, k in sorted(fix[i].items(), reverse=True)))
                    w.auto = True
                    out.append(w)
                out.append(x)
            self.ins = out

    @staticmethod
    def _parse_wait(x):
        d = {}
        for c, k in re.findall(r"(vm|lgkm)cnt\((\d+)\)", x.text):
            d[c] = int(k)
        return d

    @staticmethod
    def _apply_wait(st, req):
        out = {}
        for (g, c), k in st.items():
            if c == "smem":
                if req.get("lgkm", 99) == 0:
                    continue
            elif c in req and k >= req[c]:
                continue
            out[(g, c)] = k
        return out

    def insert_nops(self):
        changed = True
        while changed:
            changed = False
            succ, pred = self._cfg()
            add = {}
            for i, c in enumerate(self.ins):
                if c.kind in ("label", "dir") or not (c.uses or c.defs):
                    continue
                worst = 0
                stack = [(j, 0, 0 if c.kind == "mfma" else None) for j in pred[i]]
                seen = {}
                while stack:
                    j, d, dm = stack.pop()
                    if d >= MAXW or seen.get((j, dm), 99) <= d:
                        continue
                    seen[(j, dm)] = d
                    p = self.ins[j]
                    if p.kind == "mfma" and dm is not None and self.relax:
                        d += max(0, p.passes - 1 - dm)
                    if p.kind in ("valu", "mfma", "vmem", "salu"):
                        k = need(p, c) - d
                        if k > worst:
                            worst = k
                    st = p.states + add.get(j, 0)
                    if p.kind == "mfma":
                        dm2 = add.get(j, 0)
                    else:
                        dm2 = None if dm is None or dm + st >= 8 else dm + st
                    for q in pred[j]:
                        stack.append((q, d + st, dm2))
                if worst > 0:
                    add[i] = worst
            if add:
                changed = True
                out = []
                for i, x in enumerate(self.ins):
                    if i in add:
                        w = Ins(f"s_nop {add[i] - 1}")
                        w.auto = True
                        out.append(w)
                    out.append(x)
                self.ins = out

    def finish(self):
        self.insert_waits()
        self.insert_nops()
        return self.text()

    def text(self):
        o = []
        for x in self.ins:
            if x.kind in ("label", "dir"):
                o.append(x.text)
            else:
                o.append("  " + x.text)
        return "\n".join(o) + "\n"
```

```python
from common import *

WREG = 224
MF = "v_mfma_f32_16x16x32_bf16"


def load_weights(A, nchunk, dmas, reads, slot_bytes, nslots, s_base, s_tmp, pol="nt"):
    issued = []

    def issue(c):
        for (sr, vo, so, rel) in dmas(c):
            A(f"s_add_u32 m0, {s(s_base)}, {(c % nslots) * slot_bytes + rel:#x}")
            A(f"s_mov_b32 {s(s_tmp)}, {so:#x}")
            A(f"buffer_load_dwordx4 {v(vo)}, {sr}, {s(s_tmp)} offen {pol} lds")
            issued.append(c)

    for c in range(min(nslots, nchunk)):
        issue(c)
    for c in range(nchunk):
        after = sum(1 for x in issued if x > c)
        assert after <= 63
        A(f"s_waitcnt vmcnt({after})")
        for (dst, va, rel) in reads(c):
            A(f"ds_read_b64_tr_b16 {r(dst, 2)}, {v(va)} offset:{(c % nslots) * slot_bytes + rel}")
        if c + nslots < nchunk:
            A("s_waitcnt lgkmcnt(0)")
            issue(c + nslots)
    A("s_waitcnt lgkmcnt(0)")


def tr_addr(A, dst, t0, t1, row_g, row_r, rowbytes, colbytes, s_base):
    A(f"v_lshrrev_b32 {v(t0)}, 4, {v(V_LANE)}")
    A(f"v_mul_u32_u24 {v(t0)}, {row_g * rowbytes}, {v(t0)}")
    A(f"v_bfe_u32 {v(t1)}, {v(V_LANE)}, 2, 2")
    A(f"v_mul_u32_u24 {v(t1)}, {row_r * rowbytes}, {v(t1)}")
    A(f"v_add_u32 {v(t0)}, {v(t0)}, {v(t1)}")
    A(f"v_and_b32 {v(t1)}, 3, {v(V_LANE)}")
    A(f"v_mul_u32_u24 {v(t1)}, {colbytes}, {v(t1)}")
    A(f"v_add3_u32 {v(dst)}, {v(t0)}, {v(t1)}, {s(s_base)}")


def role_ln1(A, sync):
    X, D, ONES, ACC = 16, 96, 4, 8
    su = S_T
    srd(A, S_B, KA_X, SZ_X)
    A(f"s_lshl_b32 {s(su)}, {s(S_IDX)}, 2")
    A(f"s_add_u32 {s(su)}, {s(su)}, {s(S_W)}")
    A(f"s_mul_i32 {s(su + 1)}, {s(su)}, {16 * 1152}")
    A(f"v_and_b32 v2, 15, {v(V_LANE)}")
    A(f"v_mul_u32_u24 v2, 1152, v2")
    A(f"v_and_b32 v3, 48, {v(V_LANE)}")
    A(f"v_add_u32 v2, v2, v3")
    A("s_waitcnt lgkmcnt(0)")
    for c in range(18):
        A(f"buffer_load_dwordx4 {v(X + 4 * c, 4)}, v2, {SB}, {s(su + 1)} offen offset:{64 * c}")
    for i in range(4):
        A(f"v_mov_b32 {v(ONES + i)}, 0x3f803f80")
    for c in range(18):
        A(f"{MF} {v(ACC, 4)}, {v(ONES, 4)}, {v(X + 4 * c, 4)}, {v(ACC, 4) if c else 0}")
    MEAN, MB = 12, 13
    A(f"v_mul_f32 {v(MEAN)}, {1.0 / 576:.9e}, {v(ACC)}".replace(f"{1.0 / 576:.9e}", f"{f32(1.0 / 576):#x}"))
    A(f"v_mov_b32 {v(MB)}, {v(MEAN)}")
    bf16_round(A, MB)
    for i in range(4):
        A(f"v_mov_b32 {v(ONES + i)}, 0")
    for i in range(72):
        lo, hi = D + 2 * i, D + 2 * i + 1
        A(f"v_lshlrev_b32 {v(lo)}, 16, {v(X + i)}")
        A(f"v_and_b32 {v(hi)}, 0xffff0000, {v(X + i)}")
        A(f"v_sub_f32 v2, {v(lo)}, {v(MEAN)}")
        A(f"v_sub_f32 v3, {v(hi)}, {v(MEAN)}")
        A(f"v_sub_f32 {v(lo)}, {v(lo)}, {v(MB)}")
        A(f"v_sub_f32 {v(hi)}, {v(hi)}, {v(MB)}")
        A(f"v_fmac_f32 {v(ONES + (2 * i) % 4)}, v2, v2")
        A(f"v_fmac_f32 {v(ONES + (2 * i + 1) % 4)}, v3, v3")
    A(f"v_add_f32 {v(ONES)}, {v(ONES)}, {v(ONES + 1)}")
    A(f"v_add_f32 {v(ONES + 2)}, {v(ONES + 2)}, {v(ONES + 3)}")
    A(f"v_add_f32 {v(ONES)}, {v(ONES)}, {v(ONES + 2)}")
    xg_reduce(A, "v_add_f32", ONES, 2)
    A(f"v_mul_f32 {v(ONES)}, {f32(1.0 / 576):#x}, {v(ONES)}")
    bf16_round(A, ONES)
    A(f"v_add_f32 {v(ONES)}, {f32(1e-5):#x}, {v(ONES)}")
    bf16_round(A, ONES)
    A(f"v_sqrt_f32 {v(ONES)}, {v(ONES)}")
    bf16_round(A, ONES)
    A(f"v_rcp_f32 {v(ONES)}, {v(ONES)}")
    A(f"s_mul_i32 {s(su + 1)}, {s(su)}, {18 * 1024}")
    A(f"s_add_u32 {s(su + 1)}, {s(su + 1)}, {XH:#x}")
    for c in range(18):
        for j in range(4):
            i = 4 * c + j
            lo, hi = D + 2 * i, D + 2 * i + 1
            A(f"v_cvt_pk_bf16_f32 v2, {v(lo)}, {v(hi)}")
            A(f"v_lshlrev_b32 {v(lo)}, 16, v2")
            A(f"v_and_b32 {v(hi)}, 0xffff0000, v2")
            A(f"v_mul_f32 {v(lo)}, {v(lo)}, {v(ONES)}")
            A(f"v_mul_f32 {v(hi)}, {v(hi)}, {v(ONES)}")
            A(f"v_cvt_pk_bf16_f32 {v(X + i)}, {v(lo)}, {v(hi)}")
        if c and c % 4 == 0:
            A(f"s_add_u32 {s(su + 1)}, {s(su + 1)}, 4096")
        A(f"buffer_store_dwordx4 {v(X + 4 * c, 4)}, {v(V_L16)}, {WS}, {s(su + 1)} offen offset:{1024 * (c % 4)} sc1")
    if sync:
        lane0_off(A, 2, "0")
        A(f"v_mov_b32 v3, 1")
        A(f"s_lshl_b32 {s(su + 1)}, {s(su)}, 2")
        A(f"s_add_u32 {s(su + 1)}, {s(su + 1)}, {F_LN:#x}")
        A("s_waitcnt vmcnt(0)")
        A(f"buffer_store_dword v3, v2, {WS}, {s(su + 1)} offen sc1")


def f32(x):
    import struct
    return struct.unpack("<I", struct.pack("<f", x))[0]


class Gemm:
    S_IT, S_NX, S_LD, S_FLG, S_FPREV, S_POLL, S_OUT, S_SPIN = 36, 37, 38, 42, 43, 44, 45, 49
    V_RD, V_WR, V_LDOFF, V_FLAG0, V_ONE, V_POLLOFF, V_POLL = 2, 3, 4, 5, 6, 7, 8

    def __init__(self, A, name, sync, step, end, nload, stage_reg):
        self.A, self.name, self.sync = A, name, sync
        self.step, self.end, self.nload, self.stage = step, end, nload, stage_reg

    def set_load_base(self, s_it):
        raise NotImplementedError

    def set_poll_base(self, s_it):
        raise NotImplementedError

    def set_out_base(self):
        raise NotImplementedError

    def extra_loads(self):
        return []

    def loads(self):
        out = []
        for i in range(self.nload):
            out.append(f"buffer_load_dwordx4 {v(self.stage + 4 * i, 4)}, {v(self.V_LDOFF)}, {WS}, "
                       f"{s(self.S_LD + i // 4)} offen offset:{1024 * (i % 4)} sc1")
        return self.extra_loads() + out

    def writes(self):
        return [f"ds_write_b128 {v(self.V_WR)}, {v(self.stage + 4 * i, 4)} offset:{1024 * i}"
                for i in range(self.nload)]

    def post_loads(self):
        return []

    def ld_bases(self):
        A = self.A
        for k in range(1, (self.nload + 3) // 4):
            A(f"s_add_u32 {s(self.S_LD + k)}, {s(self.S_LD)}, {4096 * k}")

    def issue_poll(self):
        if not self.sync:
            return []
        A = self.A

        def f():
            A(f"s_add_u32 {s(S_T)}, {s(self.S_NX)}, {self.step}")
            A(f"s_min_u32 {s(S_T)}, {s(S_T)}, {self.end - 1}")
            self.set_poll_base(S_T)
            A(f"buffer_load_dword {v(self.V_POLL)}, {v(self.V_POLLOFF)}, {WS}, {s(self.S_POLL)} offen sc1")
        return [f]

    def flag_store(self, sreg):
        return f"buffer_store_dword {v(self.V_ONE)}, {v(self.V_FLAG0)}, {WS}, {s(sreg)} offen sc1"

    def finish_stage(self):
        A = self.A
        A("s_waitcnt lgkmcnt(0)")
        A("s_barrier")
        A(f"v_xor_b32 {v(self.V_RD)}, 0x10000, {v(self.V_RD)}")
        A(f"v_xor_b32 {v(self.V_WR)}, 0x10000, {v(self.V_WR)}")

    def blocking_fetch(self):
        A = self.A
        if self.sync:
            self.set_poll_base(self.S_NX)
            poll_block(A, self.V_POLL, self.V_POLLOFF, s(self.S_POLL), True, self.S_SPIN)
        self.set_load_base(self.S_NX)
        self.ld_bases()
        for x in self.loads():
            A(x)
        for f in self.issue_poll():
            f()
        for x in self.writes():
            A(x)

    def emit(self, flag_at, write_at):
        A, n = self.A, self.name
        A(f"v_mov_b32 {v(self.V_ONE)}, 1")
        lane0_off(A, self.V_FLAG0, "0")
        A(f"s_mov_b32 {s(self.S_FPREV)}, {OOR:#x}")
        A(f"s_mov_b32 {s(self.S_NX)}, {s(self.S_IT)}")
        self.blocking_fetch()
        self.finish_stage()
        A.label(f"L_{n}_top")
        for x in self.post_loads():
            x() if callable(x) else A(x)
        self.set_out_base()
        A(f"s_add_u32 {s(self.S_NX)}, {s(self.S_IT)}, {self.step}")
        A(f"s_cmp_ge_u32 {s(self.S_NX)}, {self.end}")
        A(f"s_cbranch_scc1 L_{n}_nopf")
        if self.sync:
            A(f"v_cmp_eq_u32 vcc, 0, {v(self.V_POLL)}")
            A(f"s_cbranch_vccnz L_{n}_nopf")
        self.set_load_base(self.S_NX)
        self.ld_bases()
        lds = self.loads()
        for x in lds:
            A(x)
        main, fill = self.compute()
        if self.sync:
            fill.setdefault(flag_at, []).extend([f"s_waitcnt vmcnt({len(lds)})", self.flag_store(self.S_FPREV)])
            fill[flag_at].extend(self.issue_poll())
        spread(fill, self.writes(), write_at, 2)
        weave(A, main, fill)
        for x in self.epilogue():
            A(x)
        A(f"s_mov_b32 {s(self.S_FPREV)}, {s(self.S_FLG)}")
        A(f"s_mov_b32 {s(self.S_IT)}, {s(self.S_NX)}")
        self.finish_stage()
        A(f"s_branch L_{n}_top")
        A.label(f"L_{n}_nopf")
        main, fill = self.compute()
        if self.sync:
            fill.setdefault(flag_at, []).extend(["s_waitcnt vmcnt(0)", self.flag_store(self.S_FPREV)])
        weave(A, main, fill)
        for x in self.epilogue():
            A(x)
        if self.sync:
            A("s_waitcnt vmcnt(0)")
            A(self.flag_store(self.S_FLG))
        A(f"s_mov_b32 {s(self.S_FPREV)}, {OOR:#x}")
        A(f"s_cmp_ge_u32 {s(self.S_NX)}, {self.end}")
        A(f"s_cbranch_scc1 L_{n}_done")
        self.blocking_fetch()
        A(f"s_mov_b32 {s(self.S_IT)}, {s(self.S_NX)}")
        self.finish_stage()
        A(f"s_branch L_{n}_top")
        A.label(f"L_{n}_done")


class QKV(Gemm):
    ACC, BF, STG, OUT, V_OUT = 12, 44, 76, 112, 9
    S_MAT, S_HP, S_OB = 50, 51, 52

    def __init__(self, A, name, sync, isv):
        super().__init__(A, name, sync, 4, 64, 9, self.STG)
        self.isv = isv

    def set_load_base(self, s_it):
        self.A(f"s_mul_i32 {s(self.S_LD)}, {s(s_it)}, 36864")
        self.A(f"s_add_u32 {s(self.S_LD)}, {s(self.S_LD)}, {XH:#x}")

    def set_poll_base(self, s_it):
        self.A(f"s_lshl_b32 {s(self.S_POLL)}, {s(s_it)}, 3")

    def set_out_base(self):
        A = self.A
        A(f"s_lshl_b32 {s(self.S_OUT)}, {s(self.S_IT)}, 18")
        A(f"s_add_u32 {s(self.S_OUT)}, {s(self.S_OUT)}, {s(self.S_OB)}")
        A(f"s_add_u32 {s(self.S_OUT + 1)}, {s(self.S_OUT)}, 4096")
        A(f"s_lshl_b32 {s(self.S_FLG)}, {s(self.S_IT)}, 13")
        A(f"s_add_u32 {s(self.S_FLG)}, {s(self.S_FLG)}, {s(self.S_OB + 1)}")

    def compute(self):
        main, fill = [], {}
        bf = lambda c, u: self.BF + ((c % 4) * 2 + u) * 4
        rd = lambda c, u: f"ds_read_b128 {v(bf(c, u), 4)}, {v(self.V_RD)} offset:{(u * 18 + c) * 1024}"
        pre = [rd(c, u) for c in range(3) for u in range(2)]
        for x in pre:
            self.A(x)
        for c in range(18):
            for u in range(2):
                for t in range(4):
                    acc = v(self.ACC + (u * 4 + t) * 4, 4)
                    w = r(WREG + (c * 4 + t) * 4, 4)
                    b = v(bf(c, u), 4)
                    ab = f"{b}, {w}" if self.isv else f"{w}, {b}"
                    main.append(f"{MF} {acc}, {ab}, {acc if c else 0}")
            if c + 3 < 18:
                fill.setdefault(8 * c, []).append(rd(c + 3, 0))
                fill.setdefault(8 * c + 1, []).append(rd(c + 3, 1))
        return main, fill

    def epilogue(self):
        o = []
        acc = lambda u, t, k: v(self.ACC + (u * 4 + t) * 4 + k)
        if self.isv:
            for t in range(4):
                d = self.OUT + 4 * t
                o += [f"v_cvt_pk_bf16_f32 {v(d)}, {acc(0, t, 0)}, {acc(0, t, 1)}",
                      f"v_cvt_pk_bf16_f32 {v(d + 1)}, {acc(1, t, 0)}, {acc(1, t, 1)}",
                      f"v_cvt_pk_bf16_f32 {v(d + 2)}, {acc(0, t, 2)}, {acc(0, t, 3)}",
                      f"v_cvt_pk_bf16_f32 {v(d + 3)}, {acc(1, t, 2)}, {acc(1, t, 3)}",
                      f"buffer_store_dwordx4 {v(d, 4)}, {v(self.V_OUT)}, {WS}, {s(self.S_OUT)} offen offset:{1024 * t} sc1"]
        else:
            for u in range(2):
                for cc in range(2):
                    d = self.OUT + 4 * (u * 2 + cc)
                    o += [f"v_cvt_pk_bf16_f32 {v(d)}, {acc(u, 2 * cc, 0)}, {acc(u, 2 * cc, 1)}",
                          f"v_cvt_pk_bf16_f32 {v(d + 1)}, {acc(u, 2 * cc, 2)}, {acc(u, 2 * cc, 3)}",
                          f"v_cvt_pk_bf16_f32 {v(d + 2)}, {acc(u, 2 * cc + 1, 0)}, {acc(u, 2 * cc + 1, 1)}",
                          f"v_cvt_pk_bf16_f32 {v(d + 3)}, {acc(u, 2 * cc + 1, 2)}, {acc(u, 2 * cc + 1, 3)}",
                          f"buffer_store_dwordx4 {v(d, 4)}, {v(self.V_OUT)}, {WS}, {s(self.S_OUT + u)} offen offset:{1024 * cc} sc1"]
        return o

    def body(self):
        A = self.A
        sb, st = S_T, S_T + 1
        A(f"s_lshl_b32 {s(st)}, {s(self.S_HP)}, 9")
        A(f"s_lshl_b32 {s(st + 1)}, {s(S_W)}, 7")
        A(f"s_add_u32 {s(st)}, {s(st)}, {s(st + 1)}")
        A(f"v_lshrrev_b32 v10, 3, {v(V_LANE)}")
        A(f"v_lshlrev_b32 v10, 13, v10")
        A(f"v_and_b32 v11, 7, {v(V_LANE)}")
        A(f"v_lshlrev_b32 v11, 4, v11")
        A(f"v_add3_u32 v10, v10, v11, {s(st)}")
        A(f"s_mul_i32 {s(sb)}, {s(S_W)}, 36864")
        tr_addr(A, 11, 12, 13, 8, 1, 128, 8 if self.isv else 16, sb)
        dmas = lambda c: [(SA, 10, (32 * c + 8 * i) * 8192, 1024 * i) for i in range(4)]

        def reads(c):
            o = []
            for t in range(4):
                col = 32 * t if self.isv else 64 * (t // 2) + 8 * (t % 2)
                for rd in range(2):
                    o.append((WREG + (c * 4 + t) * 4 + 2 * rd, 11, 512 * rd + col))
            return o
        load_weights(A, 18, dmas, reads, 4096, 9, sb, st)
        A("s_barrier")
        A(f"v_or_b32 {v(self.V_RD)}, 0x10000, {v(V_L16)}")
        A(f"s_mul_i32 {s(st)}, {s(S_W)}, 9216")
        A(f"v_add_u32 {v(self.V_WR)}, {s(st)}, {v(V_L16)}")
        A(f"v_mov_b32 {v(self.V_LDOFF)}, {v(self.V_WR)}")
        A(f"v_and_b32 {v(self.V_POLLOFF)}, 1, {v(V_LANE)}")
        A(f"v_lshlrev_b32 {v(self.V_POLLOFF)}, 2, {v(self.V_POLLOFF)}")
        A(f"s_lshr_b32 {s(st)}, {s(S_W)}, 1")
        A(f"s_lshl_b32 {s(st + 1)}, {s(self.S_HP)}, 1")
        A(f"s_add_u32 {s(st)}, {s(st)}, {s(st + 1)}")
        A(f"s_lshl_b32 {s(st)}, {s(st)}, 13")
        A(f"s_and_b32 {s(st + 1)}, {s(S_W)}, 1")
        A(f"s_lshl_b32 {s(st + 1)}, {s(st + 1)}, {12 if self.isv else 11}")
        A(f"s_add_u32 {s(st)}, {s(st)}, {s(st + 1)}")
        A(f"v_add_u32 {v(self.V_OUT)}, {s(st)}, {v(V_L16)}")
        A(f"s_add_u32 {s(self.S_OB)}, {s(self.S_MAT)}, 1")
        A(f"s_lshl_b32 {s(self.S_OB)}, {s(self.S_OB)}, 24")
        A(f"s_lshl_b32 {s(st)}, {s(self.S_HP)}, 9")
        A(f"s_lshl_b32 {s(st + 1)}, {s(self.S_MAT)}, 6")
        A(f"s_add_u32 {s(st)}, {s(st)}, {s(st + 1)}")
        A(f"s_lshl_b32 {s(st + 1)}, {s(S_W)}, 4")
        A(f"s_add_u32 {s(st)}, {s(st)}, {s(st + 1)}")
        A(f"s_add_u32 {s(self.S_OB + 1)}, {s(st)}, {F_A:#x}")
        self.emit(flag_at=40, write_at=100)


def role_qkv(A, sync):
    A(f"s_and_b32 {s(Gemm.S_IT)}, {s(S_IDX)}, 3")
    A(f"s_bfe_u32 {s(QKV.S_HP)}, {s(S_IDX)}, {2 | (4 << 16):#x}")
    A(f"s_lshr_b32 {s(QKV.S_MAT)}, {s(S_IDX)}, 6")
    A(f"s_cmp_eq_u32 {s(QKV.S_MAT)}, 2")
    A("s_cbranch_scc1 L_qkv_v")
    srd(A, S_A, KA_WQ, SZ_W)
    A(f"s_load_dwordx2 {s(S_T, 2)}, s[0:1], {KA_WK}")
    A("s_waitcnt lgkmcnt(0)")
    A(f"s_cmp_eq_u32 {s(QKV.S_MAT)}, 1")
    A(f"s_cselect_b32 {s(S_A)}, {s(S_T)}, {s(S_A)}")
    A(f"s_cselect_b32 {s(S_A + 1)}, {s(S_T + 1)}, {s(S_A + 1)}")
    QKV(A, "qk", sync, False).body()
    A("s_branch L_qkv_end")
    A.label("L_qkv_v")
    srd(A, S_A, KA_WV, SZ_W)
    A("s_waitcnt lgkmcnt(0)")
    QKV(A, "vv", sync, True).body()
    A.label("L_qkv_end")


def gemm_addr(A, g, per_wave):
    st = S_T + 1
    A(f"v_or_b32 {v(g.V_RD)}, 0x10000, {v(V_L16)}")
    A(f"s_mul_i32 {s(st)}, {s(S_W)}, {per_wave * 1024}")
    A(f"v_add_u32 {v(g.V_WR)}, {s(st)}, {v(V_L16)}")
    A(f"v_mov_b32 {v(g.V_LDOFF)}, {v(g.V_WR)}")


def cvt2(d, x):
    return f"v_cvt_pk_bf16_f32 {v(d)}, {v(x)}, {v(x + 1)}"


NWG_BC = 64
BC_REP = 4


class BC(Gemm):
    V_OUT, V_OUT2, V_KM, BIAS = 9, 10, 11, 12
    Q, K, KMR, V, VMR, ACC, OF = 20, 36, 68, 84, 116, 132, 204
    S_HP, S_HB, S_Q, S_K, S_V, S_KM, S_CS = 50, 51, 53, 54, 56, 58, 60

    def __init__(self, A, sync):
        super().__init__(A, "bc", sync, BC_REP, 64, 0, 0)

    def set_load_base(self, s_it):
        A = self.A
        A(f"s_lshl_b32 {s(self.S_KM)}, {s(s_it)}, 5")
        A(f"s_add_u32 {s(self.S_KM)}, {s(self.S_KM)}, {s(self.S_HB)}")
        A(f"s_lshl_b32 {s(self.S_V)}, {s(self.S_KM)}, 13")
        A(f"s_lshl_b32 {s(self.S_KM)}, {s(self.S_KM)}, 12")
        A(f"s_add_u32 {s(self.S_K)}, {s(self.S_V)}, {KB:#x}")
        A(f"s_add_u32 {s(self.S_K + 1)}, {s(self.S_V)}, {KB + 4096:#x}")
        A(f"s_add_u32 {s(self.S_Q)}, {s(self.S_V)}, {s(self.S_HB + 1)}")
        A(f"s_add_u32 {s(self.S_V + 1)}, {s(self.S_V)}, {VB + 4096:#x}")
        A(f"s_add_u32 {s(self.S_V)}, {s(self.S_V)}, {VB:#x}")
        A(f"s_add_u32 {s(self.S_KM + 1)}, {s(self.S_KM)}, {VM:#x}")
        A(f"s_add_u32 {s(self.S_KM)}, {s(self.S_KM)}, {KM:#x}")

    def ld_bases(self):
        pass

    def loads(self):
        ld = lambda d, vo, so, i: f"buffer_load_dwordx4 {v(d, 4)}, {v(vo)}, {WS}, {s(so)} offen offset:{1024 * i} sc1"
        o = []
        for c in range(4):
            o += [ld(self.Q + 4 * c, V_L16, self.S_Q, c), ld(self.K + 4 * c, V_L16, self.S_K, c),
                  ld(self.K + 16 + 4 * c, V_L16, self.S_K + 1, c), ld(self.KMR + 4 * c, self.V_KM, self.S_KM, c)]
        for t in range(8):
            o.append(ld(self.V + 4 * t, V_L16, self.S_V + t // 4, t % 4))
            if t % 2 == 0:
                o.append(ld(self.VMR + 2 * t, V_L16, self.S_KM + 1, t // 2))
        return o

    def writes(self):
        return []

    def finish_stage(self):
        self.A(f"v_xor_b32 {v(self.V_RD)}, 0x10000, {v(self.V_RD)}")
        self.A(f"v_xor_b32 {v(self.V_WR)}, 0x10000, {v(self.V_WR)}")

    def set_poll_base(self, s_it):
        A = self.A
        A(f"s_lshl_b32 {s(self.S_POLL)}, {s(s_it)}, 13")
        A(f"s_lshl_b32 {s(S_T + 1)}, {s(self.S_HP)}, 9")
        A(f"s_add_u32 {s(self.S_POLL)}, {s(self.S_POLL)}, {s(S_T + 1)}")
        A(f"s_add_u32 {s(self.S_POLL)}, {s(self.S_POLL)}, {F_A:#x}")

    def set_out_base(self):
        A = self.A
        A(f"s_lshl_b32 {s(self.S_OUT)}, {s(self.S_IT)}, 5")
        A(f"s_add_u32 {s(self.S_OUT)}, {s(self.S_OUT)}, {s(self.S_HP)}")
        A(f"s_mul_i32 {s(self.S_OUT)}, {s(self.S_OUT)}, 18432")
        A(f"s_add_u32 {s(self.S_OUT)}, {s(self.S_OUT)}, {P1:#x}")
        A(f"s_add_u32 {s(self.S_OUT + 1)}, {s(self.S_OUT)}, {16 * 18432}")
        A(f"s_lshl_b32 {s(self.S_FLG)}, {s(self.S_IT)}, 4")
        A(f"s_add_u32 {s(self.S_FLG)}, {s(self.S_FLG)}, {s(self.S_HP)}")
        A(f"s_lshl_b32 {s(self.S_FLG)}, {s(self.S_FLG)}, 2")
        A(f"s_add_u32 {s(self.S_FLG)}, {s(self.S_FLG)}, {s(S_W)}")
        A(f"s_lshl_b32 {s(self.S_FLG)}, {s(self.S_FLG)}, 2")
        A(f"s_add_u32 {s(self.S_FLG)}, {s(self.S_FLG)}, {F_BC:#x}")

    def post_loads(self):
        a = self.ACC
        S, OT, L, PT, PM0, PM1, ONE, HALF, T = a, a + 12, a + 44, a + 48, a + 52, a + 56, a + 60, a + 64, a + 68
        con = [f"v_mov_b32 {v(ONE + i)}, 0x3f803f80" for i in range(4)] + \
              [f"v_mov_b32 {v(HALF + i)}, 0x3f003f00" for i in range(4)] + \
              [f"v_mov_b32 {v(x)}, 0" for x in (PM0 + 1, PM0 + 3, PM1, PM1 + 2)]
        o = []
        for c in range(4):
            q = v(self.Q + 4 * c, 4)
            o += [f"{MF} {v(S, 4)}, {v(self.K + 4 * c, 4)}, {q}, {v(S, 4) if c else v(self.BIAS, 4)}", con.pop(),
                  f"{MF} {v(S + 4, 4)}, {v(self.K + 16 + 4 * c, 4)}, {q}, {v(S + 4, 4) if c else v(self.BIAS + 4, 4)}", con.pop(),
                  f"{MF} {v(S + 8, 4)}, {v(self.KMR + 4 * c, 4)}, {q}, {v(S + 8, 4) if c else 0}", con.pop()]
        o += [f"v_max3_f32 {v(T)}, {v(S)}, {v(S + 1)}, {v(S + 2)}",
              f"v_max3_f32 {v(T + 1)}, {v(S + 3)}, {v(S + 4)}, {v(S + 5)}",
              f"v_max3_f32 {v(T)}, {v(T)}, {v(S + 6)}, {v(S + 7)}",
              f"v_max3_f32 {v(T + 1)}, {v(T + 1)}, {v(S + 8)}, {v(S + 9)}",
              f"v_max3_f32 {v(T)}, {v(T)}, {v(S + 10)}, {v(S + 11)}",
              f"v_max_f32 {v(T)}, {v(T)}, {v(T + 1)}",
              lambda: xg_reduce(self.A, "v_max_f32", T, T + 1),
              f"v_mul_f32 {v(T)}, {s(self.S_CS)}, {v(T)}"]
        for k in range(0, 12, 2):
            o.append(f"v_pk_fma_f32 {v(S + k, 2)}, {v(S + k, 2)}, {s(self.S_CS, 2)}, {v(T, 2)} "
                     "op_sel_hi:[1,1,0] neg_lo:[0,0,1] neg_hi:[0,0,1]")
        o += [f"v_exp_f32 {v(S + k)}, {v(S + k)}" for k in range(12)]
        o += [cvt2(PM0, S + 8), cvt2(PT, S), cvt2(PT + 1, S + 4), cvt2(PT + 2, S + 2), cvt2(PM0 + 2, S + 10),
              cvt2(PT + 3, S + 6), cvt2(PM1 + 1, S + 8), cvt2(PM1 + 3, S + 10)]
        o += [f"{MF} {v(L, 4)}, {v(ONE, 4)}, {v(PT, 4)}, 0"]
        o += [f"{MF} {v(OT + 4 * t, 4)}, {v(self.V + 4 * t, 4)}, {v(PT, 4)}, 0" for t in range(2)]
        o += [f"{MF} {v(L, 4)}, {v(HALF, 4)}, {v(PM0, 4)}, {v(L, 4)}"]
        o += [f"{MF} {v(OT + 4 * t, 4)}, {v(self.V + 4 * t, 4)}, {v(PT, 4)}, 0" for t in range(2, 8)]
        o += [f"v_rcp_f32 {v(T)}, {v(L)}"]
        fin = []
        for t in range(8):
            d = OT + 4 * t
            o.append(f"{MF} {v(d, 4)}, {v(self.VMR + 4 * (t // 2), 4)}, {v((PM0, PM1)[t % 2], 4)}, {v(d, 4)}")
            fin += [f"v_pk_mul_f32 {v(d, 2)}, {v(d, 2)}, {v(T, 2)} op_sel_hi:[1,0]",
                    f"v_pk_mul_f32 {v(d + 2, 2)}, {v(d + 2, 2)}, {v(T, 2)} op_sel_hi:[1,0]",
                    cvt2(OT + 2 * t, d), cvt2(OT + 2 * t + 1, d + 2)]
            if t % 2:
                fin.append(f"ds_write_b128 {v(self.V_WR)}, {v(OT + 2 * t - 2, 4)} offset:{1024 * (t // 2)}")
        return o + fin + ["s_waitcnt lgkmcnt(0)", "s_barrier"]

    def compute(self):
        main, fill = [], {}
        of = lambda i: self.OF + 4 * (i % 5)
        rd = lambda i: f"ds_read_b128 {v(of(i), 4)}, {v(self.V_RD)} offset:{((i % 2) * 8 + i // 2) * 1024}"
        for i in range(4):
            self.A(rd(i))
        for i in range(16):
            kc, u = i // 2, i % 2
            for t in range(9):
                acc = v(self.ACC + (u * 9 + t) * 4, 4)
                main.append(f"{MF} {acc}, {r(WREG + (kc * 9 + t) * 4, 4)}, {v(of(i), 4)}, {acc if kc else 0}")
            if i + 4 < 16:
                fill.setdefault(9 * i, []).append(rd(i + 4))
        return main, fill

    def epilogue(self):
        o = []
        for u in range(2):
            for p in range(4):
                d = self.ACC + (u * 9 + 2 * p) * 4
                o += [cvt2(d + k, d + 2 * k) for k in range(4)]
                o.append(f"buffer_store_dwordx4 {v(d, 4)}, {v(self.V_OUT)}, {WS}, {s(self.S_OUT + u)} offen offset:{1024 * p} sc1")
            d = self.ACC + (u * 9 + 8) * 4
            o += [cvt2(d, d), cvt2(d + 1, d + 2),
                  f"buffer_store_dwordx2 {v(d, 2)}, {v(self.V_OUT2)}, {WS}, {s(self.S_OUT + u)} offen sc1"]
        return o

    def body(self):
        A = self.A
        sb, st = S_T, S_T + 1
        L = v(V_LANE)
        pb, po = S_T + 3, S_T + 4
        A(f"s_mul_i32 {s(pb)}, {s(S_W)}, 9")
        A(f"s_add_u32 {s(pb)}, {s(pb)}, 1")
        A(f"s_lshr_b32 {s(pb)}, {s(pb)}, 1")
        A(f"s_lshr_b32 {s(po)}, {s(S_W)}, 1")
        A(f"s_mul_i32 {s(po)}, {s(po)}, 9")
        A(f"s_add_u32 {s(po)}, {s(po)}, 4")
        A(f"s_mul_i32 {s(st)}, {s(self.S_HP)}, {256 * 1152}")
        A(f"s_lshl_b32 {s(st + 1)}, {s(po)}, 6")
        A(f"s_add_u32 {s(st + 1)}, {s(st + 1)}, {s(st)}")
        A(f"v_lshrrev_b32 v21, 2, {L}")
        A(f"v_mul_u32_u24 v21, 1152, v21")
        A(f"v_and_b32 v22, 3, {L}")
        A(f"v_lshlrev_b32 v22, 4, v22")
        A(f"v_add3_u32 v21, v21, v22, {s(st + 1)}")
        A(f"s_lshl_b32 {s(st + 1)}, {s(pb)}, 6")
        A(f"s_add_u32 {s(st + 1)}, {s(st + 1)}, {s(st)}")
        A(f"v_lshrrev_b32 v20, 4, {L}")
        A(f"v_mul_u32_u24 v20, 1152, v20")
        A(f"v_and_b32 v22, 15, {L}")
        A(f"v_lshlrev_b32 v22, 4, v22")
        A(f"v_add3_u32 v20, v20, v22, {s(st + 1)}")
        A(f"s_mul_i32 {s(sb)}, {s(S_W)}, 40960")
        tr_addr(A, 22, 24, 25, 4, 1, 256, 16, sb)
        tr_addr(A, 23, 24, 25, 4, 1, 64, 16, sb)
        A(f"s_and_b32 {s(st)}, {s(S_W)}, 1")
        A(f"s_lshl_b32 {s(st)}, {s(st)}, 3")
        A(f"v_add_u32 v23, {s(st)}, v23")
        A(f"s_lshl_b32 {s(pb)}, {s(pb)}, 10")
        A(f"v_add_u32 {v(self.V_OUT)}, {s(pb)}, {v(V_L16)}")
        A(f"s_lshl_b32 {s(po)}, {s(po)}, 10")
        A(f"s_add_u32 {s(po)}, {s(po)}, {s(st)}")
        A(f"v_add_u32 {v(self.V_OUT2)}, {s(po)}, {v(V_L16)}")
        dmas = lambda c: [(SA, 20, (32 * c + 4 * i) * 1152, 1024 * i) for i in range(8)] + \
                         [(SA, 21, (32 * c + 16 * i) * 1152, 8192 + 1024 * i) for i in range(2)]

        def reads(c):
            o = []
            for t in range(9):
                for rd in range(2):
                    if t < 8:
                        o.append((WREG + (c * 9 + t) * 4 + 2 * rd, 22, 4096 * rd + 64 * (t // 2) + 8 * (t % 2)))
                    else:
                        o.append((WREG + (c * 9 + t) * 4 + 2 * rd, 23, 8192 + 1024 * rd))
            return o
        load_weights(A, 8, dmas, reads, 10240, 4, sb, st)
        A("s_barrier")
        A(f"s_lshr_b32 {s(st)}, {s(S_W)}, 1")
        A(f"s_and_b32 {s(st + 1)}, {s(S_W)}, 1")
        A(f"s_lshl_b32 {s(self.S_HB)}, {s(self.S_HP)}, 1")
        A(f"s_add_u32 {s(self.S_HB)}, {s(self.S_HB)}, {s(st)}")
        A(f"s_lshl_b32 {s(self.S_HB + 1)}, {s(st + 1)}, 12")
        A(f"s_add_u32 {s(self.S_HB + 1)}, {s(self.S_HB + 1)}, {QB:#x}")
        A(f"s_lshl_b32 {s(pb)}, {s(st + 1)}, 1")
        A(f"s_add_u32 {s(pb)}, {s(pb)}, {s(st)}")
        A(f"s_lshl_b32 {s(pb)}, {s(pb)}, 12")
        A(f"v_mov_b32 {v(self.V_RD)}, {v(V_L16)}")
        A(f"v_add_u32 {v(self.V_WR)}, {s(pb)}, {v(V_L16)}")
        A(f"v_or_b32 {v(self.V_KM)}, 0x80, {v(V_L16)}")
        A(f"v_min_u32 {v(self.V_POLLOFF)}, {19 * 16}, {v(V_L16)}")
        import math
        cs = 128 ** -0.5 * math.log2(math.e)
        A(f"s_mov_b32 {s(self.S_CS)}, {f32(cs):#x}")
        A(f"s_mov_b32 {s(self.S_CS + 1)}, {f32(cs):#x}")
        A(f"v_and_b32 v20, 15, {L}")
        A(f"s_lshl_b32 {s(st + 1)}, {s(st + 1)}, 4")
        A(f"v_add_u32 v20, {s(st + 1)}, v20")
        A(f"v_lshrrev_b32 v21, 4, {L}")
        A(f"v_lshlrev_b32 v21, 2, v21")
        A(f"v_sub_u32 v20, v20, v21")
        A(f"v_mov_b32 v21, 0xf149f2ca")
        for k in range(8):
            A(f"v_cmp_gt_i32 vcc, {16 * (k // 4) + k % 4}, v20")
            A(f"v_cndmask_b32 {v(self.BIAS + k)}, 0, v21, vcc")
        self.emit(flag_at=4, write_at=0)


def role_bc(A, sync):
    A(f"s_and_b32 {s(Gemm.S_IT)}, {s(S_IDX)}, {BC_REP - 1}")
    A(f"s_lshr_b32 {s(BC.S_HP)}, {s(S_IDX)}, {BC_REP.bit_length() - 1}")
    srd(A, S_A, KA_WO, SZ_W)
    A("s_waitcnt lgkmcnt(0)")
    BC(A, sync).body()


NWG_R1 = 18
NWG_R2 = 18


def reducer(A, sync, first):
    n = "r1" if first else "r2"
    NP = 16 if first else 6
    S_U, S_P, S_X, S_PL, S_SP, S_O = 36, 37, 38, 39, 40, 41
    SEL, ONE, ACC, VX, VPO, VPL, VST, VF0, T, IN = 4, 10, 16, 2, 3, 14, 15, 24, 26, 40
    L = v(V_LANE)
    if first:
        srd(A, S_B, KA_X, SZ_X)
    else:
        srd(A, S_B, KA_OUT, SZ_X)
    A(f"v_and_b32 v20, 15, {L}")
    A(f"v_mul_u32_u24 {v(VX)}, 1152, v20")
    A(f"v_and_b32 v21, 48, {L}")
    A(f"s_lshl_b32 {s(S_T)}, {s(S_IDX)}, 6")
    A(f"v_add3_u32 {v(VX)}, {v(VX)}, v21, {s(S_T)}")
    A(f"v_lshrrev_b32 v21, 4, {L}")
    A(f"v_lshrrev_b32 v22, 2, v20")
    A(f"v_and_b32 v23, 3, {L}")
    A(f"v_cmp_eq_u32 vcc, v21, v22")
    A(f"v_cndmask_b32 v23, 7, v23, vcc")
    for k in (0, 1, 4, 5):
        A(f"v_mov_b32 {v(SEL + k)}, 0")
    for k in range(2):
        A(f"v_mov_b32 v22, 0x3f80")
        A(f"v_cmp_eq_u32 vcc, {2 * k}, v23")
        A(f"v_cndmask_b32 {v(SEL + 2 + k)}, 0, v22, vcc")
        A(f"v_mov_b32 v22, 0x3f800000")
        A(f"v_cmp_eq_u32 vcc, {2 * k + 1}, v23")
        A(f"v_cndmask_b32 {v(SEL + 2 + k)}, {v(SEL + 2 + k)}, v22, vcc")
    if first:
        for k in range(4):
            A(f"v_mov_b32 {v(ONE + k)}, 0x3f803f80")
        A(f"v_lshlrev_b32 v20, 3, v20")
        A(f"v_mov_b32 {v(VST)}, {OOR:#x}")
        A(f"v_cmp_eq_u32 vcc, 0, v21")
        A(f"v_cndmask_b32 {v(VST)}, {v(VST)}, v20, vcc")
        A(f"v_lshlrev_b32 {v(VPO)}, 2, {L}")
        lane0_off(A, VF0, "0")
        A(f"v_mov_b32 {v(VF0 + 1)}, 1")
    else:
        A(f"s_mul_i32 {s(S_T)}, {s(S_IDX)}, 43")
        A(f"s_lshr_b32 {s(S_T)}, {s(S_T)}, 8")
        A(f"s_lshl_b32 {s(S_T)}, {s(S_T)}, 7")
        A(f"v_min_u32 {v(VPO)}, 23, {L}")
        A(f"v_lshlrev_b32 {v(VPO)}, 2, {v(VPO)}")
        A(f"v_add_u32 {v(VPO)}, {s(S_T)}, {v(VPO)}")
    A(f"s_mov_b32 {s(S_U)}, {s(S_W)}")
    A("s_waitcnt lgkmcnt(0)")
    A.label(f"L_{n}_top")
    A(f"s_mul_i32 {s(S_X)}, {s(S_U)}, 18432")
    A(f"s_lshl_b32 {s(S_T)}, {s(S_IDX)}, 10")
    A(f"s_add_u32 {s(S_O)}, {s(S_X)}, {s(S_T)}")
    A(f"s_mul_i32 {s(S_P)}, {s(S_X)}, {NP}")
    A(f"s_add_u32 {s(S_P)}, {s(S_P)}, {s(S_T)}")
    A(f"s_add_u32 {s(S_P)}, {s(S_P)}, {P1 if first else P2:#x}")
    A(f"s_add_u32 {s(S_O)}, {s(S_O)}, {HH:#x}")
    if first:
        A(f"buffer_load_dwordx4 {v(IN, 4)}, {v(VX)}, {SB}, {s(S_X)} offen")
    if sync:
        if first:
            A(f"s_lshr_b32 {s(S_PL)}, {s(S_U)}, 1")
            A(f"s_lshl_b32 {s(S_PL)}, {s(S_PL)}, 8")
            A(f"s_add_u32 {s(S_PL)}, {s(S_PL)}, {F_BC:#x}")
        else:
            A(f"s_lshl_b32 {s(S_PL)}, {s(S_U)}, 9")
            A(f"s_add_u32 {s(S_PL)}, {s(S_PL)}, {F_E:#x}")
        poll_block(A, VPL, VPO, s(S_PL), True, S_SP)
    if not first:
        A(f"buffer_load_dwordx4 {v(IN, 4)}, {v(V_L16)}, {WS}, {s(S_O)} offen sc1")
    for p in range(NP):
        A(f"buffer_load_dwordx4 {v(IN + 4 + 4 * p, 4)}, {v(V_L16)}, {WS}, {s(S_P)} offen sc1")
        if p + 1 < NP:
            A(f"s_add_u32 {s(S_P)}, {s(S_P)}, 18432")
    for p in range(NP + 1):
        A(f"{MF} {v(ACC, 4)}, {v(SEL + 2, 4)}, {v(IN + 4 * p, 4)}, {v(ACC, 4) if p else 0}")
        A(f"{MF} {v(ACC + 4, 4)}, {v(SEL, 4)}, {v(IN + 4 * p, 4)}, {v(ACC + 4, 4) if p else 0}")
    for k in range(4):
        A(cvt2(IN + k, ACC + 2 * k))
    if not first:
        A(f"buffer_store_dwordx4 {v(IN, 4)}, {v(VX)}, {SB}, {s(S_X)} offen")
    else:
        A(f"buffer_store_dwordx4 {v(IN, 4)}, {v(V_L16)}, {WS}, {s(S_O)} offen sc1")
        A(f"{MF} {v(T, 4)}, {v(ONE, 4)}, {v(IN, 4)}, 0")
        for k in range(4):
            A(f"v_lshlrev_b32 {v(ACC + 2 * k)}, 16, {v(IN + k)}")
            A(f"v_and_b32 {v(ACC + 2 * k + 1)}, 0xffff0000, {v(IN + k)}")
        A(f"s_lshl_b32 {s(S_T)}, {s(S_U)}, 5")
        A(f"s_add_u32 {s(S_T)}, {s(S_T)}, {s(S_IDX)}")
        A(f"s_lshl_b32 {s(S_T + 1)}, {s(S_T)}, 7")
        A(f"s_add_u32 {s(S_T + 1)}, {s(S_T + 1)}, {ST:#x}")
        A(f"v_mul_f32 {v(T + 2)}, {f32(-1.0 / 32):#x}, {v(T)}")
        for k in range(0, 8, 2):
            A(f"v_pk_add_f32 {v(ACC + k, 2)}, {v(ACC + k, 2)}, {v(T + 2, 2)} op_sel_hi:[1,0]")
        A(f"v_pk_mul_f32 {v(ACC, 2)}, {v(ACC, 2)}, {v(ACC, 2)}")
        for k in range(2, 8, 2):
            A(f"v_pk_fma_f32 {v(ACC, 2)}, {v(ACC + k, 2)}, {v(ACC + k, 2)}, {v(ACC, 2)}")
        A(f"v_add_f32 {v(T + 1)}, {v(ACC)}, {v(ACC + 1)}")
        xg_reduce(A, "v_add_f32", T + 1, T + 2)
        A(f"buffer_store_dwordx2 {v(T, 2)}, {v(VST)}, {WS}, {s(S_T + 1)} offen sc1")
        if sync:
            A(f"s_lshl_b32 {s(S_T)}, {s(S_T)}, 2")
            A(f"s_add_u32 {s(S_T)}, {s(S_T)}, {F_R1:#x}")
            A("s_waitcnt vmcnt(0)")
            A(f"buffer_store_dword {v(VF0 + 1)}, {v(VF0)}, {WS}, {s(S_T)} offen sc1")
    A(f"s_add_u32 {s(S_U)}, {s(S_U)}, 4")
    A(f"s_cmp_lt_u32 {s(S_U)}, 128")
    A(f"s_cbranch_scc1 L_{n}_top")


def role_r1(A, sync):
    reducer(A, sync, True)


def role_r2(A, sync):
    reducer(A, sync, False)


NWG_DD = 72


class DD(Gemm):
    ACC, BF, STG, CS, SN, SC_, T, V_ST, V_ST4, V_VAL = 12, 28, 44, 64, 80, 90, 100, 9, 10, 11
    S_SL, S_ST = 50, 51

    def __init__(self, A, sync):
        super().__init__(A, "dd", sync, 2, 128, 5, self.STG)

    def set_load_base(self, s_it):
        A = self.A
        A(f"s_mul_i32 {s(self.S_LD)}, {s(s_it)}, 18432")
        A(f"s_add_u32 {s(self.S_LD)}, {s(self.S_LD)}, {HH:#x}")
        A(f"s_lshl_b32 {s(self.S_ST)}, {s(s_it)}, 12")
        A(f"s_add_u32 {s(self.S_ST)}, {s(self.S_ST)}, {ST:#x}")

    def extra_loads(self):
        return [f"buffer_load_dwordx2 {v(self.SN + 2 * i, 2)}, {v(self.V_ST if i < 4 else self.V_ST4)}, {WS}, "
                f"{s(self.S_ST)} offen offset:{512 * i} sc1" for i in range(5)]

    def post_loads(self):
        return [f"v_mov_b64 {v(self.SC_ + 2 * i, 2)}, {v(self.SN + 2 * i, 2)}" for i in range(5)]

    def set_poll_base(self, s_it):
        self.A(f"s_lshl_b32 {s(self.S_POLL)}, {s(s_it)}, 7")
        self.A(f"s_add_u32 {s(self.S_POLL)}, {s(self.S_POLL)}, {F_R1:#x}")

    def set_out_base(self):
        A = self.A
        A(f"s_mul_i32 {s(self.S_OUT)}, {s(self.S_IT)}, 144")
        A(f"s_add_u32 {s(self.S_OUT)}, {s(self.S_OUT)}, {s(self.S_SL)}")
        A(f"s_lshl_b32 {s(self.S_OUT)}, {s(self.S_OUT)}, 10")
        A(f"s_add_u32 {s(self.S_OUT)}, {s(self.S_OUT)}, {ACT:#x}")
        A(f"s_lshl_b32 {s(self.S_FLG)}, {s(self.S_IT)}, 8")
        A(f"s_add_u32 {s(self.S_FLG)}, {s(self.S_FLG)}, {s(self.S_SL)}")
        A(f"s_lshl_b32 {s(self.S_FLG)}, {s(self.S_FLG)}, 2")
        A(f"s_add_u32 {s(self.S_FLG)}, {s(self.S_FLG)}, {F_D:#x}")

    def stats(self):
        S, T = self.SC_, self.T
        o = []
        xg = lambda op, x, t: [f"v_mov_b32 {v(t)}, {v(x)}", f"v_permlane32_swap_b32 {v(x)}, {v(t)}",
                               f"{op} {v(x)}, {v(x)}, {v(t)}", f"v_mov_b32 {v(t)}, {v(x)}",
                               f"v_permlane16_swap_b32 {v(x)}, {v(t)}", f"{op} {v(x)}, {v(x)}, {v(t)}"]
        rnd = lambda x: [f"v_cvt_pk_bf16_f32 {v(x)}, {v(x)}, {v(x)}", f"v_and_b32 {v(x)}, 0xffff0000, {v(x)}"]
        o += [f"v_add_f32 {v(T)}, {v(S)}, {v(S + 2)}", f"v_add_f32 {v(T + 1)}, {v(S + 4)}, {v(S + 6)}",
              f"v_add_f32 {v(T + 2)}, {v(S + 1)}, {v(S + 3)}", f"v_add_f32 {v(T + 3)}, {v(S + 5)}, {v(S + 7)}",
              f"v_add_f32 {v(T)}, {v(T)}, {v(S + 8)}", f"v_add_f32 {v(T + 2)}, {v(T + 2)}, {v(S + 9)}",
              f"v_add_f32 {v(T)}, {v(T)}, {v(T + 1)}", f"v_add_f32 {v(T + 2)}, {v(T + 2)}, {v(T + 3)}"]
        o += xg("v_add_f32", T, T + 1)
        o += [f"v_mul_f32 {v(T + 1)}, {f32(-1.0 / 18):#x}, {v(T)}"]
        o += [f"v_add_f32 {v(S + 2 * i)}, {v(S + 2 * i)}, {v(T + 1)}" for i in range(5)]
        o += [f"v_mul_f32 {v(S + 8)}, {v(S + 8)}, {v(self.V_VAL)}", f"v_mul_f32 {v(T + 3)}, {v(S)}, {v(S)}"]
        o += [f"v_fmac_f32 {v(T + 3)}, {v(S + 2 * i)}, {v(S + 2 * i)}" for i in range(1, 5)]
        o += [f"v_fmac_f32 {v(T + 2)}, {f32(1.0 / 32):#x}, {v(T + 3)}"]
        o += xg("v_add_f32", T + 2, T + 1)
        o += [f"v_mul_f32 {v(T)}, {f32(-1.0 / 576):#x}, {v(T)}"] + rnd(T)
        o += [f"v_mul_f32 {v(T + 2)}, {f32(1.0 / 576):#x}, {v(T + 2)}"] + rnd(T + 2)
        o += [f"v_add_f32 {v(T + 2)}, {f32(1e-5):#x}, {v(T + 2)}"] + rnd(T + 2)
        o += [f"v_sqrt_f32 {v(T + 2)}, {v(T + 2)}"] + rnd(T + 2)
        o += [f"v_rcp_f32 {v(T + 2)}, {v(T + 2)}", f"v_mul_f32 {v(T + 2)}, {v(T + 2)}, {v(T + 2)}"]
        return o

    def compute(self):
        main, fill = [], {}
        bf = lambda c: self.BF + (c % 4) * 4
        rd = lambda c: f"ds_read_b128 {v(bf(c), 4)}, {v(self.V_RD)} offset:{c * 1024}"
        for c in range(3):
            self.A(rd(c))
        for c in range(18):
            for t in range(4):
                acc = v(self.ACC + 4 * t, 4)
                main.append(f"{MF} {acc}, {r(WREG + (c * 4 + t) * 4, 4)}, {v(bf(c), 4)}, {acc if c else 0}")
            if c + 3 < 18:
                fill.setdefault(4 * c, []).append(rd(c + 3))
        spread(fill, self.stats(), 2, 1)
        return main, fill

    def epilogue(self):
        a, T = self.ACC, self.T
        o = [f"v_pk_fma_f32 {v(a + k, 2)}, {v(self.CS + k, 2)}, {v(T, 2)}, {v(a + k, 2)} op_sel_hi:[1,0,1]" for k in range(0, 16, 2)]
        o += [f"v_max_f32 {v(a + k)}, 0, {v(a + k)}" for k in range(8)]
        o += [f"v_pk_mul_f32 {v(a + 8 + k, 2)}, {v(a + 8 + k, 2)}, {v(T + 2, 2)} op_sel_hi:[1,0]" for k in range(0, 8, 2)]
        o += [f"v_pk_mul_f32 {v(a + k, 2)}, {v(a + k, 2)}, {v(a + 8 + k, 2)}" for k in range(0, 8, 2)]
        o += [cvt2(T + 4 + k, a + 2 * k) for k in range(4)]
        o += [f"buffer_store_dwordx4 {v(T + 4, 4)}, {v(V_L16)}, {WS}, {s(self.S_OUT)} offen sc1"]
        return o

    def body(self):
        A = self.A
        sb, st = S_T, S_T + 1
        L = v(V_LANE)
        A(f"s_lshl_b32 {s(self.S_SL)}, {s(self.S_SL)}, 2")
        A(f"s_add_u32 {s(self.S_SL)}, {s(self.S_SL)}, {s(S_W)}")
        A(f"s_lshl_b32 {s(st)}, {s(self.S_SL)}, 6")
        A(f"v_lshrrev_b32 v20, 2, {L}")
        A(f"v_mul_u32_u24 v20, 9216, v20")
        A(f"v_and_b32 v21, 3, {L}")
        A(f"v_lshlrev_b32 v21, 4, v21")
        A(f"v_add3_u32 v20, v20, v21, {s(st)}")
        A(f"s_mul_i32 {s(sb)}, {s(S_W)}, 36864")
        tr_addr(A, 21, 22, 23, 8, 1, 64, 16, sb)
        dmas = lambda c: [((SA, SB)[i // 2], 20, (32 * c + 16 * (i % 2)) * 9216, 1024 * i) for i in range(4)]
        reads = lambda c: [(WREG + (c * 4 + t) * 4 + 2 * rd, 21, 2048 * (t // 2) + 8 * (t % 2) + 256 * rd)
                           for t in range(4) for rd in range(2)]
        load_weights(A, 18, dmas, reads, 4096, 9, sb, st)
        A("s_barrier")
        for k in range(4):
            A(f"v_mov_b32 {v(self.BF + k)}, 0x3f803f80")
        for c in range(18):
            for t in range(4):
                cs = v(self.CS + 4 * t, 4)
                A(f"{MF} {cs}, {r(WREG + (c * 4 + t) * 4, 4)}, {v(self.BF, 4)}, {cs if c else 0}")
        gemm_addr(A, self, 5)
        A(f"v_min_u32 {v(self.V_POLLOFF)}, 17, {L}")
        A(f"v_lshlrev_b32 {v(self.V_POLLOFF)}, 2, {v(self.V_POLLOFF)}")
        A(f"v_lshlrev_b32 {v(self.V_ST)}, 3, {L}")
        A(f"v_mov_b32 {v(self.V_ST4)}, {OOR:#x}")
        A(f"v_cmp_gt_u32 vcc, 32, {L}")
        A(f"v_cndmask_b32 {v(self.V_ST4)}, {v(self.V_ST4)}, {v(self.V_ST)}, vcc")
        A(f"v_cndmask_b32 {v(self.V_VAL)}, 0, 1.0, vcc")
        self.emit(flag_at=16, write_at=60)


def role_dd(A, sync):
    A(f"s_and_b32 {s(Gemm.S_IT)}, {s(S_IDX)}, 1")
    A(f"s_lshr_b32 {s(DD.S_SL)}, {s(S_IDX)}, 1")
    srd(A, S_A, KA_WG, SZ_WF)
    srd(A, S_B, KA_WU, SZ_WF)
    A("s_waitcnt lgkmcnt(0)")
    DD(A, sync).body()


NWG_EE = 36


class EE(Gemm):
    ACC, BF, STG, V_OUT, V_OUT2 = 12, 28, 44, 9, 10
    S_KS, S_NS = 50, 51

    def __init__(self, A, sync):
        super().__init__(A, "ee", sync, 2, 128, 6, self.STG)

    def set_load_base(self, s_it):
        A = self.A
        A(f"s_mul_i32 {s(self.S_LD)}, {s(s_it)}, 6")
        A(f"s_add_u32 {s(self.S_LD)}, {s(self.S_LD)}, {s(self.S_KS)}")
        A(f"s_mul_i32 {s(self.S_LD)}, {s(self.S_LD)}, 24576")
        A(f"s_add_u32 {s(self.S_LD)}, {s(self.S_LD)}, {ACT:#x}")

    def set_poll_base(self, s_it):
        self.A(f"s_lshl_b32 {s(self.S_POLL)}, {s(s_it)}, 10")
        self.A(f"s_add_u32 {s(self.S_POLL)}, {s(self.S_POLL)}, {F_D:#x}")

    def set_out_base(self):
        A = self.A
        A(f"s_mul_i32 {s(self.S_OUT)}, {s(self.S_IT)}, 6")
        A(f"s_add_u32 {s(self.S_OUT)}, {s(self.S_OUT)}, {s(self.S_KS)}")
        A(f"s_mul_i32 {s(self.S_OUT)}, {s(self.S_OUT)}, 18432")
        A(f"s_add_u32 {s(self.S_OUT)}, {s(self.S_OUT)}, {P2:#x}")
        A(f"s_lshl_b32 {s(self.S_FLG)}, {s(self.S_IT)}, 9")
        A(f"s_add_u32 {s(self.S_FLG)}, {s(self.S_FLG)}, {s(self.S_NS)}")

    def compute(self):
        main, fill = [], {}
        bf = lambda c: self.BF + (c % 4) * 4
        rd = lambda c: f"ds_read_b128 {v(bf(c), 4)}, {v(self.V_RD)} offset:{c * 1024}"
        for c in range(3):
            self.A(rd(c))
        for c in range(24):
            for t in range(3):
                acc = v(self.ACC + 4 * t, 4)
                main.append(f"{MF} {acc}, {r(WREG + (c * 3 + t) * 4, 4)}, {v(bf(c), 4)}, {acc if c else 0}")
            if c + 3 < 24:
                fill.setdefault(3 * c, []).append(rd(c + 3))
        return main, fill

    def epilogue(self):
        a = self.ACC
        return [cvt2(a + k, a + 2 * k) for k in range(4)] + \
            [f"buffer_store_dwordx4 {v(a, 4)}, {v(self.V_OUT)}, {WS}, {s(self.S_OUT)} offen sc1",
             cvt2(a + 8, a + 8), cvt2(a + 9, a + 10),
             f"buffer_store_dwordx2 {v(a + 8, 2)}, {v(self.V_OUT2)}, {WS}, {s(self.S_OUT)} offen sc1"]

    def body(self):
        A = self.A
        sb, st = S_T, S_T + 1
        pb, po = S_T + 3, S_T + 4
        L = v(V_LANE)
        A(f"s_mul_i32 {s(st)}, {s(self.S_NS)}, 6")
        A(f"s_mul_i32 {s(pb)}, {s(S_W)}, 3")
        A(f"s_add_u32 {s(pb)}, {s(pb)}, 1")
        A(f"s_lshr_b32 {s(pb)}, {s(pb)}, 1")
        A(f"s_add_u32 {s(pb)}, {s(pb)}, {s(st)}")
        A(f"s_lshr_b32 {s(po)}, {s(S_W)}, 1")
        A(f"s_mul_i32 {s(po)}, {s(po)}, 3")
        A(f"s_add_u32 {s(po)}, {s(po)}, 1")
        A(f"s_add_u32 {s(po)}, {s(po)}, {s(st)}")
        A(f"s_mul_i32 {s(st)}, {s(self.S_KS)}, {768 * 1152}")
        A(f"v_lshrrev_b32 v20, 2, {L}")
        A(f"v_mul_u32_u24 v20, 1152, v20")
        A(f"v_and_b32 v21, 3, {L}")
        A(f"v_lshlrev_b32 v21, 4, v21")
        A(f"v_add3_u32 v20, v20, v21, {s(st)}")
        A(f"s_lshl_b32 {s(st)}, {s(po)}, 6")
        A(f"v_add_u32 v21, {s(st)}, v20")
        A(f"s_lshl_b32 {s(st)}, {s(pb)}, 6")
        A(f"v_add_u32 v20, {s(st)}, v20")
        A(f"s_mul_i32 {s(sb)}, {s(S_W)}, 36864")
        tr_addr(A, 22, 24, 25, 8, 1, 64, 16, sb)
        A(f"s_and_b32 {s(st)}, {s(S_W)}, 1")
        A(f"s_lshl_b32 {s(st)}, {s(st)}, 3")
        A(f"v_add_u32 v23, {s(st)}, v22")
        A(f"s_lshl_b32 {s(pb)}, {s(pb)}, 10")
        A(f"v_add_u32 {v(self.V_OUT)}, {s(pb)}, {v(V_L16)}")
        A(f"s_lshl_b32 {s(po)}, {s(po)}, 10")
        A(f"s_add_u32 {s(po)}, {s(po)}, {s(st)}")
        A(f"v_add_u32 {v(self.V_OUT2)}, {s(po)}, {v(V_L16)}")
        dmas = lambda c: [(SA, 20 + i // 2, (32 * c + 16 * (i % 2)) * 1152, 1024 * i) for i in range(4)]
        reads = lambda c: [(WREG + (c * 3 + t) * 4 + 2 * rd, 22 + t // 2, 2048 * (t // 2) + 8 * (t % 2) + 256 * rd)
                           for t in range(3) for rd in range(2)]
        load_weights(A, 24, dmas, reads, 4096, 9, sb, st)
        A("s_barrier")
        gemm_addr(A, self, 6)
        A(f"s_mul_i32 {s(st)}, {s(self.S_KS)}, 96")
        A(f"v_min_u32 {v(self.V_POLLOFF)}, 23, {L}")
        A(f"v_lshlrev_b32 {v(self.V_POLLOFF)}, 2, {v(self.V_POLLOFF)}")
        A(f"v_add_u32 {v(self.V_POLLOFF)}, {s(st)}, {v(self.V_POLLOFF)}")
        A(f"s_lshl_b32 {s(self.S_NS)}, {s(self.S_NS)}, 5")
        A(f"s_lshl_b32 {s(st)}, {s(self.S_KS)}, 2")
        A(f"s_add_u32 {s(self.S_NS)}, {s(self.S_NS)}, {s(st)}")
        A(f"s_add_u32 {s(self.S_NS)}, {s(self.S_NS)}, {s(S_W)}")
        A(f"s_lshl_b32 {s(self.S_NS)}, {s(self.S_NS)}, 2")
        A(f"s_add_u32 {s(self.S_NS)}, {s(self.S_NS)}, {F_E:#x}")
        self.emit(flag_at=16, write_at=58)


def role_ee(A, sync):
    A(f"s_and_b32 {s(Gemm.S_IT)}, {s(S_IDX)}, 1")
    A(f"s_lshr_b32 {s(EE.S_KS)}, {s(S_IDX)}, 1")
    A(f"s_mul_i32 {s(EE.S_NS)}, {s(EE.S_KS)}, 43")
    A(f"s_lshr_b32 {s(EE.S_NS)}, {s(EE.S_NS)}, 8")
    A(f"s_mul_i32 {s(S_T)}, {s(EE.S_NS)}, 6")
    A(f"s_sub_u32 {s(EE.S_KS)}, {s(EE.S_KS)}, {s(S_T)}")
    srd(A, S_A, KA_WD, SZ_WF)
    A("s_waitcnt lgkmcnt(0)")
    EE(A, sync).body()
```

```python
from asm import *

NAME = "sequential_preLN__memory_aug_recurrent_mem_tr__glu_gated_reglu__prompt"

F_LN = 0x00000
F_A = 0x80000
F_BC = 0x30000
F_R1 = 0x34000
F_E = 0x38000
F_D = 0x50000
FLAGS_END = 0x100000
MR = 0x100000
MR_STRIDE = 0x4000
PR = 0x110000
PR_STRIDE = 0x48000
SENT_END = 0x200000
XH = 0x200000
HH = 0x480000
ST = 0x700000
QB = 0x1000000
KB = 0x2000000
VB = 0x3000000
KM = 0x4000000
VM = 0x4800000
ACT = 0x5000000
P1 = 0x6400000
P2 = 0x9000000
WS_BYTES = 0x10000000
OOR = 0x40000000

KA_X, KA_MEM0, KA_WQ, KA_WK, KA_WV, KA_WO = 0, 8, 16, 24, 32, 40
KA_WG, KA_WU, KA_WD, KA_OUT, KA_DBG, KA_WS = 64, 72, 80, 88, 96, 104
SZ_X = 2048 * 576 * 2
SZ_MEM0 = 8 * 576 * 2
SZ_W = 576 * 4096 * 2
SZ_WF = 576 * 4608 * 2

S_WS = 4
S_A = 8
S_B = 12
S_C = 16
S_DBG = 20
S_IDX = 24
S_W = 25
S_T = 26
WS = s(S_WS, 4)
SA = s(S_A, 4)
SB = s(S_B, 4)
SC = s(S_C, 4)
SDBG = s(S_DBG, 4)

V_L16 = 0
V_LANE = 1


def srd(A, base, ka, size):
    A(f"s_load_dwordx2 {s(base, 2)}, s[0:1], {ka}")
    A(f"s_mov_b32 {s(base + 2)}, {size:#x}")
    A(f"s_mov_b32 {s(base + 3)}, 0x20000")


def entry(A):
    srd(A, S_WS, KA_WS, WS_BYTES)
    srd(A, S_DBG, KA_DBG, 256)
    A(f"v_lshrrev_b32 v2, 6, v0")
    A(f"v_readfirstlane_b32 {s(S_W)}, v2")
    A(f"v_and_b32 {v(V_LANE)}, 63, v0")
    A(f"v_lshlrev_b32 {v(V_L16)}, 4, {v(V_LANE)}")
    A("s_waitcnt lgkmcnt(0)")


def weave(A, main, fill):
    for i, m in enumerate(main):
        A(m)
        for f in fill.get(i, []):
            if callable(f):
                f()
            else:
                A(f)


def spread(fill, items, start, step=1, per=1):
    k = start
    for i in range(0, len(items), per):
        fill.setdefault(k, []).extend(items[i:i + per])
        k += step
    return k


def xg_reduce(A, op, x, t):
    A(f"v_mov_b32 {v(t)}, {v(x)}")
    A(f"v_permlane32_swap_b32 {v(x)}, {v(t)}")
    A(f"{op} {v(x)}, {v(x)}, {v(t)}")
    A(f"v_mov_b32 {v(t)}, {v(x)}")
    A(f"v_permlane16_swap_b32 {v(x)}, {v(t)}")
    A(f"{op} {v(x)}, {v(x)}, {v(t)}")


def bf16_round(A, x):
    A(f"v_cvt_pk_bf16_f32 {v(x)}, {v(x)}, {v(x)}")
    A(f"v_and_b32 {v(x)}, 0xffff0000, {v(x)}")


SPIN_MAX = 1 << 20


def poll_block(A, vdst, voff, soff, sync, stmp, fail="L_fail"):
    if not sync:
        return
    l = A.uid("L_poll")
    d = A.uid("L_polld")
    A(f"s_mov_b32 {s(stmp)}, 0")
    A.label(l)
    A(f"buffer_load_dword {v(vdst)}, {v(voff)}, {WS}, {soff} offen sc1")
    A(f"v_cmp_eq_u32 vcc, 0, {v(vdst)}")
    A(f"s_cbranch_vccz {d}")
    A(f"s_add_u32 {s(stmp)}, {s(stmp)}, 1")
    A(f"s_cmp_lt_u32 {s(stmp)}, {SPIN_MAX}")
    A(f"s_cbranch_scc1 {l}")
    A(f"s_branch {fail}")
    A.label(d)


def poll_mask(A, vdst, soff, mask, stmp, fail="L_fail"):
    l = A.uid("L_poll")
    d = A.uid("L_polld")
    A(f"s_mov_b32 {s(stmp)}, 0")
    A.label(l)
    A(f"buffer_load_dword {v(vdst)}, {v(V_L16)}, {WS}, {soff} offen sc1")
    A(f"v_cmp_eq_u32 vcc, 0, {v(vdst)}")
    A(f"s_and_b64 vcc, vcc, {mask}")
    A(f"s_cbranch_vccz {d}")
    A(f"s_add_u32 {s(stmp)}, {s(stmp)}, 1")
    A(f"s_cmp_lt_u32 {s(stmp)}, {SPIN_MAX}")
    A(f"s_cbranch_scc1 {l}")
    A(f"s_branch {fail}")
    A.label(d)


def lane0_off(A, vdst, vsrc_or_const):
    A(f"v_mov_b32 {v(vdst)}, {OOR:#x}")
    A(f"v_cmp_eq_u32 vcc, 0, {v(V_L16)}")
    A(f"v_cndmask_b32 {v(vdst)}, {v(vdst)}, {vsrc_or_const}, vcc")


def descriptor(kname):
    return f""".amdhsa_kernel {kname}
  .amdhsa_next_free_vgpr 512
  .amdhsa_next_free_sgpr 102
  .amdhsa_accum_offset 256
  .amdhsa_group_segment_fixed_size 0
  .amdhsa_kernarg_size 112
  .amdhsa_user_sgpr_count 2
  .amdhsa_user_sgpr_kernarg_segment_ptr 1
  .amdhsa_system_sgpr_workgroup_id_x 1
.end_amdhsa_kernel
"""
```

```python
from common import *
from bulk import f32
import math

MF = "v_mfma_f32_16x16x32_bf16"
SM = "v_smfmac_f32_16x16x64_bf16"
import os
DIAG = int(os.environ.get("DIAG", "0"))
DSET = [int(x) for x in os.environ.get("DSET", "0,1,2,3,4,5,6,7,8,9,10").split(",")]
KVSC = os.environ.get("KVSC", " sc1")
PFSC = os.environ.get("PFSC", " sc1")
GSLEEP = int(os.environ.get("GSLEEP", "0"))
NOWAIT = int(os.environ.get("NOWAIT", "0"))
REC_LIMIT = int(os.environ.get("REC_LIMIT", "32"))

L_M, L_O, L_S, L_W = 0, 0, 9216, 16384
S_STRIDE = 1536
V_IDX, V_WB, V_POLL, V_SEL = 1, 2, 3, 4
V_M, V_ACC, V_B0, V_B1 = 8, 44, 60, 68
V_SRD, V_OWR, V_ORD, V_MASK = 76, 77, 78, 79
V_T0, V_T1, V_JUNK = 8, 9, 10
WREG = 80
S_H, S_STEP, S_MPRV, S_MNXT, S_MCUR, S_POFF, S_KOFF, S_VOFF, S_KMOFF = 36, 37, 38, 39, 40, 41, 42, 43, 44
S_FLG, S_RED, S_PST, S_SPIN, S_FA, S_GOFF, S_G2, S_PUB, S_MRA = 45, 46, 47, 56, 57, 58, 59, 60, 61
S_RA, S_CS, S_FM, S_PCUR = 48, 90, 92, 94
S_WO = 52
S_EX0, S_EX1 = 62, 64
S_PRD = 66
S_MODE = 67
S_TM = 68
SWO = s(S_WO, 4)
K_LDS = [0, 1, 3, 5]
PAIRS = [[0, 1, 2, 3, 4], [6, 7, 8, 9, 5], [10, 11, 12, 13], [14, 15, 16, 17]]
S_CH = 80
P = lambda k, d: int(os.environ.get(k, d))


def chunk_order(w):
    o = [2 * w, 2 * w + 1, 8]
    return o + [c for c in range(8) if c not in o]


def blocks(np_):
    if np_ == 5:
        oreg, olds = [(4, 0), (0, 1), (1, 1), (2, 1)], [(0, 0), (1, 0), (2, 0), (3, 0), (3, 1), (4, 1)]
    else:
        oreg, olds = [(p, 1) for p in range(4)], [(p, 0) for p in range(4)]
    regb = [("q", c) for c in range(9)] + [("k", c) for c in range(9) if c not in K_LDS] + \
           [("v", c) for c in range(9)] + [("o",) + b for b in oreg]
    ldsb = [("k", c) for c in K_LDS] + [("o",) + b for b in olds]
    assert len(regb) == 27
    return {b: WREG + 16 * i for i, b in enumerate(regb)}, {b: i for i, b in enumerate(ldsb)}


def prologue_weights(A, np_):
    regb, ldsb = blocks(np_)
    VQ, VO, TQK, TV, TO, TO0, TO1, TMP = 8, 9, 10, 11, 12, 16, 17, 20
    sb, st = S_T, S_T + 1
    bo = 0 if np_ == 5 else 1
    w0 = 0 if np_ == 5 else 2
    if np_ == 5:
        A(f"s_mul_i32 {s(sb)}, {s(S_W)}, 40960")
        A(f"s_add_u32 {s(sb)}, {s(sb)}, {L_W}")
    else:
        A(f"s_mul_i32 {s(sb)}, {s(S_W)}, 32768")
        A(f"s_add_u32 {s(sb)}, {s(sb)}, {L_W + 81920 - 65536}")
    A(f"v_add_u32 {v(V_WB)}, {s(sb)}, {v(V_L16)}")
    A(f"s_cmp_eq_u32 {s(S_W)}, {w0}")
    for j in range(9):
        A(f"s_cselect_b32 {s(S_CH + j)}, {chunk_order(w0)[j]}, {chunk_order(w0 + 1)[j]}")
    for p in range(np_):
        A(f"s_cselect_b32 {s(S_CH + 9 + p)}, {PAIRS[w0][p]}, {PAIRS[w0 + 1][p]}")
    for j in range(9):
        A(f"s_lshl_b32 {s(S_CH + j)}, {s(S_CH + j)}, 19")
    for p in range(np_):
        A(f"s_lshl_b32 {s(S_CH + 9 + p)}, {s(S_CH + 9 + p)}, 6")
    L = v(V_LANE)
    A(f"v_lshrrev_b32 v13, 2, {L}")
    A(f"v_and_b32 v14, 3, {L}")
    A(f"v_lshlrev_b32 v14, 4, v14")
    A(f"s_lshl_b32 {s(st)}, {s(S_H)}, 8")
    A(f"s_lshl_b32 {s(st + 1)}, {s(S_W)}, 6")
    A(f"s_add_u32 {s(st)}, {s(st)}, {s(st + 1)}")
    A(f"v_lshlrev_b32 {v(VQ)}, 13, v13")
    A(f"v_add3_u32 {v(VQ)}, {v(VQ)}, v14, {s(st)}")
    A(f"s_mul_i32 {s(st)}, {s(S_H)}, {128 * 1152}")
    A(f"v_mul_u32_u24 {v(VO)}, 1152, v13")
    A(f"v_add3_u32 {v(VO)}, {v(VO)}, v14, {s(st)}")
    A(f"v_bfe_u32 v13, {L}, 5, 1")
    A(f"v_lshlrev_b32 v13, 10, v13")
    A(f"v_bfe_u32 v14, {L}, 4, 1")
    A(f"v_lshl_add_u32 v13, v14, 8, v13")
    A(f"v_bfe_u32 v14, {L}, 3, 1")
    A(f"v_lshl_add_u32 v13, v14, 9, v13")
    A(f"v_bfe_u32 v14, {L}, 2, 1")
    A(f"v_lshl_add_u32 v13, v14, 6, v13")
    A(f"v_add_u32 v13, {s(sb)}, v13")
    A(f"v_and_b32 v15, 3, {L}")
    A(f"v_lshl_add_u32 {v(TQK)}, v15, 4, v13")
    A(f"v_lshl_add_u32 {v(TV)}, v15, 3, v13")
    A(f"v_bfe_u32 v13, {L}, 5, 1")
    A(f"v_lshlrev_b32 v13, 8, v13")
    A(f"v_lshl_add_u32 v13, v14, 6, v13")
    A(f"v_bfe_u32 v14, {L}, 3, 1")
    A(f"v_lshl_add_u32 v13, v14, 5, v13")
    A(f"v_lshl_add_u32 v13, v15, 3, v13")
    A(f"v_add_u32 v13, {s(sb)}, v13")
    A(f"v_bfe_u32 v15, {L}, 4, 1")
    A(f"v_lshl_add_u32 {v(TO)}, v15, 10, v13")
    A(f"v_xor_b32 v15, v15, v14")
    A(f"v_lshl_add_u32 v13, v15, 10, v13")
    A(f"s_cmp_eq_u32 {s(S_W)}, {w0}")
    A(f"s_cselect_b64 vcc, -1, 0")
    A(f"v_cndmask_b32 {v(TO0)}, {v(TO)}, v13, vcc")
    A(f"v_cndmask_b32 {v(TO1)}, v13, {v(TO)}, vcc")

    order = list(regb.keys()) + list(ldsb.keys())
    NS = 8
    slot = {}
    for i, b in enumerate(regb.keys()):
        slot[b] = i % NS
    for b, k in ldsb.items():
        slot[b] = k
    issued = []

    def issue(b):
        for i in range(4):
            if b[0] == "o":
                sr, vo, sg, so = SWO, VO, S_CH + 9 + b[1], (64 * (bo ^ b[2]) + 16 * i) * 1152
            else:
                sr, vo, sg, so = {"q": SA, "k": SB, "v": SC}[b[0]], VQ, S_CH + b[1], 16 * i * 8192
            A(f"s_add_u32 m0, {s(sb)}, {slot[b] * 4096 + 1024 * i:#x}")
            A(f"s_add_u32 {s(st)}, {s(sg)}, {so:#x}")
            A(f"buffer_load_dwordx4 {v(vo)}, {sr}, {s(st)} offen nt lds")
            issued.append(b)

    def reads(b, dst):
        for op in range(2):
            for t in range(4):
                if b[0] == "o":
                    va, rel = (TO if b[2] else (TO0, TO1)[op]), (32 * op + 8 * (t // 2) + 2 * (t % 2)) * 64
                else:
                    rel = (32 * (t // 2) + 2 * (t % 2)) * 64 + (32 * op if b[0] == "v" else 8 * op)
                    va = TV if b[0] == "v" else TQK
                A(f"ds_read_b64_tr_b16 {r(dst + 8 * op + 2 * t, 2)}, {v(va)} offset:{slot[b] * 4096 + rel}")

    busy = {}
    nxt = 0

    def fill():
        nonlocal nxt
        while nxt < len(order) and slot[order[nxt]] not in busy and len(busy) < 10:
            busy[slot[order[nxt]]] = order[nxt]
            issue(order[nxt])
            nxt += 1

    fill()
    for b in order:
        pos = max(i for i, x in enumerate(issued) if x == b)
        after = len(issued) - 1 - pos
        assert after <= 63
        A(f"s_waitcnt vmcnt({after})")
        if b in regb:
            reads(b, regb[b])
            A("s_waitcnt lgkmcnt(0)")
            del busy[slot[b]]
            fill()
        else:
            reads(b, TMP)
            A("s_waitcnt lgkmcnt(0)")
            for i in range(4):
                A(f"ds_write_b128 {v(V_WB)}, {v(TMP + 4 * i, 4)} offset:{slot[b] * 4096 + 1024 * i}")
            A("s_waitcnt lgkmcnt(0)")
    return regb, ldsb


def stamp(A, k):
    if DIAG == 1 and k in DSET:
        A(f"s_memtime {s(S_TM + 2 * k, 2)}")


def consts(A):
    L = v(V_LANE)
    n, g, t, x, y = 24, 25, 26, 27, 28
    A(f"v_and_b32 {v(n)}, 15, {L}")
    A(f"v_lshrrev_b32 {v(g)}, 4, {L}")
    A(f"v_and_b32 {v(t)}, 1, {v(g)}")
    A(f"v_lshlrev_b32 {v(t)}, 2, {v(t)}")
    A(f"v_and_b32 {v(x)}, 7, {v(n)}")
    A(f"v_sub_u32 {v(t)}, {v(x)}, {v(t)}")
    A(f"v_lshrrev_b32 {v(x)}, 3, {v(n)}")
    A(f"v_lshl_add_u32 {v(x)}, {v(x)}, 2, {v(t)}")
    A(f"v_cmp_gt_u32 vcc, 4, {v(t)}")
    A(f"v_cndmask_b32 {v(x)}, 63, {v(x)}, vcc")
    for k in range(4):
        A(f"v_mov_b32 {v(V_SEL + k)}, 0")
        A(f"v_mov_b32 {v(y)}, 0x3f80")
        A(f"v_cmp_eq_u32 vcc, {2 * k}, {v(x)}")
        A(f"v_cndmask_b32 {v(V_SEL + k)}, {v(V_SEL + k)}, {v(y)}, vcc")
        A(f"v_mov_b32 {v(y)}, 0x3f800000")
        A(f"v_cmp_eq_u32 vcc, {2 * k + 1}, {v(x)}")
        A(f"v_cndmask_b32 {v(V_SEL + k)}, {v(V_SEL + k)}, {v(y)}, vcc")
    A(f"v_min_u32 {v(t)}, 2, {v(g)}")
    A(f"v_lshlrev_b32 {v(x)}, 4, {v(n)}")
    A(f"v_lshl_add_u32 {v(V_SRD)}, {v(t)}, 9, {v(x)}")
    A(f"v_and_b32 {v(x)}, 0x70, {v(x)}")
    A(f"v_lshl_add_u32 {v(V_ORD)}, {v(g)}, 7, {v(x)}")
    A(f"v_and_b32 {v(x)}, 8, {v(n)}")
    A(f"v_add_u32 {v(V_OWR)}, {v(V_ORD)}, {v(x)}")
    A(f"v_mov_b32 {v(y)}, 0x3f803f80")
    A(f"v_cmp_gt_u32 vcc, 3, {v(g)}")
    A(f"v_cndmask_b32 {v(V_MASK)}, 0, {v(y)}, vcc")
    A(f"v_and_b32 {v(x)}, 31, {L}")
    A(f"v_lshlrev_b32 {v(x)}, 2, {v(x)}")
    A(f"v_lshrrev_b32 {v(t)}, 5, {L}")
    A(f"v_lshl_add_u32 {v(x)}, {v(t)}, 8, {v(x)}")
    A(f"s_mul_i32 {s(S_T)}, {s(S_W)}, {S_STRIDE}")
    A(f"v_add_u32 {v(x)}, {s(S_T)}, {v(x)}")
    A(f"v_mov_b32 {v(y)}, 0xf149f2ca")
    A(f"ds_write_b32 {v(x)}, {v(y)} offset:{L_S + 1152}")
    A(f"s_mov_b32 {s(S_EX0)}, 0x00ff00ff")
    A(f"s_mov_b32 {s(S_EX0 + 1)}, 0x00ff00ff")
    A(f"s_mov_b32 {s(S_EX1)}, 0")
    A(f"s_mov_b32 {s(S_EX1 + 1)}, 0x00ff00ff")
    cs = 128 ** -0.5 * math.log2(math.e)
    A(f"s_mov_b32 {s(S_CS)}, {f32(cs):#x}")
    A(f"s_mov_b32 {s(S_CS + 1)}, {f32(cs):#x}")
    A(f"v_mov_b32 {v(x)}, 0x44444444")
    A(f"v_mov_b32 {v(y)}, 0xeeeeeeee")
    A(f"v_cmp_gt_u32 vcc, 8, {v(n)}")
    A(f"v_cndmask_b32 {v(V_IDX)}, {v(y)}, {v(x)}, vcc")


V_CR, V_CP, V_NEG = V_M + 28, V_M + 29, V_M + 32


def red_addr():
    t = V_M + 30
    return [f"v_and_b32 {v(V_CR)}, 0x380, {v(V_L16)}",
            f"v_and_b32 {v(t)}, 0x70, {v(V_L16)}",
            f"v_lshl_add_u32 {v(V_CR)}, {v(V_CR)}, 3, {v(t)}",
            f"v_bfe_u32 {v(V_CP)}, {v(V_L16)}, 8, 1",
            f"v_bfe_u32 {v(t)}, {v(V_L16)}, 9, 1",
            f"v_lshl_add_u32 {v(V_CP)}, {v(V_CP)}, 1, {v(t)}",
            f"v_and_b32 {v(t)}, 0x30, {v(V_L16)}",
            f"v_lshl_add_u32 {v(V_CP)}, {v(V_CP)}, 2, {v(t)}",
            f"v_and_b32 {v(t)}, 0x40, {v(V_L16)}",
            f"v_lshl_add_u32 {v(V_CP)}, {v(t)}, 3, {v(V_CP)}",
            f"v_and_b32 {v(t)}, 0x80, {v(V_L16)}",
            f"v_lshl_add_u32 {v(V_CP)}, {v(t)}, 23, {v(V_CP)}"]


def loop(A, w, fast, sync, regb, ldsb):
    np_ = len(PAIRS[w])
    bo = w // 2
    tag = f"{w}{'f' if fast else 's'}"
    sc = "" if fast else " sc1"
    M = lambda c: v(V_M + 4 * c, 4)
    ACC = lambda k: v(V_ACC + 4 * k, 4)
    idx = v(V_IDX)
    L16 = v(V_L16)
    cho = chunk_order(w)
    nown = 3 if w == 0 else 2
    cvt = lambda d, x: f"v_cvt_pk_bf16_f32 {v(d)}, {v(x)}, {v(x + 1)}"
    zero = lambda d, n: [f"v_mov_b64 {v(d + 2 * i, 2)}, 0" for i in range(n // 2)]
    dpp = "row_ror:8 row_mask:0xf bank_mask:0xf"

    def ldsop(b, op, dst):
        o = ldsb[b] * 4096 + op * 2048
        return [f"ds_read_b128 {v(dst, 4)}, {v(V_WB)} offset:{o}",
                f"ds_read_b128 {v(dst + 4, 4)}, {v(V_WB)} offset:{o + 1024}"]

    def pre():
        for x in ldsop(("k", 0), 0, V_B0) + ldsop(("k", 0), 1, V_B1) + ldsop(("k", 1), 0, V_M + 12) + \
                ldsop(("k", 1), 1, V_M + 20) + zero(V_ACC, 16):
            A(x)
        if w:
            A(f"v_mov_b64 {v(V_NEG, 2)}, -1")
            A(f"v_mov_b64 {v(V_NEG + 2, 2)}, -1")

    def gather():
        A(f"buffer_load_dwordx4 {M(0)}, {L16}, {WS}, {s(S_GOFF)} offen sc1")
        A(f"buffer_load_dwordx4 {M(1)}, {L16}, {WS}, {s(S_GOFF)} offen offset:1024 sc1")
        if w == 0:
            A(f"buffer_load_dwordx4 {M(2)}, {L16}, {WS}, {s(S_G2)} offen sc1")

    if w:
        for x in red_addr():
            A(x)
    pre()
    if DIAG == 2:
        A(f"s_memtime {s(S_TM + 2, 2)}")
        A(f"s_memrealtime {s(S_TM + 6, 2)}")
    A(f"s_branch L_chk{tag}")

    A.label(f"L_top{tag}")
    stamp(A, 0)
    gather()
    A(f"s_mov_b32 {s(S_SPIN)}, 0")
    if sync:
        A(f"v_cmp_eq_u32 vcc, 0, {v(V_POLL)}")
        A(f"s_and_b64 vcc, vcc, {s(S_FM, 2)}")
        A(f"s_cbranch_vccnz L_slow{tag}")
    A.label(f"L_chk{tag}")
    for j in range(nown):
        A(f"ds_write_b128 {L16}, {M(j)} offset:{L_M + 1024 * cho[j]}")
    mx = V_M + 8 if w else V_M + 32
    g = [V_M + i for i in range(4 * nown)]
    A(f"v_max3_u32 {v(mx)}, {v(g[0])}, {v(g[1])}, {v(g[2])}")
    for i in range(3, 4 * nown - 1, 2):
        A(f"v_max3_u32 {v(mx)}, {v(mx)}, {v(g[i])}, {v(g[i + 1])}")
    A(f"v_max_u32 {v(mx)}, {v(mx)}, {v(g[-1])}")
    A(f"v_cmp_eq_u32 vcc, -1, {v(mx)}")
    if not NOWAIT & 1:
        A(f"s_cbranch_vccnz L_retry{tag}")
    stamp(A, 1)
    seq = [("k", 0, 0), ("q", 0, 0), ("k", 0, 1), ("q", 0, 1), ("k", 1, 0), ("k", 1, 1), ("q", 1, 0), ("q", 1, 1)]
    for c in range(2, 6):
        for t in range(2):
            seq += [("k", c, t), ("q", c, t)] if c in K_LDS else [("q", c, t), ("k", c, t)]
    for t in range(2):
        for c in range(6, 9):
            seq += [("q", c, t), ("k", c, t)]
    main, fill = [], {}
    F = lambda i, *x: fill.setdefault(i, []).extend(x)
    for i, (m, c, t) in enumerate(seq):
        if m == "k" and c in K_LDS:
            b = v(V_M + 12 + 8 * t if c == 1 else (V_B0, V_B1)[t], 8)
        else:
            b = r(regb[(m, c)] + 8 * t, 8)
        main.append(f"{SM} {ACC(2 * t + (m == 'k'))}, {M(c)}, {b}, {idx}")
    pos = {x: i for i, x in enumerate(seq)}
    BAR = P("BAR1", 3)
    rd = {c: f"ds_read_b128 {M(c)}, {L16} offset:{L_M + 1024 * cho[c]}" for c in range(nown, 9)}
    misc = []
    if w:
        misc += [f"buffer_store_dwordx4 {v(V_NEG, 4)}, {v(V_CR)}, {WS}, {s(S_RA + i)} offen{sc}" for i in range(4)]
        misc += [f"buffer_store_dword {v(V_NEG)}, {v(V_CP)}, {WS}, {s(S_MRA)} offen{sc}"]
        spread(fill, misc, 0, 1, 2)
    F(BAR, "s_waitcnt lgkmcnt(0)", "s_barrier")
    if DIAG == 1 and 2 in DSET:
        F(BAR, f"s_memtime {s(S_TM + 4, 2)}")
    if w:
        F(BAR, rd[2])
    k = max(BAR + 1, 4)
    F(k, rd[3], rd[4])
    k3 = ldsop(("k", 3), 0, V_B0) + ldsop(("k", 3), 1, V_B1)
    spread(fill, k3[:2] + [rd[5]] + k3[2:] + [rd[6], rd[7], rd[8]], k + 1)
    if sync:
        F(k + 9, "s_mov_b64 exec, 1", f"buffer_store_dword {idx}, {L16}, {WS}, {s(S_FLG)} offen sc1", "s_mov_b64 exec, -1")
    for t in range(2):
        spread(fill, ldsop(("k", 5), t, (V_B0, V_B1)[t]), pos[("k", 3, t)] + 2)
    F(pos[("k", 5, 0)], f"buffer_load_dwordx4 {v(V_B0, 4)}, {L16}, {WS}, {s(S_KOFF)} offen{KVSC}",
      f"s_add_u32 {s(S_T)}, {s(S_KOFF)}, 4096")
    F(pos[("k", 5, 0)] + 1, f"buffer_load_dwordx4 {v(V_B0 + 4, 4)}, {L16}, {WS}, {s(S_T)} offen{KVSC}")
    spread(fill, zero(V_B1, 8), pos[("k", 5, 1)] + 1)
    a_ = V_ACC
    n = len(seq)
    spread(fill, [cvt(a_ + k, a_ + 2 * k) for k in range(4)], n - 5)
    weave(A, main, fill)
    stamp(A, 3)
    VA = lambda t: v(V_B1 + 4 * t, 4)
    vq = [f"{SM} {VA(t)}, {M(c)}, {r(regb[('v', c)] + 8 * t, 8)}, {idx}" for c in range(9) for t in range(2)]
    vq.reverse()

    def vs(n):
        for _ in range(n):
            A(vq.pop())
    X = v(a_, 4)
    A(f"{MF} {v(a_ + 4, 4)}, {v(a_, 4)}, {v(V_SEL, 4)}, 0")
    for k in range(4):
        A(cvt(a_ + 8 + k, a_ + 8 + 2 * k))
    A(f"{MF} {v(a_ + 12, 4)}, {v(a_ + 8, 4)}, {v(V_SEL, 4)}, 0")
    A(cvt(a_, a_ + 4))
    A(cvt(a_ + 1, a_ + 6))
    vs(1)
    A(cvt(a_ + 2, a_ + 12))
    A(cvt(a_ + 3, a_ + 14))
    so = L_S + S_STRIDE * w
    A(f"{MF} {v(a_ + 4, 4)}, {v(V_B0, 4)}, {X}, 0")
    A(f"buffer_store_dwordx4 {X}, {L16}, {WS}, {s(S_KMOFF)} offen sc1")
    A(f"{MF} {v(a_ + 12, 4)}, {v(V_B0 + 4, 4)}, {X}, 0")
    VO0, VO1 = V_B0, V_M + 16
    A(f"buffer_load_dwordx4 {v(VO0, 4)}, {L16}, {WS}, {s(S_VOFF)} offen{KVSC}")
    A(f"{MF} {v(a_ + 8, 4)}, {X}, {X}, 0")
    vs(1)
    A(f"s_mov_b64 exec, {s(S_EX0, 2)}")
    A(f"ds_write_b128 {L16}, {v(a_ + 4, 4)} offset:{so}")
    A(f"ds_write_b128 {L16}, {v(a_ + 12, 4)} offset:{so + 128}")
    A(f"s_mov_b64 exec, {s(S_EX1, 2)}")
    A(f"ds_write_b128 {L16}, {v(a_ + 8, 4)} offset:{so + 512}")
    A("s_mov_b64 exec, -1")
    vs(P("VC", 4))
    A("s_waitcnt lgkmcnt(0)")
    A("s_barrier")
    stamp(A, 4)
    SP = [V_M, V_M + 8, V_ACC, V_ACC + 8]
    srd_ = lambda k, h: f"ds_read_b128 {v(SP[k] + 4 * h, 4)}, {v(V_SRD)} offset:{L_S + S_STRIDE * k + 256 * h}"
    done = lambda: 18 - len(vq)
    for k, h in [(2, 0), (3, 0), (2, 1), (3, 1), (0, 0), (0, 1), (1, 0), (1, 1)]:
        if k < 2:
            while done() < 2 * (2 * k + h + 1):
                vs(1)
        A(srd_(k, h))
        if (k, h) in ((3, 0), (3, 1)) and vq:
            vs(1)
    MASK, LL, O0, O1 = V_ACC, V_ACC + 4, V_M + 24, V_M + 28
    while done() < 10:
        vs(1)
    A(f"buffer_load_dwordx4 {v(VO1, 4)}, {L16}, {WS}, {s(S_VOFF)} offen offset:1024{KVSC}")
    extra = [f"s_add_u32 {s(S_KOFF)}, {s(S_KOFF)}, 0x40000", f"s_add_u32 {s(S_VOFF)}, {s(S_VOFF)}, 0x40000"]
    if w < 2:
        extra += [f"s_sub_u32 {s(S_T)}, {s(S_VOFF)}, 2048" if w else f"s_mov_b32 {s(S_T)}, {s(S_KOFF)}",
                  f"buffer_load_dword {v(V_POLL)}, {v(V_POLL)}, {WS}, {s(S_T)} offen{PFSC}"]
    if sync:
        extra += [f"s_min_u32 {s(S_T)}, {s(S_STEP)}, 61", f"s_lshl_b32 {s(S_T)}, {s(S_T)}, 13",
                  f"s_add_u32 {s(S_T)}, {s(S_T)}, {s(S_FA)}",
                  f"buffer_load_dword {v(V_POLL)}, {L16}, {WS}, {s(S_T)} offen sc1"]
    extra += [f"s_add_u32 {s(S_T + 1)}, {s(S_KMOFF)}, {VM - KM:#x}"]
    zs = {11: [f"v_lshlrev_b32 {v(V_POLL)}, 3, {L16}"] if w < 2 else [], 13: [f"v_mov_b32 {v(VO1 + 5)}, 0"],
          14: [f"v_mov_b32 {v(VO1 + 7)}, 0"], 15: zero(O0, 2), 16: zero(O0 + 2, 2), 17: zero(O1, 2), 18: zero(O1 + 2, 2)}
    while vq:
        vs(1)
        for x in zs.get(done(), []) + extra[:2]:
            A(x)
        extra = extra[2:]
    for x in extra:
        A(x)
    pk = lambda d, x, y: f"v_pk_add_f32 {v(d, 2)}, {v(x, 2)}, {v(y, 2)}"
    for k in range(0, 8, 2):
        A(pk(SP[2] + k, SP[2] + k, SP[3] + k))
    for k in range(0, 8, 2):
        A(pk(SP[0] + k, SP[0] + k, SP[2] + k))
    for k in range(0, 8, 2):
        A(pk(SP[0] + k, SP[0] + k, SP[1] + k))
    stamp(A, 5)
    S0 = SP[0]
    ta, tb, tc, td = V_M + 8, V_M + 9, V_M + 10, V_M + 11
    PP = V_M + 12
    WB = [V_B1, V_ACC + 8, V_B0, V_M + 16]
    OC = [V_M + 32, V_ACC, V_M + 24, V_ACC + 4, V_M + 28][:np_]
    A(f"v_max3_f32 {v(ta)}, {v(S0)}, {v(S0 + 1)}, {v(S0 + 2)}")
    A(f"v_max3_f32 {v(tb)}, {v(S0 + 3)}, {v(S0 + 4)}, {v(S0 + 5)}")
    A(f"v_max3_f32 {v(ta)}, {v(ta)}, {v(S0 + 6)}, {v(S0 + 7)}")
    A(f"v_max_f32 {v(tc)}, {v(ta)}, {v(tb)}")
    A(cvt(VO0 + 4, V_B1))
    A(cvt(VO0 + 6, V_B1 + 2))
    A(f"v_max_f32_dpp {v(ta)}, {v(tc)}, {v(tc)} {dpp}")
    A(f"v_max_f32_dpp {v(tb)}, {v(tc)}, {v(tc)} {dpp}")
    A(cvt(VO0 + 5, V_B1 + 4))
    A(cvt(VO0 + 7, V_B1 + 6))
    A(f"v_permlane32_swap_b32 {v(ta)}, {v(tb)}")
    A(f"v_max_f32 {v(tc)}, {v(ta)}, {v(tb)}")
    A(f"v_max_f32 {v(td)}, {v(ta)}, {v(tb)}")
    A(cvt(VO1 + 4, V_B1 + 4))
    A(cvt(VO1 + 6, V_B1 + 6))
    A(f"v_permlane16_swap_b32 {v(tc)}, {v(td)}")
    A(f"v_max_f32 {v(tc)}, {v(tc)}, {v(td)}")
    A(f"v_mul_f32 {v(tc)}, {s(S_CS)}, {v(tc)}")
    for k in range(0, 8, 2):
        A(f"v_pk_fma_f32 {v(S0 + k, 2)}, {v(S0 + k, 2)}, {s(S_CS, 2)}, {v(tc, 2)} op_sel_hi:[1,1,0] neg_lo:[0,0,1] neg_hi:[0,0,1]")
    side = [f"buffer_store_dwordx4 {v(VO0 + 4, 4)}, {L16}, {WS}, {s(S_T + 1)} offen sc1"] + \
        ldsop(("o", 0, 0), w % 2, WB[0]) + ldsop(("o", 1, 0), w % 2, WB[1])
    mk = [f"v_mov_b32 {v(MASK + k)}, {v(V_MASK)}" for k in range(4)]
    for k in range(8):
        A(f"v_exp_f32 {v(S0 + k)}, {v(S0 + k)}")
        if side:
            A(side.pop(0))
        if k % 2 == 1 and k > 1:
            A(cvt(PP + k // 2 - 1, S0 + k - 3))
        elif k in (0, 1, 2):
            A(mk.pop())
    A(mk.pop())
    A(cvt(PP + 3, S0 + 6))
    stamp(A, 6)
    A(f"{SM} {v(O0, 4)}, {v(PP, 4)}, {v(VO0, 8)}, {idx}")
    for x in ldsop(("o", 2, 0), w % 2, WB[2]):
        A(x)
    A(f"{SM} {v(O1, 4)}, {v(PP, 4)}, {v(VO1, 8)}, {idx}")
    for x in ldsop(("o", 3, 0), w % 2, WB[3]):
        A(x)
    A(f"{MF} {v(LL, 4)}, {v(MASK, 4)}, {v(PP, 4)}, 0")
    A(f"s_cmp_eq_u32 {s(S_STEP)}, 63")
    A(cvt(O0, O0))
    A(cvt(O0 + 1, O0 + 2))
    A(f"s_cbranch_scc1 L_last{tag}")
    A(cvt(O0 + 2, O1))
    A(cvt(O0 + 3, O1 + 2))
    for x in zero(OC[1], 4):
        A(x)
    A(f"{MF} {v(O1, 4)}, {v(O0, 4)}, {v(V_SEL, 4)}, 0")
    A(f"v_add_f32_dpp {v(tc)}, {v(LL)}, {v(LL)} {dpp}")
    for x in zero(OC[0], 4):
        A(x)
    A(f"v_rcp_f32 {v(tc)}, {v(tc)}")
    for x in zero(OC[2], 4) + zero(OC[3], 4):
        A(x)
    OWN = V_M + 12
    for k in range(0, 4, 2):
        A(f"v_pk_mul_f32 {v(O1 + k, 2)}, {v(O1 + k, 2)}, {v(tc, 2)} op_sel_hi:[1,0]")
    A(cvt(OWN, O1))
    A(cvt(OWN + 1, O1 + 2))
    A(f"ds_write_b64 {v(V_OWR)}, {v(OWN, 2)} offset:{L_O + 512 * w}")
    A(f"s_add_u32 {s(S_PCUR)}, {s(S_POFF)}, {s(S_PST)}")
    A(f"v_mov_b32_dpp {v(OWN + 2)}, {v(OWN)} {dpp}")
    A(f"v_mov_b32_dpp {v(OWN + 3)}, {v(OWN + 1)} {dpp}")
    stamp(A, 7)
    oth = [2 * (1 - bo), 2 * (1 - bo) + 1, w ^ 1]
    OA = {w: OWN, oth[0]: V_M, oth[1]: V_M + 4, oth[2]: V_M + 8}
    blk = lambda p, kk: ("o", p, (kk // 2) ^ bo)
    seq = [(p, w) for p in range(np_)]
    for p in range(np_):
        seq += sorted([(p, kk) for kk in oth], key=lambda x: blk(*x) in ldsb)
    lpos = [i for i, x in enumerate(seq) if blk(*x) in ldsb]
    assert lpos[:4] == [0, 1, 2, 3]
    main, fill = [], {}
    for i, (p, kk) in enumerate(seq):
        b = blk(p, kk)
        w_ = v(WB[lpos.index(i) % 4], 8) if b in ldsb else r(regb[b] + 8 * (kk % 2), 8)
        main.append(f"{SM} {v(OC[p], 4)}, {v(OA[kk], 4)}, {w_}, {idx}")
    BAR = P("BAR3", 2)
    if np_ == 5:
        spread(fill, zero(OC[4], 4), 0)
    nrd = 0
    refill = {j: ldsop(blk(*seq[lpos[j + 4]]), seq[lpos[j + 4]][1] % 2, WB[j % 4]) for j in range(len(lpos) - 4)}
    for j in range(2):
        F(j, *refill[j])
    F(BAR, "s_waitcnt lgkmcnt(4)", "s_barrier")
    for kk in oth:
        F(BAR, f"ds_read_b128 {v(OA[kk], 4)}, {v(V_ORD)} offset:{L_O + 512 * kk}")
    F(max(BAR + 1, 3), *refill[2])
    F(max(BAR + 2, 4), *refill[3])
    for j in range(4, len(lpos) - 4):
        F(lpos[j], *refill[j])
    tail = []
    for p in range(np_):
        e = np_ + 3 * p + 2
        pr = PAIRS[w][p]
        if p == 4:
            d = OC[p]
            ops = [cvt(d, d), cvt(d + 1, d + 2), f"v_min_u32 {v(d)}, -2, {v(d)}"]
            st_ = [f"s_add_u32 {s(S_T)}, {s(S_PCUR)}, {(pr // 2) * 32768:#x}",
                   f"buffer_store_dwordx2 {v(d, 2)}, {L16}, {WS}, {s(S_T)} offen offset:{8 * (pr % 2)}{sc}"]
        else:
            d = OC[p - p % 2] + 2 * (p % 2)
            ops = [cvt(d, OC[p]), cvt(d + 1, OC[p] + 2), f"v_min_u32 {v(d)}, -2, {v(d)}"]
            st_ = [f"s_add_u32 {s(S_T)}, {s(S_PCUR)}, {(pr // 2) * 32768:#x}",
                   f"buffer_store_dwordx4 {v(OC[p - 1], 4)}, {L16}, {WS}, {s(S_T)} offen{sc}"] if p % 2 else []
        for i, x in enumerate(ops):
            if e + 2 + i < len(seq):
                F(e + 2 + i, x)
            else:
                tail.append(x)
        if st_:
            if e + 4 < len(seq):
                F(e + 4, *st_)
            else:
                tail = [st_[0]] + tail + [st_[1]] if p == np_ - 1 and not any("buffer" in x for x in tail) else tail + st_
    weave(A, main, fill)
    for x in tail:
        A(x)
    stamp(A, 8)
    R0, RS, RD, mx = V_M, V_M + 16, V_M + 20, V_M + 24

    def rsetup():
        t = V_M + 25
        o = [f"v_bfe_u32 {v(t)}, {L16}, 4, 1", f"v_lshlrev_b32 {v(t)}, 4, {v(t)}", f"v_mov_b32 {v(mx)}, 0x3f80",
             f"v_lshlrev_b32 {v(mx)}, {v(t)}, {v(mx)}", f"v_bfe_u32 {v(t)}, {L16}, 5, 3"]
        for k in range(4):
            o += [f"v_cmp_eq_u32 vcc, {k}, {v(t)}", f"s_add_u32 {s(S_RA + k)}, {s(S_T + 2)}, {8192 * k}",
                  f"v_cndmask_b32 {v(RS + k)}, 0, {v(mx)}, vcc"]
        return [f"s_add_u32 {s(S_T + 2)}, {s(S_POFF)}, {s(S_PRD)}"] + o
    early = (red_addr() + rsetup()) if w else []
    cut = P("RCUT", 16) if w >= 2 else 0
    for x in early[:cut]:
        A(x)
    A("s_barrier")
    if w == 1:
        A(f"s_cmp_eq_u32 {s(S_RED)}, 0")
        A(f"s_cbranch_scc1 L_nored{tag}")
    if w:
        for x in early[cut:]:
            A(x)
        rl = [f"buffer_load_dwordx4 {v(R0 + 4 * k, 4)}, {v(V_CR)}, {WS}, {s(S_RA + k)} offen sc1" for k in range(4)]
        for x in rl:
            A(x)
        A(f"s_mov_b32 {s(S_SPIN)}, 0")
        A(f"s_add_u32 {s(S_T)}, {s(S_MNXT)}, {s(S_PUB)}")
        A.label(f"L_rchk{tag}")
        for k in range(4):
            A(f"{MF} {v(RD, 4)}, {v(R0 + 4 * k, 4)}, {v(RS, 4)}, {v(RD, 4) if k else 0}")
            if k == 0:
                A(f"v_max_u32 {v(mx)}, {v(R0)}, {v(R0 + 2)}")
            else:
                A(f"v_max3_u32 {v(mx)}, {v(mx)}, {v(R0 + 4 * k)}, {v(R0 + 4 * k + 2)}")
        A(f"v_cmp_eq_u32 vcc, -1, {v(mx)}")
        if not NOWAIT & 2:
            A(f"s_cbranch_vccnz L_r{tag}")
        stamp(A, 9)
        A(f"v_permlane32_swap_b32 {v(RD)}, {v(RD + 2)}")
        A(f"v_permlane32_swap_b32 {v(RD + 1)}, {v(RD + 3)}")
        A(pk(RD, RD, RD + 2))
        A(cvt(RD, RD))
        A(f"v_min_u32 {v(RD)}, -2, {v(RD)}")
        A(f"buffer_store_dword {v(RD)}, {v(V_CP)}, {WS}, {s(S_T)} offen{sc}")
    A.label(f"L_nored{tag}")
    stamp(A, 10)

    def advance():
        if DIAG == 1:
            diag_dump(A)
        A(f"s_add_u32 {s(S_STEP)}, {s(S_STEP)}, 1")
        A(f"s_xor_b32 {s(S_POFF)}, {s(S_POFF)}, {PR ^ (PR + PR_STRIDE):#x}")
        A(f"s_add_u32 {s(S_MRA)}, {s(S_MCUR)}, {s(S_PUB)}")
        A(f"s_mov_b32 {s(S_T)}, {s(S_MPRV)}")
        A(f"s_mov_b32 {s(S_MPRV)}, {s(S_MCUR)}")
        A(f"s_mov_b32 {s(S_MCUR)}, {s(S_MNXT)}")
        A(f"s_mov_b32 {s(S_MNXT)}, {s(S_T)}")
        A(f"s_add_u32 {s(S_GOFF)}, {s(S_MCUR)}, {2048 * w}")
        if w == 0:
            A(f"s_add_u32 {s(S_G2)}, {s(S_MCUR)}, 8192")
        if sync:
            A(f"s_add_u32 {s(S_FLG)}, {s(S_FLG)}, 8192")
        A(f"s_add_u32 {s(S_KMOFF)}, {s(S_KMOFF)}, 0x20000")
        pre()
    advance()
    A("s_barrier")
    for _ in range(P("GDELAY", 0)):
        A("s_nop 7")
    A(f"s_branch L_top{tag}")
    A.label(f"L_retry{tag}")
    gather()
    A(f"s_add_u32 {s(S_SPIN)}, {s(S_SPIN)}, 1")
    if DIAG == 2:
        A(f"s_add_u32 {s(S_TM + 12)}, {s(S_TM + 12)}, 1")
    A(f"s_cmp_lt_u32 {s(S_SPIN)}, {SPIN_MAX}")
    A(f"s_cbranch_scc1 L_chk{tag}")
    A("s_branch L_fail")
    if w:
        A.label(f"L_r{tag}")
        for x in rl:
            A(x)
        A(f"s_add_u32 {s(S_SPIN)}, {s(S_SPIN)}, 1")
        if DIAG == 2:
            A(f"s_add_u32 {s(S_TM + 14)}, {s(S_TM + 14)}, 1")
        A(f"s_cmp_lt_u32 {s(S_SPIN)}, {SPIN_MAX}")
        A(f"s_cbranch_scc1 L_rchk{tag}")
        A("s_branch L_fail")
    if sync:
        A.label(f"L_slow{tag}")
        A(f"s_min_u32 {s(S_T)}, {s(S_STEP)}, 62")
        A(f"s_lshl_b32 {s(S_T)}, {s(S_T)}, 13")
        A(f"s_add_u32 {s(S_T)}, {s(S_T)}, {s(S_FA)}")
        A(f"s_sub_u32 {s(S_T)}, {s(S_T)}, 8192")
        poll_mask(A, V_POLL, s(S_T), s(S_FM, 2), S_T + 1)
        A(f"s_branch L_chk{tag}")
    A.label(f"L_last{tag}")
    if DIAG == 2:
        A(f"s_memtime {s(S_TM + 4, 2)}")
        A(f"s_memrealtime {s(S_TM + 8, 2)}")
        diag_dump(A)
    if sync:
        A(f"s_add_u32 {s(S_FLG)}, {s(S_FLG)}, 8192")
        A("s_waitcnt vmcnt(0)")
        A("s_mov_b64 exec, 1")
        A(f"buffer_store_dword {idx}, {L16}, {WS}, {s(S_FLG)} offen sc1")
        A("s_mov_b64 exec, -1")
    A("s_branch L_exit")


DIAG_OFF = 0xC000000


def diag_dump(A):
    A("s_waitcnt lgkmcnt(0)")
    A(f"s_lshl_b32 {s(S_T)}, {s(S_H)}, 2")
    A(f"s_add_u32 {s(S_T)}, {s(S_T)}, {s(S_W)}")
    A(f"s_lshl_b32 {s(S_T)}, {s(S_T)}, 6")
    A(f"s_add_u32 {s(S_T)}, {s(S_T)}, {s(S_STEP)}")
    A(f"s_lshl_b32 {s(S_T)}, {s(S_T)}, 6")
    A(f"s_add_u32 {s(S_T)}, {s(S_T)}, {DIAG_OFF:#x}")
    A(f"v_mov_b32 {v(V_T0)}, 0")
    for k in range(11):
        A(f"v_writelane_b32 {v(V_T0)}, {s(S_TM + 2 * k)}, {k}")
    A(f"v_lshrrev_b32 {v(V_T1)}, 2, {v(V_L16)}")
    A("s_mov_b64 exec, 0xffff")
    A(f"buffer_store_dword {v(V_T0)}, {v(V_T1)}, {WS}, {s(S_T)} offen")
    A("s_mov_b64 exec, -1")


def wait_registered(A):
    l = A.uid("L_reg")
    A(f"v_mov_b32 {v(V_T0)}, 0")
    A(f"s_mov_b32 {s(S_T + 2)}, 0")
    A.label(l)
    A(f"buffer_load_dword {v(V_T1)}, {v(V_T0)}, {SDBG}, 0 offen sc1")
    A(f"buffer_load_dword {v(V_JUNK)}, {v(V_T0)}, {SDBG}, 0 offen offset:128 sc1")
    A(f"s_add_u32 {s(S_T + 2)}, {s(S_T + 2)}, 1")
    A(f"s_cmp_gt_u32 {s(S_T + 2)}, {SPIN_MAX}")
    A("s_cbranch_scc1 L_fail")
    A(f"v_readfirstlane_b32 {s(S_MODE)}, {v(V_T1)}")
    A(f"v_readfirstlane_b32 {s(S_T + 1)}, {v(V_JUNK)}")
    A(f"s_min_u32 {s(S_T)}, {s(S_MODE)}, {REC_LIMIT}")
    A(f"s_add_u32 {s(S_T)}, {s(S_T)}, {s(S_T + 1)}")
    A(f"s_cmp_lt_u32 {s(S_T)}, 256")
    A(f"s_cbranch_scc1 {l}")


def role_rec(A, sync):
    srd(A, S_A, KA_WQ, SZ_W)
    srd(A, S_B, KA_WK, SZ_W)
    srd(A, S_C, KA_WV, SZ_W)
    srd(A, S_WO, KA_WO, SZ_W)
    A("s_waitcnt lgkmcnt(0)")
    A(f"s_cmp_lt_u32 {s(S_W)}, 2")
    A("s_cbranch_scc0 L_rec4")
    for np_ in (5, 4):
        if np_ == 4:
            A.label("L_rec4")
        regb, ldsb = prologue_weights(A, np_)
        srd(A, S_A, KA_MEM0, SZ_MEM0)
        L = v(V_LANE)
        A(f"v_and_b32 v20, 7, {L}")
        A(f"v_mul_u32_u24 v20, 1152, v20")
        A(f"v_lshrrev_b32 v21, 3, {L}")
        A(f"v_lshl_add_u32 v20, v21, 4, v20")
        A(f"s_lshl_b32 {s(S_T)}, {s(S_W)}, 8")
        A("s_waitcnt lgkmcnt(0)")
        A(f"buffer_load_dwordx4 v[32:35], v20, {SA}, {s(S_T)} offen")
        A(f"buffer_load_dwordx4 v[36:39], v20, {SA}, {s(S_T)} offen offset:128")
        A(f"buffer_load_dwordx4 v[40:43], v20, {SA}, 0 offen offset:1024")
        consts(A)
        A(f"s_mov_b32 {s(S_STEP)}, 0")
        A(f"s_mov_b32 {s(S_POFF)}, {PR:#x}")
        A(f"s_mov_b32 {s(S_MCUR)}, {MR:#x}")
        A(f"s_mov_b32 {s(S_MNXT)}, {MR + MR_STRIDE:#x}")
        A(f"s_mov_b32 {s(S_MPRV)}, {MR + 2 * MR_STRIDE:#x}")
        A(f"s_lshl_b32 {s(S_T)}, {s(S_H)}, 13")
        A(f"s_lshl_b32 {s(S_T + 1)}, {s(S_W)}, 10")
        A(f"s_add_u32 {s(S_KOFF)}, {s(S_T)}, {s(S_T + 1)}")
        A(f"s_add_u32 {s(S_VOFF)}, {s(S_KOFF)}, {s(S_T + 1)}")
        A(f"s_add_u32 {s(S_KOFF)}, {s(S_KOFF)}, {KB:#x}")
        A(f"s_add_u32 {s(S_VOFF)}, {s(S_VOFF)}, {VB:#x}")
        A(f"s_lshl_b32 {s(S_T)}, {s(S_H)}, 12")
        A(f"s_add_u32 {s(S_KMOFF)}, {s(S_T)}, {s(S_T + 1)}")
        A(f"s_add_u32 {s(S_KMOFF)}, {s(S_KMOFF)}, {KM:#x}")
        A(f"s_lshl_b32 {s(S_PST)}, {s(S_H)}, 10")
        if np_ == 5:
            A(f"s_cmp_lt_u32 {s(S_H)}, 8")
            A(f"s_cselect_b32 {s(S_RED)}, {s(S_W)}, 0")
            A(f"s_add_u32 {s(S_T)}, {s(S_H)}, 64")
        else:
            A(f"s_and_b32 {s(S_T)}, {s(S_W)}, 1")
            A(f"s_lshl_b32 {s(S_T)}, {s(S_T)}, 5")
            A(f"s_add_u32 {s(S_T)}, {s(S_T)}, {s(S_H)}")
        A(f"s_lshr_b32 {s(S_T + 1)}, {s(S_T)}, 3")
        A(f"s_and_b32 {s(S_T + 2)}, {s(S_T)}, 7")
        A(f"s_lshl_b32 {s(S_PRD)}, {s(S_T + 1)}, 15")
        A(f"s_lshl_b32 {s(S_T + 3)}, {s(S_T + 2)}, 7")
        A(f"s_add_u32 {s(S_PRD)}, {s(S_PRD)}, {s(S_T + 3)}")
        A(f"s_lshl_b32 {s(S_PUB)}, {s(S_T + 1)}, 10")
        A(f"s_and_b32 {s(S_T + 3)}, {s(S_T)}, 4")
        A(f"s_lshl_b32 {s(S_T + 3)}, {s(S_T + 3)}, 6")
        A(f"s_add_u32 {s(S_PUB)}, {s(S_PUB)}, {s(S_T + 3)}")
        A(f"s_and_b32 {s(S_T + 3)}, {s(S_T)}, 1")
        A(f"s_lshl_b32 {s(S_T + 3)}, {s(S_T + 3)}, 7")
        A(f"s_add_u32 {s(S_PUB)}, {s(S_PUB)}, {s(S_T + 3)}")
        A(f"s_and_b32 {s(S_T + 3)}, {s(S_T)}, 2")
        A(f"s_lshl_b32 {s(S_T + 3)}, {s(S_T + 3)}, 5")
        A(f"s_add_u32 {s(S_PUB)}, {s(S_PUB)}, {s(S_T + 3)}")
        if np_ == 5:
            A(f"s_cmp_eq_u32 {s(S_RED)}, 0")
            A(f"s_cselect_b32 {s(S_PUB)}, {OOR:#x}, {s(S_PUB)}")
        for k in range(4):
            A(f"s_mov_b32 {s(S_RA + k)}, {OOR:#x}")
        A(f"s_mov_b32 {s(S_MRA)}, {OOR:#x}")
        A(f"s_lshr_b32 {s(S_T)}, {s(S_H)}, 1")
        A(f"s_lshl_b32 {s(S_T)}, {s(S_T)}, 9")
        A(f"s_and_b32 {s(S_T + 1)}, {s(S_H)}, 1")
        A(f"s_lshl_b32 {s(S_T + 2)}, {s(S_T + 1)}, 1")
        A(f"s_lshl_b32 {s(S_FM)}, 0x330, {s(S_T + 2)}")
        A(f"s_mov_b32 {s(S_FM + 1)}, 0")
        A(f"s_add_u32 {s(S_FA)}, {s(S_T)}, {F_A + 2 * 8192:#x}")
        A(f"s_lshl_b32 {s(S_T + 1)}, {s(S_T + 1)}, 2")
        A(f"s_add_u32 {s(S_T + 1)}, {s(S_T + 1)}, {s(S_W)}")
        A(f"s_lshl_b32 {s(S_T + 1)}, {s(S_T + 1)}, 4")
        A(f"s_add_u32 {s(S_FLG)}, {s(S_T)}, {s(S_T + 1)}")
        A(f"s_add_u32 {s(S_FLG)}, {s(S_FLG)}, {F_A + 12 * 16 - 8192:#x}")
        wait_registered(A)
        if sync:
            for k in (2, 1):
                A(f"s_sub_u32 {s(S_T)}, {s(S_FA)}, {8192 * k}")
                poll_mask(A, V_POLL, s(S_T), s(S_FM, 2), S_T + 1)
        for k in range(12):
            A(f"v_min_u32 {v(V_M + k)}, -2, {v(32 + k)}")
        if DIAG == 2:
            A(f"s_mov_b32 {s(S_TM + 12)}, 0")
            A(f"s_mov_b32 {s(S_TM + 14)}, 0")
        w0 = 0 if np_ == 5 else 2
        A(f"s_cmp_ge_u32 {s(S_MODE)}, 32")
        if REC_LIMIT < 32:
            A(f"s_cmp_eq_u32 {s(S_MODE)}, -1")
        A(f"s_cbranch_scc0 L_slowmode{np_}")
        for fast in (True, False):
            if not fast:
                A.label(f"L_slowmode{np_}")
            A(f"s_cmp_eq_u32 {s(S_W)}, {w0}")
            A(f"s_cbranch_scc0 L_odd{np_}{fast}")
            loop(A, w0, fast, sync, regb, ldsb)
            A.label(f"L_odd{np_}{fast}")
            loop(A, w0 + 1, fast, sync, regb, ldsb)


def register(A):
    A(f"s_getreg_b32 {s(S_T)}, hwreg(HW_REG_XCC_ID)")
    A(f"s_and_b32 {s(S_T)}, {s(S_T)}, 15")
    A(f"s_cmp_eq_u32 {s(S_W)}, 0")
    A("s_cbranch_scc0 L_regwait")
    A("s_mov_b64 exec, 1")
    A("v_mov_b32 v2, 0")
    A("v_mov_b32 v3, 1")
    A(f"s_mov_b32 {s(S_T + 1)}, 64")
    A(f"s_cmp_eq_u32 {s(S_T)}, 0")
    A("s_cbranch_scc0 L_regbulk")
    A(f"buffer_atomic_add v3, v2, {SDBG}, 0 offen sc0 sc1")
    A(f"v_readfirstlane_b32 {s(S_T + 1)}, v3")
    A(f"s_cmp_lt_u32 {s(S_T + 1)}, {REC_LIMIT}")
    A("s_cbranch_scc1 L_regdone")
    A.label("L_regbulk")
    A("v_mov_b32 v3, 1")
    A(f"buffer_atomic_add v3, v2, {SDBG}, 0 offen offset:128 sc0 sc1")
    A(f"v_readfirstlane_b32 {s(S_T + 1)}, v3")
    A(f"s_sub_u32 {s(S_T + 2)}, 255, {s(S_T + 1)}")
    A(f"s_add_u32 {s(S_T + 1)}, {s(S_T + 1)}, 32")
    A(f"s_cmp_lt_u32 {s(S_T + 1)}, 256")
    A(f"s_cselect_b32 {s(S_T + 1)}, {s(S_T + 1)}, {s(S_T + 2)}")
    A.label("L_regdone")
    A(f"v_mov_b32 v3, {s(S_T + 1)}")
    A("ds_write_b32 v2, v3")
    A("s_mov_b64 exec, -1")
    A("s_waitcnt lgkmcnt(0)")
    A.label("L_regwait")
    A("s_barrier")
    A("v_mov_b32 v2, 0")
    A("ds_read_b32 v3, v2")
    A(f"v_readfirstlane_b32 {s(S_H)}, v3")
    A("s_barrier")
    A(f"s_cmp_lt_u32 {s(S_H)}, 32")
    A("s_cbranch_scc1 L_rec")
    A(f"s_sub_u32 {s(S_IDX)}, {s(S_H)}, 32")


def init_ws(A):
    A(f"s_lshl_b32 {s(S_T)}, s2, 12")
    A(f"s_lshl_b32 {s(S_T + 1)}, {s(S_W)}, 10")
    A(f"s_add_u32 {s(S_T)}, {s(S_T)}, {s(S_T + 1)}")
    A(f"s_add_u32 {s(S_T + 1)}, {s(S_T)}, {FLAGS_END:#x}")
    for k in range(4):
        A(f"v_mov_b32 {v(4 + k)}, 0")
        A(f"v_mov_b32 {v(8 + k)}, -1")
    A(f"buffer_store_dwordx4 v[4:7], {v(V_L16)}, {WS}, {s(S_T)} offen sc1")
    A(f"buffer_store_dwordx4 v[8:11], {v(V_L16)}, {WS}, {s(S_T + 1)} offen sc1")
    A("s_waitcnt vmcnt(0)")
    A("s_barrier")


def role_rec_standalone(A):
    if DIAG == 2:
        A(f"s_memtime {s(S_TM, 2)}")
        A(f"s_memrealtime {s(S_TM + 10, 2)}")
    init_ws(A)
    register(A)
    A("s_branch L_exit")
    A.label("L_rec")
    role_rec(A, False)
```

```python
import sys, re
from common import *
import bulk

HEADER = open("cdna_kernels/" + NAME + ".s.ref").read().split("; Override launch")[0]


def kernel(kname, nwg, role, tag):
    A = Asm()
    A(f"s_cmp_ge_u32 s2, {nwg}")
    A("s_cbranch_scc1 L_exit")
    entry(A)
    A(f"s_mov_b32 {s(S_IDX)}, s2")
    role(A)
    A.label("L_fail")
    A.label("L_exit")
    A("s_endpgm")
    body = A.finish()
    body = re.sub(r"\bL_", f"L{tag}_", body)
    return f".globl {kname}\n.p2align 8\n.type {kname},@function\n{kname}:\n{body}"


def multi(roles):
    o = HEADER
    for n, nwg, fn in roles:
        o += f"; @launch kernel={n}_kernel grid=({nwg},1,1) block=(256,1,1) lds=163840\n"
    o += '.amdgcn_target "amdgcn-amd-amdhsa--gfx950"\n.text\n'
    for i, (n, nwg, fn) in enumerate(roles):
        o += kernel(n + "_kernel", nwg, fn, chr(97 + i))
    o += '.section .rodata,"a"\n'
    for n, nwg, fn in roles:
        o += ".p2align 6\n" + descriptor(n + "_kernel")
    return o


ROLES = {
    "ln1": (32, lambda A: bulk.role_ln1(A, False)),
    "qkv": (192, lambda A: bulk.role_qkv(A, False)),
}
try:
    import rec
    ROLES["rec"] = (256, lambda A: rec.role_rec_standalone(A))
except ImportError:
    pass
for k in ("bc", "r1", "dd", "ee", "r2"):
    if hasattr(bulk, "role_" + k):
        ROLES[k] = (getattr(bulk, "NWG_" + k.upper()), (lambda f: lambda A: f(A, False))(getattr(bulk, "role_" + k)))

if __name__ == "__main__":
    names = sys.argv[2].split(",")
    open(sys.argv[1], "w").write(multi([(n,) + ROLES[n] for n in names]))
```

```python
from common import *

WREG = 224
MF = "v_mfma_f32_16x16x32_bf16"


def load_weights(A, nchunk, dmas, reads, slot_bytes, nslots, s_base, s_tmp, pol="nt"):
    issued = []

    def issue(c):
        for (sr, vo, so, rel) in dmas(c):
            A(f"s_add_u32 m0, {s(s_base)}, {(c % nslots) * slot_bytes + rel:#x}")
            A(f"s_mov_b32 {s(s_tmp)}, {so:#x}")
            A(f"buffer_load_dwordx4 {v(vo)}, {sr}, {s(s_tmp)} offen {pol} lds")
            issued.append(c)

    for c in range(min(nslots, nchunk)):
        issue(c)
    for c in range(nchunk):
        after = sum(1 for x in issued if x > c)
        assert after <= 63
        A(f"s_waitcnt vmcnt({after})")
        for (dst, va, rel) in reads(c):
            A(f"ds_read_b64_tr_b16 {r(dst, 2)}, {v(va)} offset:{(c % nslots) * slot_bytes + rel}")
        if c + nslots < nchunk:
            A("s_waitcnt lgkmcnt(0)")
            issue(c + nslots)
    A("s_waitcnt lgkmcnt(0)")


def tr_addr(A, dst, t0, t1, row_g, row_r, rowbytes, colbytes, s_base):
    A(f"v_lshrrev_b32 {v(t0)}, 4, {v(V_LANE)}")
    A(f"v_mul_u32_u24 {v(t0)}, {row_g * rowbytes}, {v(t0)}")
    A(f"v_bfe_u32 {v(t1)}, {v(V_LANE)}, 2, 2")
    A(f"v_mul_u32_u24 {v(t1)}, {row_r * rowbytes}, {v(t1)}")
    A(f"v_add_u32 {v(t0)}, {v(t0)}, {v(t1)}")
    A(f"v_and_b32 {v(t1)}, 3, {v(V_LANE)}")
    A(f"v_mul_u32_u24 {v(t1)}, {colbytes}, {v(t1)}")
    A(f"v_add3_u32 {v(dst)}, {v(t0)}, {v(t1)}, {s(s_base)}")


def role_ln1(A, sync):
    X, D, ONES, ACC = 16, 96, 4, 8
    su = S_T
    srd(A, S_B, KA_X, SZ_X)
    A(f"s_lshl_b32 {s(su)}, {s(S_IDX)}, 2")
    A(f"s_add_u32 {s(su)}, {s(su)}, {s(S_W)}")
    A(f"s_mul_i32 {s(su + 1)}, {s(su)}, {16 * 1152}")
    A(f"v_and_b32 v2, 15, {v(V_LANE)}")
    A(f"v_mul_u32_u24 v2, 1152, v2")
    A(f"v_and_b32 v3, 48, {v(V_LANE)}")
    A(f"v_add_u32 v2, v2, v3")
    A("s_waitcnt lgkmcnt(0)")
    for c in range(18):
        A(f"buffer_load_dwordx4 {v(X + 4 * c, 4)}, v2, {SB}, {s(su + 1)} offen offset:{64 * c}")
    for i in range(4):
        A(f"v_mov_b32 {v(ONES + i)}, 0x3f803f80")
    for c in range(18):
        A(f"{MF} {v(ACC, 4)}, {v(ONES, 4)}, {v(X + 4 * c, 4)}, {v(ACC, 4) if c else 0}")
    MEAN, MB = 12, 13
    A(f"v_mul_f32 {v(MEAN)}, {1.0 / 576:.9e}, {v(ACC)}".replace(f"{1.0 / 576:.9e}", f"{f32(1.0 / 576):#x}"))
    A(f"v_mov_b32 {v(MB)}, {v(MEAN)}")
    bf16_round(A, MB)
    for i in range(4):
        A(f"v_mov_b32 {v(ONES + i)}, 0")
    for i in range(72):
        lo, hi = D + 2 * i, D + 2 * i + 1
        A(f"v_lshlrev_b32 {v(lo)}, 16, {v(X + i)}")
        A(f"v_and_b32 {v(hi)}, 0xffff0000, {v(X + i)}")
        A(f"v_sub_f32 v2, {v(lo)}, {v(MEAN)}")
        A(f"v_sub_f32 v3, {v(hi)}, {v(MEAN)}")
        A(f"v_sub_f32 {v(lo)}, {v(lo)}, {v(MB)}")
        A(f"v_sub_f32 {v(hi)}, {v(hi)}, {v(MB)}")
        A(f"v_fmac_f32 {v(ONES + (2 * i) % 4)}, v2, v2")
        A(f"v_fmac_f32 {v(ONES + (2 * i + 1) % 4)}, v3, v3")
    A(f"v_add_f32 {v(ONES)}, {v(ONES)}, {v(ONES + 1)}")
    A(f"v_add_f32 {v(ONES + 2)}, {v(ONES + 2)}, {v(ONES + 3)}")
    A(f"v_add_f32 {v(ONES)}, {v(ONES)}, {v(ONES + 2)}")
    xg_reduce(A, "v_add_f32", ONES, 2)
    A(f"v_mul_f32 {v(ONES)}, {f32(1.0 / 576):#x}, {v(ONES)}")
    bf16_round(A, ONES)
    A(f"v_add_f32 {v(ONES)}, {f32(1e-5):#x}, {v(ONES)}")
    bf16_round(A, ONES)
    A(f"v_sqrt_f32 {v(ONES)}, {v(ONES)}")
    bf16_round(A, ONES)
    A(f"v_rcp_f32 {v(ONES)}, {v(ONES)}")
    A(f"s_mul_i32 {s(su + 1)}, {s(su)}, {18 * 1024}")
    A(f"s_add_u32 {s(su + 1)}, {s(su + 1)}, {XH:#x}")
    for c in range(18):
        for j in range(4):
            i = 4 * c + j
            lo, hi = D + 2 * i, D + 2 * i + 1
            A(f"v_cvt_pk_bf16_f32 v2, {v(lo)}, {v(hi)}")
            A(f"v_lshlrev_b32 {v(lo)}, 16, v2")
            A(f"v_and_b32 {v(hi)}, 0xffff0000, v2")
            A(f"v_mul_f32 {v(lo)}, {v(lo)}, {v(ONES)}")
            A(f"v_mul_f32 {v(hi)}, {v(hi)}, {v(ONES)}")
            A(f"v_cvt_pk_bf16_f32 {v(X + i)}, {v(lo)}, {v(hi)}")
        if c and c % 4 == 0:
            A(f"s_add_u32 {s(su + 1)}, {s(su + 1)}, 4096")
        A(f"buffer_store_dwordx4 {v(X + 4 * c, 4)}, {v(V_L16)}, {WS}, {s(su + 1)} offen offset:{1024 * (c % 4)} sc1")
    if sync:
        wait_registered(A)
        A(f"s_lshl_b32 {s(su)}, {s(S_IDX)}, 2")
        A(f"s_add_u32 {s(su)}, {s(su)}, {s(S_W)}")
        lane0_off(A, 2, "0")
        A(f"v_mov_b32 v3, 1")
        A(f"s_lshl_b32 {s(su + 1)}, {s(su)}, 2")
        A(f"s_add_u32 {s(su + 1)}, {s(su + 1)}, {F_LN:#x}")
        A("s_waitcnt vmcnt(0)")
        A(f"buffer_store_dword v3, v2, {WS}, {s(su + 1)} offen sc1")


def f32(x):
    import struct
    return struct.unpack("<I", struct.pack("<f", x))[0]


class Gemm:
    S_IT, S_NX, S_LD, S_FLG, S_FPREV, S_POLL, S_OUT, S_SPIN = 36, 37, 38, 42, 43, 44, 45, 49
    V_RD, V_WR, V_LDOFF, V_FLAG0, V_ONE, V_POLLOFF, V_POLL = 2, 3, 4, 5, 6, 7, 8

    def __init__(self, A, name, sync, step, end, nload, stage_reg):
        self.A, self.name, self.sync = A, name, sync
        self.step, self.end, self.nload, self.stage = step, end, nload, stage_reg

    def set_load_base(self, s_it):
        raise NotImplementedError

    def set_poll_base(self, s_it):
        raise NotImplementedError

    def set_out_base(self):
        raise NotImplementedError

    def extra_loads(self):
        return []

    def loads(self):
        out = []
        for i in range(self.nload):
            out.append(f"buffer_load_dwordx4 {v(self.stage + 4 * i, 4)}, {v(self.V_LDOFF)}, {WS}, "
                       f"{s(self.S_LD + i // 4)} offen offset:{1024 * (i % 4)} sc1")
        return self.extra_loads() + out

    def writes(self):
        return [f"ds_write_b128 {v(self.V_WR)}, {v(self.stage + 4 * i, 4)} offset:{1024 * i}"
                for i in range(self.nload)]

    def post_loads(self):
        return []

    def ld_bases(self):
        A = self.A
        for k in range(1, (self.nload + 3) // 4):
            A(f"s_add_u32 {s(self.S_LD + k)}, {s(self.S_LD)}, {4096 * k}")

    def issue_poll(self):
        if not self.sync:
            return []
        A = self.A

        def f():
            A(f"s_add_u32 {s(S_T)}, {s(self.S_NX)}, {self.step}")
            A(f"s_min_u32 {s(S_T)}, {s(S_T)}, {self.end - 1}")
            self.set_poll_base(S_T)
            A(f"buffer_load_dword {v(self.V_POLL)}, {v(self.V_POLLOFF)}, {WS}, {s(self.S_POLL)} offen sc1")
        return [f]

    def flag_store(self, sreg):
        return f"buffer_store_dword {v(self.V_ONE)}, {v(self.V_FLAG0)}, {WS}, {s(sreg)} offen sc1"

    def finish_stage(self):
        A = self.A
        A("s_waitcnt lgkmcnt(0)")
        A("s_barrier")
        A(f"v_xor_b32 {v(self.V_RD)}, 0x10000, {v(self.V_RD)}")
        A(f"v_xor_b32 {v(self.V_WR)}, 0x10000, {v(self.V_WR)}")

    def blocking_fetch(self):
        A = self.A
        if self.sync:
            self.set_poll_base(self.S_NX)
            poll_block(A, self.V_POLL, self.V_POLLOFF, s(self.S_POLL), True, self.S_SPIN)
        self.set_load_base(self.S_NX)
        self.ld_bases()
        for x in self.loads():
            A(x)
        for f in self.issue_poll():
            f()
        for x in self.writes():
            A(x)

    def emit(self, flag_at, write_at):
        A, n = self.A, self.name
        A(f"v_mov_b32 {v(self.V_ONE)}, 1")
        lane0_off(A, self.V_FLAG0, "0")
        A(f"s_mov_b32 {s(self.S_FPREV)}, {OOR:#x}")
        A(f"s_mov_b32 {s(self.S_NX)}, {s(self.S_IT)}")
        self.blocking_fetch()
        self.finish_stage()
        A.label(f"L_{n}_top")
        for x in self.post_loads():
            x() if callable(x) else A(x)
        self.set_out_base()
        A(f"s_add_u32 {s(self.S_NX)}, {s(self.S_IT)}, {self.step}")
        A(f"s_cmp_ge_u32 {s(self.S_NX)}, {self.end}")
        A(f"s_cbranch_scc1 L_{n}_nopf")
        if self.sync:
            A(f"v_cmp_eq_u32 vcc, 0, {v(self.V_POLL)}")
            A(f"s_cbranch_vccnz L_{n}_nopf")
        self.set_load_base(self.S_NX)
        self.ld_bases()
        lds = self.loads()
        for x in lds:
            A(x)
        main, fill = self.compute()
        if self.sync:
            fill.setdefault(flag_at, []).extend([f"s_waitcnt vmcnt({len(lds)})", self.flag_store(self.S_FPREV)])
            fill[flag_at].extend(self.issue_poll())
        spread(fill, self.writes(), write_at, 2)
        weave(A, main, fill)
        for x in self.epilogue():
            A(x)
        A(f"s_mov_b32 {s(self.S_FPREV)}, {s(self.S_FLG)}")
        A(f"s_mov_b32 {s(self.S_IT)}, {s(self.S_NX)}")
        self.finish_stage()
        A(f"s_branch L_{n}_top")
        A.label(f"L_{n}_nopf")
        main, fill = self.compute()
        if self.sync:
            fill.setdefault(flag_at, []).extend(["s_waitcnt vmcnt(0)", self.flag_store(self.S_FPREV)])
        weave(A, main, fill)
        for x in self.epilogue():
            A(x)
        if self.sync:
            A("s_waitcnt vmcnt(0)")
            A(self.flag_store(self.S_FLG))
        A(f"s_mov_b32 {s(self.S_FPREV)}, {OOR:#x}")
        A(f"s_cmp_ge_u32 {s(self.S_NX)}, {self.end}")
        A(f"s_cbranch_scc1 L_{n}_done")
        self.blocking_fetch()
        A(f"s_mov_b32 {s(self.S_IT)}, {s(self.S_NX)}")
        self.finish_stage()
        A(f"s_branch L_{n}_top")
        A.label(f"L_{n}_done")


class QKV(Gemm):
    ACC, BF, STG, OUT, V_OUT = 12, 44, 76, 112, 9
    S_MAT, S_HP, S_OB = 50, 51, 52

    def __init__(self, A, name, sync, isv):
        super().__init__(A, name, sync, 4, 64, 9, self.STG)
        self.isv = isv

    def set_load_base(self, s_it):
        self.A(f"s_mul_i32 {s(self.S_LD)}, {s(s_it)}, 36864")
        self.A(f"s_add_u32 {s(self.S_LD)}, {s(self.S_LD)}, {XH:#x}")

    def set_poll_base(self, s_it):
        self.A(f"s_lshl_b32 {s(self.S_POLL)}, {s(s_it)}, 3")

    def set_out_base(self):
        A = self.A
        A(f"s_lshl_b32 {s(self.S_OUT)}, {s(self.S_IT)}, 18")
        A(f"s_add_u32 {s(self.S_OUT)}, {s(self.S_OUT)}, {s(self.S_OB)}")
        A(f"s_add_u32 {s(self.S_OUT + 1)}, {s(self.S_OUT)}, 4096")
        A(f"s_lshl_b32 {s(self.S_FLG)}, {s(self.S_IT)}, 13")
        A(f"s_add_u32 {s(self.S_FLG)}, {s(self.S_FLG)}, {s(self.S_OB + 1)}")

    def compute(self):
        main, fill = [], {}
        bf = lambda c, u: self.BF + ((c % 4) * 2 + u) * 4
        rd = lambda c, u: f"ds_read_b128 {v(bf(c, u), 4)}, {v(self.V_RD)} offset:{(u * 18 + c) * 1024}"
        pre = [rd(c, u) for c in range(3) for u in range(2)]
        for x in pre:
            self.A(x)
        for c in range(18):
            for u in range(2):
                for t in range(4):
                    acc = v(self.ACC + (u * 4 + t) * 4, 4)
                    w = r(WREG + (c * 4 + t) * 4, 4)
                    b = v(bf(c, u), 4)
                    ab = f"{b}, {w}" if self.isv else f"{w}, {b}"
                    main.append(f"{MF} {acc}, {ab}, {acc if c else 0}")
            if c + 3 < 18:
                fill.setdefault(8 * c, []).append(rd(c + 3, 0))
                fill.setdefault(8 * c + 1, []).append(rd(c + 3, 1))
        return main, fill

    def epilogue(self):
        o = []
        acc = lambda u, t, k: v(self.ACC + (u * 4 + t) * 4 + k)
        if self.isv:
            for t in range(4):
                d = self.OUT + 4 * t
                o += [f"v_cvt_pk_bf16_f32 {v(d)}, {acc(0, t, 0)}, {acc(0, t, 1)}",
                      f"v_cvt_pk_bf16_f32 {v(d + 1)}, {acc(1, t, 0)}, {acc(1, t, 1)}",
                      f"v_cvt_pk_bf16_f32 {v(d + 2)}, {acc(0, t, 2)}, {acc(0, t, 3)}",
                      f"v_cvt_pk_bf16_f32 {v(d + 3)}, {acc(1, t, 2)}, {acc(1, t, 3)}",
                      f"buffer_store_dwordx4 {v(d, 4)}, {v(self.V_OUT)}, {WS}, {s(self.S_OUT)} offen offset:{1024 * t} sc1"]
        else:
            for u in range(2):
                for cc in range(2):
                    d = self.OUT + 4 * (u * 2 + cc)
                    o += [f"v_cvt_pk_bf16_f32 {v(d)}, {acc(u, 2 * cc, 0)}, {acc(u, 2 * cc, 1)}",
                          f"v_cvt_pk_bf16_f32 {v(d + 1)}, {acc(u, 2 * cc, 2)}, {acc(u, 2 * cc, 3)}",
                          f"v_cvt_pk_bf16_f32 {v(d + 2)}, {acc(u, 2 * cc + 1, 0)}, {acc(u, 2 * cc + 1, 1)}",
                          f"v_cvt_pk_bf16_f32 {v(d + 3)}, {acc(u, 2 * cc + 1, 2)}, {acc(u, 2 * cc + 1, 3)}",
                          f"buffer_store_dwordx4 {v(d, 4)}, {v(self.V_OUT)}, {WS}, {s(self.S_OUT + u)} offen offset:{1024 * cc} sc1"]
        return o

    def body(self):
        A = self.A
        sb, st = S_T, S_T + 1
        A(f"s_lshl_b32 {s(st)}, {s(self.S_HP)}, 9")
        A(f"s_lshl_b32 {s(st + 1)}, {s(S_W)}, 7")
        A(f"s_add_u32 {s(st)}, {s(st)}, {s(st + 1)}")
        A(f"v_lshrrev_b32 v10, 3, {v(V_LANE)}")
        A(f"v_lshlrev_b32 v10, 13, v10")
        A(f"v_and_b32 v11, 7, {v(V_LANE)}")
        A(f"v_lshlrev_b32 v11, 4, v11")
        A(f"v_add3_u32 v10, v10, v11, {s(st)}")
        A(f"s_mul_i32 {s(sb)}, {s(S_W)}, 36864")
        tr_addr(A, 11, 12, 13, 8, 1, 128, 8 if self.isv else 16, sb)
        dmas = lambda c: [(SA, 10, (32 * c + 8 * i) * 8192, 1024 * i) for i in range(4)]

        def reads(c):
            o = []
            for t in range(4):
                col = 32 * t if self.isv else 64 * (t // 2) + 8 * (t % 2)
                for rd in range(2):
                    o.append((WREG + (c * 4 + t) * 4 + 2 * rd, 11, 512 * rd + col))
            return o
        load_weights(A, 18, dmas, reads, 4096, 9, sb, st)
        if self.sync:
            wait_registered(A)
        A("s_barrier")
        A(f"v_or_b32 {v(self.V_RD)}, 0x10000, {v(V_L16)}")
        A(f"s_mul_i32 {s(st)}, {s(S_W)}, 9216")
        A(f"v_add_u32 {v(self.V_WR)}, {s(st)}, {v(V_L16)}")
        A(f"v_mov_b32 {v(self.V_LDOFF)}, {v(self.V_WR)}")
        A(f"v_and_b32 {v(self.V_POLLOFF)}, 1, {v(V_LANE)}")
        A(f"v_lshlrev_b32 {v(self.V_POLLOFF)}, 2, {v(self.V_POLLOFF)}")
        A(f"s_lshr_b32 {s(st)}, {s(S_W)}, 1")
        A(f"s_lshl_b32 {s(st + 1)}, {s(self.S_HP)}, 1")
        A(f"s_add_u32 {s(st)}, {s(st)}, {s(st + 1)}")
        A(f"s_lshl_b32 {s(st)}, {s(st)}, 13")
        A(f"s_and_b32 {s(st + 1)}, {s(S_W)}, 1")
        A(f"s_lshl_b32 {s(st + 1)}, {s(st + 1)}, {12 if self.isv else 11}")
        A(f"s_add_u32 {s(st)}, {s(st)}, {s(st + 1)}")
        A(f"v_add_u32 {v(self.V_OUT)}, {s(st)}, {v(V_L16)}")
        A(f"s_add_u32 {s(self.S_OB)}, {s(self.S_MAT)}, 1")
        A(f"s_lshl_b32 {s(self.S_OB)}, {s(self.S_OB)}, 24")
        A(f"s_lshl_b32 {s(st)}, {s(self.S_HP)}, 9")
        A(f"s_lshl_b32 {s(st + 1)}, {s(self.S_MAT)}, 6")
        A(f"s_add_u32 {s(st)}, {s(st)}, {s(st + 1)}")
        A(f"s_lshl_b32 {s(st + 1)}, {s(S_W)}, 4")
        A(f"s_add_u32 {s(st)}, {s(st)}, {s(st + 1)}")
        A(f"s_add_u32 {s(self.S_OB + 1)}, {s(st)}, {F_A:#x}")
        self.emit(flag_at=40, write_at=100)


def role_qkv(A, sync):
    A(f"s_and_b32 {s(Gemm.S_IT)}, {s(S_IDX)}, 3")
    A(f"s_bfe_u32 {s(QKV.S_HP)}, {s(S_IDX)}, {2 | (4 << 16):#x}")
    A(f"s_lshr_b32 {s(QKV.S_MAT)}, {s(S_IDX)}, 6")
    A(f"s_cmp_eq_u32 {s(QKV.S_MAT)}, 2")
    A("s_cbranch_scc1 L_qkv_v")
    srd(A, S_A, KA_WQ, SZ_W)
    A(f"s_load_dwordx2 {s(S_T, 2)}, s[0:1], {KA_WK}")
    A("s_waitcnt lgkmcnt(0)")
    A(f"s_cmp_eq_u32 {s(QKV.S_MAT)}, 1")
    A(f"s_cselect_b32 {s(S_A)}, {s(S_T)}, {s(S_A)}")
    A(f"s_cselect_b32 {s(S_A + 1)}, {s(S_T + 1)}, {s(S_A + 1)}")
    QKV(A, "qk", sync, False).body()
    A("s_branch L_qkv_end")
    A.label("L_qkv_v")
    srd(A, S_A, KA_WV, SZ_W)
    A("s_waitcnt lgkmcnt(0)")
    QKV(A, "vv", sync, True).body()
    A.label("L_qkv_end")


def gemm_addr(A, g, per_wave):
    st = S_T + 1
    A(f"v_or_b32 {v(g.V_RD)}, 0x10000, {v(V_L16)}")
    A(f"s_mul_i32 {s(st)}, {s(S_W)}, {per_wave * 1024}")
    A(f"v_add_u32 {v(g.V_WR)}, {s(st)}, {v(V_L16)}")
    A(f"v_mov_b32 {v(g.V_LDOFF)}, {v(g.V_WR)}")


def cvt2(d, x):
    return f"v_cvt_pk_bf16_f32 {v(d)}, {v(x)}, {v(x + 1)}"


NWG_BC = 64
BC_REP = 4


class BC(Gemm):
    V_OUT, V_OUT2, V_KM, BIAS = 9, 10, 11, 12
    Q, K, KMR, V, VMR, ACC, OF = 20, 36, 68, 84, 116, 132, 204
    S_HP, S_HB, S_Q, S_K, S_V, S_KM, S_CS = 50, 51, 53, 54, 56, 58, 60

    def __init__(self, A, sync):
        super().__init__(A, "bc", sync, BC_REP, 64, 0, 0)

    def set_load_base(self, s_it):
        A = self.A
        A(f"s_lshl_b32 {s(self.S_KM)}, {s(s_it)}, 5")
        A(f"s_add_u32 {s(self.S_KM)}, {s(self.S_KM)}, {s(self.S_HB)}")
        A(f"s_lshl_b32 {s(self.S_V)}, {s(self.S_KM)}, 13")
        A(f"s_lshl_b32 {s(self.S_KM)}, {s(self.S_KM)}, 12")
        A(f"s_add_u32 {s(self.S_K)}, {s(self.S_V)}, {KB:#x}")
        A(f"s_add_u32 {s(self.S_K + 1)}, {s(self.S_V)}, {KB + 4096:#x}")
        A(f"s_add_u32 {s(self.S_Q)}, {s(self.S_V)}, {s(self.S_HB + 1)}")
        A(f"s_add_u32 {s(self.S_V + 1)}, {s(self.S_V)}, {VB + 4096:#x}")
        A(f"s_add_u32 {s(self.S_V)}, {s(self.S_V)}, {VB:#x}")
        A(f"s_add_u32 {s(self.S_KM + 1)}, {s(self.S_KM)}, {VM:#x}")
        A(f"s_add_u32 {s(self.S_KM)}, {s(self.S_KM)}, {KM:#x}")

    def ld_bases(self):
        pass

    def loads(self):
        ld = lambda d, vo, so, i: f"buffer_load_dwordx4 {v(d, 4)}, {v(vo)}, {WS}, {s(so)} offen offset:{1024 * i} sc1"
        o = []
        for c in range(4):
            o += [ld(self.Q + 4 * c, V_L16, self.S_Q, c), ld(self.K + 4 * c, V_L16, self.S_K, c),
                  ld(self.K + 16 + 4 * c, V_L16, self.S_K + 1, c), ld(self.KMR + 4 * c, self.V_KM, self.S_KM, c)]
        for t in range(8):
            o.append(ld(self.V + 4 * t, V_L16, self.S_V + t // 4, t % 4))
            if t % 2 == 0:
                o.append(ld(self.VMR + 2 * t, V_L16, self.S_KM + 1, t // 2))
        return o

    def writes(self):
        return []

    def finish_stage(self):
        self.A(f"v_xor_b32 {v(self.V_RD)}, 0x10000, {v(self.V_RD)}")
        self.A(f"v_xor_b32 {v(self.V_WR)}, 0x10000, {v(self.V_WR)}")

    def set_poll_base(self, s_it):
        A = self.A
        A(f"s_lshl_b32 {s(self.S_POLL)}, {s(s_it)}, 13")
        A(f"s_lshl_b32 {s(S_T + 1)}, {s(self.S_HP)}, 9")
        A(f"s_add_u32 {s(self.S_POLL)}, {s(self.S_POLL)}, {s(S_T + 1)}")
        A(f"s_add_u32 {s(self.S_POLL)}, {s(self.S_POLL)}, {F_A:#x}")

    def set_out_base(self):
        A = self.A
        A(f"s_lshl_b32 {s(self.S_OUT)}, {s(self.S_IT)}, 5")
        A(f"s_add_u32 {s(self.S_OUT)}, {s(self.S_OUT)}, {s(self.S_HP)}")
        A(f"s_mul_i32 {s(self.S_OUT)}, {s(self.S_OUT)}, 18432")
        A(f"s_add_u32 {s(self.S_OUT)}, {s(self.S_OUT)}, {P1:#x}")
        A(f"s_add_u32 {s(self.S_OUT + 1)}, {s(self.S_OUT)}, {16 * 18432}")
        A(f"s_lshl_b32 {s(self.S_FLG)}, {s(self.S_IT)}, 4")
        A(f"s_add_u32 {s(self.S_FLG)}, {s(self.S_FLG)}, {s(self.S_HP)}")
        A(f"s_lshl_b32 {s(self.S_FLG)}, {s(self.S_FLG)}, 2")
        A(f"s_add_u32 {s(self.S_FLG)}, {s(self.S_FLG)}, {s(S_W)}")
        A(f"s_lshl_b32 {s(self.S_FLG)}, {s(self.S_FLG)}, 2")
        A(f"s_add_u32 {s(self.S_FLG)}, {s(self.S_FLG)}, {F_BC:#x}")

    def post_loads(self):
        a = self.ACC
        S, OT, L, PT, PM0, PM1, ONE, HALF, T = a, a + 12, a + 44, a + 48, a + 52, a + 56, a + 60, a + 64, a + 68
        con = [f"v_mov_b32 {v(ONE + i)}, 0x3f803f80" for i in range(4)] + \
              [f"v_mov_b32 {v(HALF + i)}, 0x3f003f00" for i in range(4)] + \
              [f"v_mov_b32 {v(x)}, 0" for x in (PM0 + 1, PM0 + 3, PM1, PM1 + 2)]
        o = []
        for c in range(4):
            q = v(self.Q + 4 * c, 4)
            o += [f"{MF} {v(S, 4)}, {v(self.K + 4 * c, 4)}, {q}, {v(S, 4) if c else v(self.BIAS, 4)}", con.pop(),
                  f"{MF} {v(S + 4, 4)}, {v(self.K + 16 + 4 * c, 4)}, {q}, {v(S + 4, 4) if c else v(self.BIAS + 4, 4)}", con.pop(),
                  f"{MF} {v(S + 8, 4)}, {v(self.KMR + 4 * c, 4)}, {q}, {v(S + 8, 4) if c else 0}", con.pop()]
        o += [f"v_max3_f32 {v(T)}, {v(S)}, {v(S + 1)}, {v(S + 2)}",
              f"v_max3_f32 {v(T + 1)}, {v(S + 3)}, {v(S + 4)}, {v(S + 5)}",
              f"v_max3_f32 {v(T)}, {v(T)}, {v(S + 6)}, {v(S + 7)}",
              f"v_max3_f32 {v(T + 1)}, {v(T + 1)}, {v(S + 8)}, {v(S + 9)}",
              f"v_max3_f32 {v(T)}, {v(T)}, {v(S + 10)}, {v(S + 11)}",
              f"v_max_f32 {v(T)}, {v(T)}, {v(T + 1)}",
              lambda: xg_reduce(self.A, "v_max_f32", T, T + 1),
              f"v_mul_f32 {v(T)}, {s(self.S_CS)}, {v(T)}"]
        for k in range(0, 12, 2):
            o.append(f"v_pk_fma_f32 {v(S + k, 2)}, {v(S + k, 2)}, {s(self.S_CS, 2)}, {v(T, 2)} "
                     "op_sel_hi:[1,1,0] neg_lo:[0,0,1] neg_hi:[0,0,1]")
        o += [f"v_exp_f32 {v(S + k)}, {v(S + k)}" for k in range(12)]
        o += [cvt2(PM0, S + 8), cvt2(PT, S), cvt2(PT + 1, S + 4), cvt2(PT + 2, S + 2), cvt2(PM0 + 2, S + 10),
              cvt2(PT + 3, S + 6), cvt2(PM1 + 1, S + 8), cvt2(PM1 + 3, S + 10)]
        o += [f"{MF} {v(L, 4)}, {v(ONE, 4)}, {v(PT, 4)}, 0"]
        o += [f"{MF} {v(OT + 4 * t, 4)}, {v(self.V + 4 * t, 4)}, {v(PT, 4)}, 0" for t in range(2)]
        o += [f"{MF} {v(L, 4)}, {v(HALF, 4)}, {v(PM0, 4)}, {v(L, 4)}"]
        o += [f"{MF} {v(OT + 4 * t, 4)}, {v(self.V + 4 * t, 4)}, {v(PT, 4)}, 0" for t in range(2, 8)]
        o += [f"v_rcp_f32 {v(T)}, {v(L)}"]
        fin = []
        for t in range(8):
            d = OT + 4 * t
            o.append(f"{MF} {v(d, 4)}, {v(self.VMR + 4 * (t // 2), 4)}, {v((PM0, PM1)[t % 2], 4)}, {v(d, 4)}")
            fin += [f"v_pk_mul_f32 {v(d, 2)}, {v(d, 2)}, {v(T, 2)} op_sel_hi:[1,0]",
                    f"v_pk_mul_f32 {v(d + 2, 2)}, {v(d + 2, 2)}, {v(T, 2)} op_sel_hi:[1,0]",
                    cvt2(OT + 2 * t, d), cvt2(OT + 2 * t + 1, d + 2)]
            if t % 2:
                fin.append(f"ds_write_b128 {v(self.V_WR)}, {v(OT + 2 * t - 2, 4)} offset:{1024 * (t // 2)}")
        return o + fin + ["s_waitcnt lgkmcnt(0)", "s_barrier"]

    def compute(self):
        main, fill = [], {}
        of = lambda i: self.OF + 4 * (i % 5)
        rd = lambda i: f"ds_read_b128 {v(of(i), 4)}, {v(self.V_RD)} offset:{((i % 2) * 8 + i // 2) * 1024}"
        for i in range(4):
            self.A(rd(i))
        for i in range(16):
            kc, u = i // 2, i % 2
            for t in range(9):
                acc = v(self.ACC + (u * 9 + t) * 4, 4)
                main.append(f"{MF} {acc}, {r(WREG + (kc * 9 + t) * 4, 4)}, {v(of(i), 4)}, {acc if kc else 0}")
            if i + 4 < 16:
                fill.setdefault(9 * i, []).append(rd(i + 4))
        return main, fill

    def epilogue(self):
        o = []
        for u in range(2):
            for p in range(4):
                d = self.ACC + (u * 9 + 2 * p) * 4
                o += [cvt2(d + k, d + 2 * k) for k in range(4)]
                o.append(f"buffer_store_dwordx4 {v(d, 4)}, {v(self.V_OUT)}, {WS}, {s(self.S_OUT + u)} offen offset:{1024 * p} sc1")
            d = self.ACC + (u * 9 + 8) * 4
            o += [cvt2(d, d), cvt2(d + 1, d + 2),
                  f"buffer_store_dwordx2 {v(d, 2)}, {v(self.V_OUT2)}, {WS}, {s(self.S_OUT + u)} offen sc1"]
        return o

    def body(self):
        A = self.A
        sb, st = S_T, S_T + 1
        L = v(V_LANE)
        pb, po = S_T + 3, S_T + 4
        A(f"s_mul_i32 {s(pb)}, {s(S_W)}, 9")
        A(f"s_add_u32 {s(pb)}, {s(pb)}, 1")
        A(f"s_lshr_b32 {s(pb)}, {s(pb)}, 1")
        A(f"s_lshr_b32 {s(po)}, {s(S_W)}, 1")
        A(f"s_mul_i32 {s(po)}, {s(po)}, 9")
        A(f"s_add_u32 {s(po)}, {s(po)}, 4")
        A(f"s_mul_i32 {s(st)}, {s(self.S_HP)}, {256 * 1152}")
        A(f"s_lshl_b32 {s(st + 1)}, {s(po)}, 6")
        A(f"s_add_u32 {s(st + 1)}, {s(st + 1)}, {s(st)}")
        A(f"v_lshrrev_b32 v21, 2, {L}")
        A(f"v_mul_u32_u24 v21, 1152, v21")
        A(f"v_and_b32 v22, 3, {L}")
        A(f"v_lshlrev_b32 v22, 4, v22")
        A(f"v_add3_u32 v21, v21, v22, {s(st + 1)}")
        A(f"s_lshl_b32 {s(st + 1)}, {s(pb)}, 6")
        A(f"s_add_u32 {s(st + 1)}, {s(st + 1)}, {s(st)}")
        A(f"v_lshrrev_b32 v20, 4, {L}")
        A(f"v_mul_u32_u24 v20, 1152, v20")
        A(f"v_and_b32 v22, 15, {L}")
        A(f"v_lshlrev_b32 v22, 4, v22")
        A(f"v_add3_u32 v20, v20, v22, {s(st + 1)}")
        A(f"s_mul_i32 {s(sb)}, {s(S_W)}, 40960")
        tr_addr(A, 22, 24, 25, 4, 1, 256, 16, sb)
        tr_addr(A, 23, 24, 25, 4, 1, 64, 16, sb)
        A(f"s_and_b32 {s(st)}, {s(S_W)}, 1")
        A(f"s_lshl_b32 {s(st)}, {s(st)}, 3")
        A(f"v_add_u32 v23, {s(st)}, v23")
        A(f"s_lshl_b32 {s(pb)}, {s(pb)}, 10")
        A(f"v_add_u32 {v(self.V_OUT)}, {s(pb)}, {v(V_L16)}")
        A(f"s_lshl_b32 {s(po)}, {s(po)}, 10")
        A(f"s_add_u32 {s(po)}, {s(po)}, {s(st)}")
        A(f"v_add_u32 {v(self.V_OUT2)}, {s(po)}, {v(V_L16)}")
        dmas = lambda c: [(SA, 20, (32 * c + 4 * i) * 1152, 1024 * i) for i in range(8)] + \
                         [(SA, 21, (32 * c + 16 * i) * 1152, 8192 + 1024 * i) for i in range(2)]

        def reads(c):
            o = []
            for t in range(9):
                for rd in range(2):
                    if t < 8:
                        o.append((WREG + (c * 9 + t) * 4 + 2 * rd, 22, 4096 * rd + 64 * (t // 2) + 8 * (t % 2)))
                    else:
                        o.append((WREG + (c * 9 + t) * 4 + 2 * rd, 23, 8192 + 1024 * rd))
            return o
        load_weights(A, 8, dmas, reads, 10240, 4, sb, st)
        A("s_barrier")
        A(f"s_lshr_b32 {s(st)}, {s(S_W)}, 1")
        A(f"s_and_b32 {s(st + 1)}, {s(S_W)}, 1")
        A(f"s_lshl_b32 {s(self.S_HB)}, {s(self.S_HP)}, 1")
        A(f"s_add_u32 {s(self.S_HB)}, {s(self.S_HB)}, {s(st)}")
        A(f"s_lshl_b32 {s(self.S_HB + 1)}, {s(st + 1)}, 12")
        A(f"s_add_u32 {s(self.S_HB + 1)}, {s(self.S_HB + 1)}, {QB:#x}")
        A(f"s_lshl_b32 {s(pb)}, {s(st + 1)}, 1")
        A(f"s_add_u32 {s(pb)}, {s(pb)}, {s(st)}")
        A(f"s_lshl_b32 {s(pb)}, {s(pb)}, 12")
        A(f"v_mov_b32 {v(self.V_RD)}, {v(V_L16)}")
        A(f"v_add_u32 {v(self.V_WR)}, {s(pb)}, {v(V_L16)}")
        A(f"v_or_b32 {v(self.V_KM)}, 0x80, {v(V_L16)}")
        A(f"v_min_u32 {v(self.V_POLLOFF)}, {19 * 16}, {v(V_L16)}")
        import math
        cs = 128 ** -0.5 * math.log2(math.e)
        A(f"s_mov_b32 {s(self.S_CS)}, {f32(cs):#x}")
        A(f"s_mov_b32 {s(self.S_CS + 1)}, {f32(cs):#x}")
        A(f"v_and_b32 v20, 15, {L}")
        A(f"s_lshl_b32 {s(st + 1)}, {s(st + 1)}, 4")
        A(f"v_add_u32 v20, {s(st + 1)}, v20")
        A(f"v_lshrrev_b32 v21, 4, {L}")
        A(f"v_lshlrev_b32 v21, 2, v21")
        A(f"v_sub_u32 v20, v20, v21")
        A(f"v_mov_b32 v21, 0xf149f2ca")
        for k in range(8):
            A(f"v_cmp_gt_i32 vcc, {16 * (k // 4) + k % 4}, v20")
            A(f"v_cndmask_b32 {v(self.BIAS + k)}, 0, v21, vcc")
        self.emit(flag_at=4, write_at=0)


def role_bc(A, sync):
    A(f"s_and_b32 {s(Gemm.S_IT)}, {s(S_IDX)}, {BC_REP - 1}")
    A(f"s_lshr_b32 {s(BC.S_HP)}, {s(S_IDX)}, {BC_REP.bit_length() - 1}")
    srd(A, S_A, KA_WO, SZ_W)
    A("s_waitcnt lgkmcnt(0)")
    BC(A, sync).body()


NWG_R1 = 18
NWG_R2 = 18


def reducer(A, sync, first):
    n = "r1" if first else "r2"
    NP = 16 if first else 6
    S_U, S_P, S_X, S_PL, S_SP, S_O = 36, 37, 38, 39, 40, 41
    SEL, ONE, ACC, VX, VPO, VPL, VST, VF0, T, IN = 4, 10, 16, 2, 3, 14, 15, 24, 26, 40
    L = v(V_LANE)
    if first:
        srd(A, S_B, KA_X, SZ_X)
    else:
        srd(A, S_B, KA_OUT, SZ_X)
    A(f"v_and_b32 v20, 15, {L}")
    A(f"v_mul_u32_u24 {v(VX)}, 1152, v20")
    A(f"v_and_b32 v21, 48, {L}")
    A(f"s_lshl_b32 {s(S_T)}, {s(S_IDX)}, 6")
    A(f"v_add3_u32 {v(VX)}, {v(VX)}, v21, {s(S_T)}")
    A(f"v_lshrrev_b32 v21, 4, {L}")
    A(f"v_lshrrev_b32 v22, 2, v20")
    A(f"v_and_b32 v23, 3, {L}")
    A(f"v_cmp_eq_u32 vcc, v21, v22")
    A(f"v_cndmask_b32 v23, 7, v23, vcc")
    for k in (0, 1, 4, 5):
        A(f"v_mov_b32 {v(SEL + k)}, 0")
    for k in range(2):
        A(f"v_mov_b32 v22, 0x3f80")
        A(f"v_cmp_eq_u32 vcc, {2 * k}, v23")
        A(f"v_cndmask_b32 {v(SEL + 2 + k)}, 0, v22, vcc")
        A(f"v_mov_b32 v22, 0x3f800000")
        A(f"v_cmp_eq_u32 vcc, {2 * k + 1}, v23")
        A(f"v_cndmask_b32 {v(SEL + 2 + k)}, {v(SEL + 2 + k)}, v22, vcc")
    if first:
        for k in range(4):
            A(f"v_mov_b32 {v(ONE + k)}, 0x3f803f80")
        A(f"v_lshlrev_b32 v20, 3, v20")
        A(f"v_mov_b32 {v(VST)}, {OOR:#x}")
        A(f"v_cmp_eq_u32 vcc, 0, v21")
        A(f"v_cndmask_b32 {v(VST)}, {v(VST)}, v20, vcc")
        A(f"v_lshlrev_b32 {v(VPO)}, 2, {L}")
        lane0_off(A, VF0, "0")
        A(f"v_mov_b32 {v(VF0 + 1)}, 1")
    else:
        A(f"s_mul_i32 {s(S_T)}, {s(S_IDX)}, 43")
        A(f"s_lshr_b32 {s(S_T)}, {s(S_T)}, 8")
        A(f"s_lshl_b32 {s(S_T)}, {s(S_T)}, 7")
        A(f"v_min_u32 {v(VPO)}, 23, {L}")
        A(f"v_lshlrev_b32 {v(VPO)}, 2, {v(VPO)}")
        A(f"v_add_u32 {v(VPO)}, {s(S_T)}, {v(VPO)}")
    A(f"s_mov_b32 {s(S_U)}, {s(S_W)}")
    A("s_waitcnt lgkmcnt(0)")
    A.label(f"L_{n}_top")
    A(f"s_mul_i32 {s(S_X)}, {s(S_U)}, 18432")
    A(f"s_lshl_b32 {s(S_T)}, {s(S_IDX)}, 10")
    A(f"s_add_u32 {s(S_O)}, {s(S_X)}, {s(S_T)}")
    A(f"s_mul_i32 {s(S_P)}, {s(S_X)}, {NP}")
    A(f"s_add_u32 {s(S_P)}, {s(S_P)}, {s(S_T)}")
    A(f"s_add_u32 {s(S_P)}, {s(S_P)}, {P1 if first else P2:#x}")
    A(f"s_add_u32 {s(S_O)}, {s(S_O)}, {HH:#x}")
    if first:
        A(f"buffer_load_dwordx4 {v(IN, 4)}, {v(VX)}, {SB}, {s(S_X)} offen")
    if sync:
        if first:
            A(f"s_lshr_b32 {s(S_PL)}, {s(S_U)}, 1")
            A(f"s_lshl_b32 {s(S_PL)}, {s(S_PL)}, 8")
            A(f"s_add_u32 {s(S_PL)}, {s(S_PL)}, {F_BC:#x}")
        else:
            A(f"s_lshl_b32 {s(S_PL)}, {s(S_U)}, 9")
            A(f"s_add_u32 {s(S_PL)}, {s(S_PL)}, {F_E:#x}")
        poll_block(A, VPL, VPO, s(S_PL), True, S_SP)
    if not first:
        A(f"buffer_load_dwordx4 {v(IN, 4)}, {v(V_L16)}, {WS}, {s(S_O)} offen sc1")
    for p in range(NP):
        A(f"buffer_load_dwordx4 {v(IN + 4 + 4 * p, 4)}, {v(V_L16)}, {WS}, {s(S_P)} offen sc1")
        if p + 1 < NP:
            A(f"s_add_u32 {s(S_P)}, {s(S_P)}, 18432")
    for p in range(NP + 1):
        A(f"{MF} {v(ACC, 4)}, {v(SEL + 2, 4)}, {v(IN + 4 * p, 4)}, {v(ACC, 4) if p else 0}")
        A(f"{MF} {v(ACC + 4, 4)}, {v(SEL, 4)}, {v(IN + 4 * p, 4)}, {v(ACC + 4, 4) if p else 0}")
    for k in range(4):
        A(cvt2(IN + k, ACC + 2 * k))
    if not first:
        A(f"buffer_store_dwordx4 {v(IN, 4)}, {v(VX)}, {SB}, {s(S_X)} offen")
    else:
        A(f"buffer_store_dwordx4 {v(IN, 4)}, {v(V_L16)}, {WS}, {s(S_O)} offen sc1")
        A(f"{MF} {v(T, 4)}, {v(ONE, 4)}, {v(IN, 4)}, 0")
        for k in range(4):
            A(f"v_lshlrev_b32 {v(ACC + 2 * k)}, 16, {v(IN + k)}")
            A(f"v_and_b32 {v(ACC + 2 * k + 1)}, 0xffff0000, {v(IN + k)}")
        A(f"s_lshl_b32 {s(S_T)}, {s(S_U)}, 5")
        A(f"s_add_u32 {s(S_T)}, {s(S_T)}, {s(S_IDX)}")
        A(f"s_lshl_b32 {s(S_T + 1)}, {s(S_T)}, 7")
        A(f"s_add_u32 {s(S_T + 1)}, {s(S_T + 1)}, {ST:#x}")
        A(f"v_mul_f32 {v(T + 2)}, {f32(-1.0 / 32):#x}, {v(T)}")
        for k in range(0, 8, 2):
            A(f"v_pk_add_f32 {v(ACC + k, 2)}, {v(ACC + k, 2)}, {v(T + 2, 2)} op_sel_hi:[1,0]")
        A(f"v_pk_mul_f32 {v(ACC, 2)}, {v(ACC, 2)}, {v(ACC, 2)}")
        for k in range(2, 8, 2):
            A(f"v_pk_fma_f32 {v(ACC, 2)}, {v(ACC + k, 2)}, {v(ACC + k, 2)}, {v(ACC, 2)}")
        A(f"v_add_f32 {v(T + 1)}, {v(ACC)}, {v(ACC + 1)}")
        xg_reduce(A, "v_add_f32", T + 1, T + 2)
        A(f"buffer_store_dwordx2 {v(T, 2)}, {v(VST)}, {WS}, {s(S_T + 1)} offen sc1")
        if sync:
            A(f"s_lshl_b32 {s(S_T)}, {s(S_T)}, 2")
            A(f"s_add_u32 {s(S_T)}, {s(S_T)}, {F_R1:#x}")
            A("s_waitcnt vmcnt(0)")
            A(f"buffer_store_dword {v(VF0 + 1)}, {v(VF0)}, {WS}, {s(S_T)} offen sc1")
    A(f"s_add_u32 {s(S_U)}, {s(S_U)}, 4")
    A(f"s_cmp_lt_u32 {s(S_U)}, 128")
    A(f"s_cbranch_scc1 L_{n}_top")


def role_r1(A, sync):
    reducer(A, sync, True)


def role_r2(A, sync):
    reducer(A, sync, False)


NWG_DD = 72


class DD(Gemm):
    ACC, BF, STG, CS, SN, SC_, T, V_ST, V_ST4, V_VAL = 12, 28, 44, 64, 80, 90, 100, 9, 10, 11
    S_SL, S_ST = 50, 51

    def __init__(self, A, sync):
        super().__init__(A, "dd", sync, 2, 128, 5, self.STG)

    def set_load_base(self, s_it):
        A = self.A
        A(f"s_mul_i32 {s(self.S_LD)}, {s(s_it)}, 18432")
        A(f"s_add_u32 {s(self.S_LD)}, {s(self.S_LD)}, {HH:#x}")
        A(f"s_lshl_b32 {s(self.S_ST)}, {s(s_it)}, 12")
        A(f"s_add_u32 {s(self.S_ST)}, {s(self.S_ST)}, {ST:#x}")

    def extra_loads(self):
        return [f"buffer_load_dwordx2 {v(self.SN + 2 * i, 2)}, {v(self.V_ST if i < 4 else self.V_ST4)}, {WS}, "
                f"{s(self.S_ST)} offen offset:{512 * i} sc1" for i in range(5)]

    def post_loads(self):
        return [f"v_mov_b64 {v(self.SC_ + 2 * i, 2)}, {v(self.SN + 2 * i, 2)}" for i in range(5)]

    def set_poll_base(self, s_it):
        self.A(f"s_lshl_b32 {s(self.S_POLL)}, {s(s_it)}, 7")
        self.A(f"s_add_u32 {s(self.S_POLL)}, {s(self.S_POLL)}, {F_R1:#x}")

    def set_out_base(self):
        A = self.A
        A(f"s_mul_i32 {s(self.S_OUT)}, {s(self.S_IT)}, 144")
        A(f"s_add_u32 {s(self.S_OUT)}, {s(self.S_OUT)}, {s(self.S_SL)}")
        A(f"s_lshl_b32 {s(self.S_OUT)}, {s(self.S_OUT)}, 10")
        A(f"s_add_u32 {s(self.S_OUT)}, {s(self.S_OUT)}, {ACT:#x}")
        A(f"s_lshl_b32 {s(self.S_FLG)}, {s(self.S_IT)}, 8")
        A(f"s_add_u32 {s(self.S_FLG)}, {s(self.S_FLG)}, {s(self.S_SL)}")
        A(f"s_lshl_b32 {s(self.S_FLG)}, {s(self.S_FLG)}, 2")
        A(f"s_add_u32 {s(self.S_FLG)}, {s(self.S_FLG)}, {F_D:#x}")

    def stats(self):
        S, T = self.SC_, self.T
        o = []
        xg = lambda op, x, t: [f"v_mov_b32 {v(t)}, {v(x)}", f"v_permlane32_swap_b32 {v(x)}, {v(t)}",
                               f"{op} {v(x)}, {v(x)}, {v(t)}", f"v_mov_b32 {v(t)}, {v(x)}",
                               f"v_permlane16_swap_b32 {v(x)}, {v(t)}", f"{op} {v(x)}, {v(x)}, {v(t)}"]
        rnd = lambda x: [f"v_cvt_pk_bf16_f32 {v(x)}, {v(x)}, {v(x)}", f"v_and_b32 {v(x)}, 0xffff0000, {v(x)}"]
        o += [f"v_add_f32 {v(T)}, {v(S)}, {v(S + 2)}", f"v_add_f32 {v(T + 1)}, {v(S + 4)}, {v(S + 6)}",
              f"v_add_f32 {v(T + 2)}, {v(S + 1)}, {v(S + 3)}", f"v_add_f32 {v(T + 3)}, {v(S + 5)}, {v(S + 7)}",
              f"v_add_f32 {v(T)}, {v(T)}, {v(S + 8)}", f"v_add_f32 {v(T + 2)}, {v(T + 2)}, {v(S + 9)}",
              f"v_add_f32 {v(T)}, {v(T)}, {v(T + 1)}", f"v_add_f32 {v(T + 2)}, {v(T + 2)}, {v(T + 3)}"]
        o += xg("v_add_f32", T, T + 1)
        o += [f"v_mul_f32 {v(T + 1)}, {f32(-1.0 / 18):#x}, {v(T)}"]
        o += [f"v_add_f32 {v(S + 2 * i)}, {v(S + 2 * i)}, {v(T + 1)}" for i in range(5)]
        o += [f"v_mul_f32 {v(S + 8)}, {v(S + 8)}, {v(self.V_VAL)}", f"v_mul_f32 {v(T + 3)}, {v(S)}, {v(S)}"]
        o += [f"v_fmac_f32 {v(T + 3)}, {v(S + 2 * i)}, {v(S + 2 * i)}" for i in range(1, 5)]
        o += [f"v_fmac_f32 {v(T + 2)}, {f32(1.0 / 32):#x}, {v(T + 3)}"]
        o += xg("v_add_f32", T + 2, T + 1)
        o += [f"v_mul_f32 {v(T)}, {f32(-1.0 / 576):#x}, {v(T)}"] + rnd(T)
        o += [f"v_mul_f32 {v(T + 2)}, {f32(1.0 / 576):#x}, {v(T + 2)}"] + rnd(T + 2)
        o += [f"v_add_f32 {v(T + 2)}, {f32(1e-5):#x}, {v(T + 2)}"] + rnd(T + 2)
        o += [f"v_sqrt_f32 {v(T + 2)}, {v(T + 2)}"] + rnd(T + 2)
        o += [f"v_rcp_f32 {v(T + 2)}, {v(T + 2)}", f"v_mul_f32 {v(T + 2)}, {v(T + 2)}, {v(T + 2)}"]
        return o

    def compute(self):
        main, fill = [], {}
        bf = lambda c: self.BF + (c % 4) * 4
        rd = lambda c: f"ds_read_b128 {v(bf(c), 4)}, {v(self.V_RD)} offset:{c * 1024}"
        for c in range(3):
            self.A(rd(c))
        for c in range(18):
            for t in range(4):
                acc = v(self.ACC + 4 * t, 4)
                main.append(f"{MF} {acc}, {r(WREG + (c * 4 + t) * 4, 4)}, {v(bf(c), 4)}, {acc if c else 0}")
            if c + 3 < 18:
                fill.setdefault(4 * c, []).append(rd(c + 3))
        spread(fill, self.stats(), 2, 1)
        return main, fill

    def epilogue(self):
        a, T = self.ACC, self.T
        o = [f"v_pk_fma_f32 {v(a + k, 2)}, {v(self.CS + k, 2)}, {v(T, 2)}, {v(a + k, 2)} op_sel_hi:[1,0,1]" for k in range(0, 16, 2)]
        o += [f"v_max_f32 {v(a + k)}, 0, {v(a + k)}" for k in range(8)]
        o += [f"v_pk_mul_f32 {v(a + 8 + k, 2)}, {v(a + 8 + k, 2)}, {v(T + 2, 2)} op_sel_hi:[1,0]" for k in range(0, 8, 2)]
        o += [f"v_pk_mul_f32 {v(a + k, 2)}, {v(a + k, 2)}, {v(a + 8 + k, 2)}" for k in range(0, 8, 2)]
        o += [cvt2(T + 4 + k, a + 2 * k) for k in range(4)]
        o += [f"buffer_store_dwordx4 {v(T + 4, 4)}, {v(V_L16)}, {WS}, {s(self.S_OUT)} offen sc1"]
        return o

    def body(self):
        A = self.A
        sb, st = S_T, S_T + 1
        L = v(V_LANE)
        A(f"s_lshl_b32 {s(self.S_SL)}, {s(self.S_SL)}, 2")
        A(f"s_add_u32 {s(self.S_SL)}, {s(self.S_SL)}, {s(S_W)}")
        A(f"s_lshl_b32 {s(st)}, {s(self.S_SL)}, 6")
        A(f"v_lshrrev_b32 v20, 2, {L}")
        A(f"v_mul_u32_u24 v20, 9216, v20")
        A(f"v_and_b32 v21, 3, {L}")
        A(f"v_lshlrev_b32 v21, 4, v21")
        A(f"v_add3_u32 v20, v20, v21, {s(st)}")
        A(f"s_mul_i32 {s(sb)}, {s(S_W)}, 36864")
        tr_addr(A, 21, 22, 23, 8, 1, 64, 16, sb)
        dmas = lambda c: [((SA, SB)[i // 2], 20, (32 * c + 16 * (i % 2)) * 9216, 1024 * i) for i in range(4)]
        reads = lambda c: [(WREG + (c * 4 + t) * 4 + 2 * rd, 21, 2048 * (t // 2) + 8 * (t % 2) + 256 * rd)
                           for t in range(4) for rd in range(2)]
        load_weights(A, 18, dmas, reads, 4096, 9, sb, st)
        A("s_barrier")
        for k in range(4):
            A(f"v_mov_b32 {v(self.BF + k)}, 0x3f803f80")
        for c in range(18):
            for t in range(4):
                cs = v(self.CS + 4 * t, 4)
                A(f"{MF} {cs}, {r(WREG + (c * 4 + t) * 4, 4)}, {v(self.BF, 4)}, {cs if c else 0}")
        gemm_addr(A, self, 4)
        A(f"s_min_u32 {s(st)}, {s(S_W)}, 1")
        A(f"s_lshl_b32 {s(st)}, {s(st)}, 10")
        A(f"v_add_u32 {v(self.V_WR)}, {s(st)}, {v(self.V_WR)}")
        A(f"v_mov_b32 {v(self.V_LDOFF)}, {v(self.V_WR)}")
        A(f"v_min_u32 {v(self.V_POLLOFF)}, 17, {L}")
        A(f"v_lshlrev_b32 {v(self.V_POLLOFF)}, 2, {v(self.V_POLLOFF)}")
        A(f"v_lshlrev_b32 {v(self.V_ST)}, 3, {L}")
        A(f"v_mov_b32 {v(self.V_ST4)}, {OOR:#x}")
        A(f"v_cmp_gt_u32 vcc, 32, {L}")
        A(f"v_cndmask_b32 {v(self.V_ST4)}, {v(self.V_ST4)}, {v(self.V_ST)}, vcc")
        A(f"v_cndmask_b32 {v(self.V_VAL)}, 0, 1.0, vcc")
        self.emit(flag_at=16, write_at=60)


def role_dd(A, sync):
    A(f"s_and_b32 {s(Gemm.S_IT)}, {s(S_IDX)}, 1")
    A(f"s_lshr_b32 {s(DD.S_SL)}, {s(S_IDX)}, 1")
    srd(A, S_A, KA_WG, SZ_WF)
    srd(A, S_B, KA_WU, SZ_WF)
    A("s_waitcnt lgkmcnt(0)")
    DD(A, sync).body()


NWG_EE = 36


class EE(Gemm):
    ACC, BF, STG, V_OUT, V_OUT2 = 12, 28, 44, 9, 10
    S_KS, S_NS = 50, 51

    def __init__(self, A, sync):
        super().__init__(A, "ee", sync, 2, 128, 6, self.STG)

    def set_load_base(self, s_it):
        A = self.A
        A(f"s_mul_i32 {s(self.S_LD)}, {s(s_it)}, 6")
        A(f"s_add_u32 {s(self.S_LD)}, {s(self.S_LD)}, {s(self.S_KS)}")
        A(f"s_mul_i32 {s(self.S_LD)}, {s(self.S_LD)}, 24576")
        A(f"s_add_u32 {s(self.S_LD)}, {s(self.S_LD)}, {ACT:#x}")

    def set_poll_base(self, s_it):
        self.A(f"s_lshl_b32 {s(self.S_POLL)}, {s(s_it)}, 10")
        self.A(f"s_add_u32 {s(self.S_POLL)}, {s(self.S_POLL)}, {F_D:#x}")

    def set_out_base(self):
        A = self.A
        A(f"s_mul_i32 {s(self.S_OUT)}, {s(self.S_IT)}, 6")
        A(f"s_add_u32 {s(self.S_OUT)}, {s(self.S_OUT)}, {s(self.S_KS)}")
        A(f"s_mul_i32 {s(self.S_OUT)}, {s(self.S_OUT)}, 18432")
        A(f"s_add_u32 {s(self.S_OUT)}, {s(self.S_OUT)}, {P2:#x}")
        A(f"s_lshl_b32 {s(self.S_FLG)}, {s(self.S_IT)}, 9")
        A(f"s_add_u32 {s(self.S_FLG)}, {s(self.S_FLG)}, {s(self.S_NS)}")

    def compute(self):
        main, fill = [], {}
        bf = lambda c: self.BF + (c % 4) * 4
        rd = lambda c: f"ds_read_b128 {v(bf(c), 4)}, {v(self.V_RD)} offset:{c * 1024}"
        for c in range(3):
            self.A(rd(c))
        for c in range(24):
            for t in range(3):
                acc = v(self.ACC + 4 * t, 4)
                main.append(f"{MF} {acc}, {r(WREG + (c * 3 + t) * 4, 4)}, {v(bf(c), 4)}, {acc if c else 0}")
            if c + 3 < 24:
                fill.setdefault(3 * c, []).append(rd(c + 3))
        return main, fill

    def epilogue(self):
        a = self.ACC
        return [cvt2(a + k, a + 2 * k) for k in range(4)] + \
            [f"buffer_store_dwordx4 {v(a, 4)}, {v(self.V_OUT)}, {WS}, {s(self.S_OUT)} offen sc1",
             cvt2(a + 8, a + 8), cvt2(a + 9, a + 10),
             f"buffer_store_dwordx2 {v(a + 8, 2)}, {v(self.V_OUT2)}, {WS}, {s(self.S_OUT)} offen sc1"]

    def body(self):
        A = self.A
        sb, st = S_T, S_T + 1
        pb, po = S_T + 3, S_T + 4
        L = v(V_LANE)
        A(f"s_mul_i32 {s(st)}, {s(self.S_NS)}, 6")
        A(f"s_mul_i32 {s(pb)}, {s(S_W)}, 3")
        A(f"s_add_u32 {s(pb)}, {s(pb)}, 1")
        A(f"s_lshr_b32 {s(pb)}, {s(pb)}, 1")
        A(f"s_add_u32 {s(pb)}, {s(pb)}, {s(st)}")
        A(f"s_lshr_b32 {s(po)}, {s(S_W)}, 1")
        A(f"s_mul_i32 {s(po)}, {s(po)}, 3")
        A(f"s_add_u32 {s(po)}, {s(po)}, 1")
        A(f"s_add_u32 {s(po)}, {s(po)}, {s(st)}")
        A(f"s_mul_i32 {s(st)}, {s(self.S_KS)}, {768 * 1152}")
        A(f"v_lshrrev_b32 v20, 2, {L}")
        A(f"v_mul_u32_u24 v20, 1152, v20")
        A(f"v_and_b32 v21, 3, {L}")
        A(f"v_lshlrev_b32 v21, 4, v21")
        A(f"v_add3_u32 v20, v20, v21, {s(st)}")
        A(f"s_lshl_b32 {s(st)}, {s(po)}, 6")
        A(f"v_add_u32 v21, {s(st)}, v20")
        A(f"s_lshl_b32 {s(st)}, {s(pb)}, 6")
        A(f"v_add_u32 v20, {s(st)}, v20")
        A(f"s_mul_i32 {s(sb)}, {s(S_W)}, 36864")
        tr_addr(A, 22, 24, 25, 8, 1, 64, 16, sb)
        A(f"s_and_b32 {s(st)}, {s(S_W)}, 1")
        A(f"s_lshl_b32 {s(st)}, {s(st)}, 3")
        A(f"v_add_u32 v23, {s(st)}, v22")
        A(f"s_lshl_b32 {s(pb)}, {s(pb)}, 10")
        A(f"v_add_u32 {v(self.V_OUT)}, {s(pb)}, {v(V_L16)}")
        A(f"s_lshl_b32 {s(po)}, {s(po)}, 10")
        A(f"s_add_u32 {s(po)}, {s(po)}, {s(st)}")
        A(f"v_add_u32 {v(self.V_OUT2)}, {s(po)}, {v(V_L16)}")
        dmas = lambda c: [(SA, 20 + i // 2, (32 * c + 16 * (i % 2)) * 1152, 1024 * i) for i in range(4)]
        reads = lambda c: [(WREG + (c * 3 + t) * 4 + 2 * rd, 22 + t // 2, 2048 * (t // 2) + 8 * (t % 2) + 256 * rd)
                           for t in range(3) for rd in range(2)]
        load_weights(A, 24, dmas, reads, 4096, 9, sb, st)
        A("s_barrier")
        gemm_addr(A, self, 6)
        A(f"s_mul_i32 {s(st)}, {s(self.S_KS)}, 96")
        A(f"v_min_u32 {v(self.V_POLLOFF)}, 23, {L}")
        A(f"v_lshlrev_b32 {v(self.V_POLLOFF)}, 2, {v(self.V_POLLOFF)}")
        A(f"v_add_u32 {v(self.V_POLLOFF)}, {s(st)}, {v(self.V_POLLOFF)}")
        A(f"s_lshl_b32 {s(self.S_NS)}, {s(self.S_NS)}, 5")
        A(f"s_lshl_b32 {s(st)}, {s(self.S_KS)}, 2")
        A(f"s_add_u32 {s(self.S_NS)}, {s(self.S_NS)}, {s(st)}")
        A(f"s_add_u32 {s(self.S_NS)}, {s(self.S_NS)}, {s(S_W)}")
        A(f"s_lshl_b32 {s(self.S_NS)}, {s(self.S_NS)}, 2")
        A(f"s_add_u32 {s(self.S_NS)}, {s(self.S_NS)}, {F_E:#x}")
        self.emit(flag_at=16, write_at=58)


def role_ee(A, sync):
    A(f"s_and_b32 {s(Gemm.S_IT)}, {s(S_IDX)}, 1")
    A(f"s_lshr_b32 {s(EE.S_KS)}, {s(S_IDX)}, 1")
    A(f"s_mul_i32 {s(EE.S_NS)}, {s(EE.S_KS)}, 43")
    A(f"s_lshr_b32 {s(EE.S_NS)}, {s(EE.S_NS)}, 8")
    A(f"s_mul_i32 {s(S_T)}, {s(EE.S_NS)}, 6")
    A(f"s_sub_u32 {s(EE.S_KS)}, {s(EE.S_KS)}, {s(S_T)}")
    srd(A, S_A, KA_WD, SZ_WF)
    A("s_waitcnt lgkmcnt(0)")
    EE(A, sync).body()
```

```python
from asm import *
import os
REC_LIMIT = int(os.environ.get("REC_LIMIT", "32"))
V_T0, V_T1, V_JUNK = 8, 9, 10
S_MODE = 67

NAME = "sequential_preLN__memory_aug_recurrent_mem_tr__glu_gated_reglu__prompt"

F_LN = 0x00000
F_A = 0x80000
F_BC = 0x30000
F_R1 = 0x34000
F_E = 0x38000
F_D = 0x50000
FLAGS_END = 0x100000
MR = 0x100000
MR_STRIDE = 0x4000
PR = 0x110000
PR_STRIDE = 0x48000
SENT_END = 0x200000
XH = 0x200000
HH = 0x480000
ST = 0x700000
QB = 0x1000000
KB = 0x2000000
VB = 0x3000000
KM = 0x4000000
VM = 0x4800000
ACT = 0x5000000
P1 = 0x6400000
P2 = 0x9000000
WS_BYTES = 0x10000000
OOR = 0x40000000

KA_X, KA_MEM0, KA_WQ, KA_WK, KA_WV, KA_WO = 0, 8, 16, 24, 32, 40
KA_WG, KA_WU, KA_WD, KA_OUT, KA_DBG, KA_WS = 64, 72, 80, 88, 96, 104
SZ_X = 2048 * 576 * 2
SZ_MEM0 = 8 * 576 * 2
SZ_W = 576 * 4096 * 2
SZ_WF = 576 * 4608 * 2

S_WS = 4
S_A = 8
S_B = 12
S_C = 16
S_DBG = 20
S_IDX = 24
S_W = 25
S_T = 26
WS = s(S_WS, 4)
SA = s(S_A, 4)
SB = s(S_B, 4)
SC = s(S_C, 4)
SDBG = s(S_DBG, 4)

V_L16 = 0
V_LANE = 1


def srd(A, base, ka, size):
    A(f"s_load_dwordx2 {s(base, 2)}, s[0:1], {ka}")
    A(f"s_mov_b32 {s(base + 2)}, {size:#x}")
    A(f"s_mov_b32 {s(base + 3)}, 0x20000")


def entry(A):
    srd(A, S_WS, KA_WS, WS_BYTES)
    srd(A, S_DBG, KA_DBG, 256)
    A(f"v_lshrrev_b32 v2, 6, v0")
    A(f"v_readfirstlane_b32 {s(S_W)}, v2")
    A(f"v_and_b32 {v(V_LANE)}, 63, v0")
    A(f"v_lshlrev_b32 {v(V_L16)}, 4, {v(V_LANE)}")
    A("s_waitcnt lgkmcnt(0)")


def weave(A, main, fill):
    for i, m in enumerate(main):
        A(m)
        for f in fill.get(i, []):
            if callable(f):
                f()
            else:
                A(f)


def spread(fill, items, start, step=1, per=1):
    k = start
    for i in range(0, len(items), per):
        fill.setdefault(k, []).extend(items[i:i + per])
        k += step
    return k


def xg_reduce(A, op, x, t):
    A(f"v_mov_b32 {v(t)}, {v(x)}")
    A(f"v_permlane32_swap_b32 {v(x)}, {v(t)}")
    A(f"{op} {v(x)}, {v(x)}, {v(t)}")
    A(f"v_mov_b32 {v(t)}, {v(x)}")
    A(f"v_permlane16_swap_b32 {v(x)}, {v(t)}")
    A(f"{op} {v(x)}, {v(x)}, {v(t)}")


def bf16_round(A, x):
    A(f"v_cvt_pk_bf16_f32 {v(x)}, {v(x)}, {v(x)}")
    A(f"v_and_b32 {v(x)}, 0xffff0000, {v(x)}")


SPIN_MAX = 1 << 20


def poll_block(A, vdst, voff, soff, sync, stmp, fail="L_fail"):
    if not sync:
        return
    l = A.uid("L_poll")
    d = A.uid("L_polld")
    A(f"s_mov_b32 {s(stmp)}, 0")
    A.label(l)
    A(f"buffer_load_dword {v(vdst)}, {v(voff)}, {WS}, {soff} offen sc1")
    A(f"v_cmp_eq_u32 vcc, 0, {v(vdst)}")
    A(f"s_cbranch_vccz {d}")
    A(f"s_add_u32 {s(stmp)}, {s(stmp)}, 1")
    A(f"s_cmp_lt_u32 {s(stmp)}, {SPIN_MAX}")
    A(f"s_cbranch_scc1 {l}")
    A(f"s_branch {fail}")
    A.label(d)


def poll_mask(A, vdst, soff, mask, stmp, fail="L_fail"):
    l = A.uid("L_poll")
    d = A.uid("L_polld")
    A(f"s_mov_b32 {s(stmp)}, 0")
    A.label(l)
    A(f"buffer_load_dword {v(vdst)}, {v(V_L16)}, {WS}, {soff} offen sc1")
    A(f"v_cmp_eq_u32 vcc, 0, {v(vdst)}")
    A(f"s_and_b64 vcc, vcc, {mask}")
    A(f"s_cbranch_vccz {d}")
    A(f"s_add_u32 {s(stmp)}, {s(stmp)}, 1")
    A(f"s_cmp_lt_u32 {s(stmp)}, {SPIN_MAX}")
    A(f"s_cbranch_scc1 {l}")
    A(f"s_branch {fail}")
    A.label(d)


def wait_registered(A):
    l = A.uid("L_reg")
    A(f"v_mov_b32 {v(V_T0)}, 0")
    A(f"s_mov_b32 {s(S_T + 2)}, 0")
    A.label(l)
    A(f"buffer_load_dword {v(V_T1)}, {v(V_T0)}, {SDBG}, 0 offen sc1")
    A(f"buffer_load_dword {v(V_JUNK)}, {v(V_T0)}, {SDBG}, 0 offen offset:128 sc1")
    A(f"s_add_u32 {s(S_T + 2)}, {s(S_T + 2)}, 1")
    A(f"s_cmp_gt_u32 {s(S_T + 2)}, {SPIN_MAX}")
    A("s_cbranch_scc1 L_fail")
    A(f"v_readfirstlane_b32 {s(S_MODE)}, {v(V_T1)}")
    A(f"v_readfirstlane_b32 {s(S_T + 1)}, {v(V_JUNK)}")
    A(f"s_min_u32 {s(S_T)}, {s(S_MODE)}, {REC_LIMIT}")
    A(f"s_add_u32 {s(S_T)}, {s(S_T)}, {s(S_T + 1)}")
    A(f"s_cmp_lt_u32 {s(S_T)}, 256")
    A(f"s_cbranch_scc1 {l}")


def lane0_off(A, vdst, vsrc_or_const):
    A(f"v_mov_b32 {v(vdst)}, {OOR:#x}")
    A(f"v_cmp_eq_u32 vcc, 0, {v(V_L16)}")
    A(f"v_cndmask_b32 {v(vdst)}, {v(vdst)}, {vsrc_or_const}, vcc")


def descriptor(kname):
    return f""".amdhsa_kernel {kname}
  .amdhsa_next_free_vgpr 512
  .amdhsa_next_free_sgpr 102
  .amdhsa_accum_offset 256
  .amdhsa_group_segment_fixed_size 0
  .amdhsa_kernarg_size 112
  .amdhsa_user_sgpr_count 2
  .amdhsa_user_sgpr_kernarg_segment_ptr 1
  .amdhsa_system_sgpr_workgroup_id_x 1
.end_amdhsa_kernel
"""
```

```python
from common import *
from bulk import f32
import math

MF = "v_mfma_f32_16x16x32_bf16"
SM = "v_smfmac_f32_16x16x64_bf16"
import os
DIAG = int(os.environ.get("DIAG", "0"))
DSET = [int(x) for x in os.environ.get("DSET", "0,1,2,3,4,5,6,7,8,9,10").split(",")]
KVSC = os.environ.get("KVSC", " sc1")
PFSC = os.environ.get("PFSC", " sc1")
GSLEEP = int(os.environ.get("GSLEEP", "0"))
NOWAIT = int(os.environ.get("NOWAIT", "0"))

L_M, L_O, L_S, L_W = 0, 0, 9216, 16384
S_STRIDE = 1536
V_IDX, V_WB, V_POLL, V_SEL = 1, 2, 3, 4
V_M, V_ACC, V_B0, V_B1 = 8, 44, 60, 68
V_SRD, V_OWR, V_ORD, V_MASK = 76, 77, 78, 79
WREG = 80
S_H, S_STEP, S_MPRV, S_MNXT, S_MCUR, S_POFF, S_KOFF, S_VOFF, S_KMOFF = 36, 37, 38, 39, 40, 41, 42, 43, 44
S_FLG, S_RED, S_PST, S_SPIN, S_FA, S_GOFF, S_G2, S_PUB, S_MRA = 45, 46, 47, 56, 57, 58, 59, 60, 61
S_RA, S_CS, S_FM, S_PCUR = 48, 90, 92, 94
S_WO = 52
S_EX0, S_EX1 = 62, 64
S_PRD = 66
S_TM = 68
SWO = s(S_WO, 4)
K_LDS = [0, 1, 3, 5]
PAIRS = [[0, 1, 2, 3, 4], [6, 7, 8, 9, 5], [10, 11, 12, 13], [14, 15, 16, 17]]
S_CH = 80
P = lambda k, d: int(os.environ.get(k, d))


def chunk_order(w):
    o = [2 * w, 2 * w + 1, 8]
    return o + [c for c in range(8) if c not in o]


def blocks(np_):
    if np_ == 5:
        oreg, olds = [(4, 0), (0, 1), (1, 1), (2, 1)], [(0, 0), (1, 0), (2, 0), (3, 0), (3, 1), (4, 1)]
    else:
        oreg, olds = [(p, 1) for p in range(4)], [(p, 0) for p in range(4)]
    regb = [("q", c) for c in range(9)] + [("k", c) for c in range(9) if c not in K_LDS] + \
           [("v", c) for c in range(9)] + [("o",) + b for b in oreg]
    ldsb = [("k", c) for c in K_LDS] + [("o",) + b for b in olds]
    assert len(regb) == 27
    return {b: WREG + 16 * i for i, b in enumerate(regb)}, {b: i for i, b in enumerate(ldsb)}


def prologue_weights(A, np_):
    regb, ldsb = blocks(np_)
    VQ, VO, TQK, TV, TO, TO0, TO1, TMP = 8, 9, 10, 11, 12, 16, 17, 20
    sb, st = S_T, S_T + 1
    bo = 0 if np_ == 5 else 1
    w0 = 0 if np_ == 5 else 2
    if np_ == 5:
        A(f"s_mul_i32 {s(sb)}, {s(S_W)}, 40960")
        A(f"s_add_u32 {s(sb)}, {s(sb)}, {L_W}")
    else:
        A(f"s_mul_i32 {s(sb)}, {s(S_W)}, 32768")
        A(f"s_add_u32 {s(sb)}, {s(sb)}, {L_W + 81920 - 65536}")
    A(f"v_add_u32 {v(V_WB)}, {s(sb)}, {v(V_L16)}")
    A(f"s_cmp_eq_u32 {s(S_W)}, {w0}")
    for j in range(9):
        A(f"s_cselect_b32 {s(S_CH + j)}, {chunk_order(w0)[j]}, {chunk_order(w0 + 1)[j]}")
    for p in range(np_):
        A(f"s_cselect_b32 {s(S_CH + 9 + p)}, {PAIRS[w0][p]}, {PAIRS[w0 + 1][p]}")
    for j in range(9):
        A(f"s_lshl_b32 {s(S_CH + j)}, {s(S_CH + j)}, 19")
    for p in range(np_):
        A(f"s_lshl_b32 {s(S_CH + 9 + p)}, {s(S_CH + 9 + p)}, 6")
    L = v(V_LANE)
    A(f"v_lshrrev_b32 v13, 2, {L}")
    A(f"v_and_b32 v14, 3, {L}")
    A(f"v_lshlrev_b32 v14, 4, v14")
    A(f"s_lshl_b32 {s(st)}, {s(S_H)}, 8")
    A(f"s_lshl_b32 {s(st + 1)}, {s(S_W)}, 6")
    A(f"s_add_u32 {s(st)}, {s(st)}, {s(st + 1)}")
    A(f"v_lshlrev_b32 {v(VQ)}, 13, v13")
    A(f"v_add3_u32 {v(VQ)}, {v(VQ)}, v14, {s(st)}")
    A(f"s_mul_i32 {s(st)}, {s(S_H)}, {128 * 1152}")
    A(f"v_mul_u32_u24 {v(VO)}, 1152, v13")
    A(f"v_add3_u32 {v(VO)}, {v(VO)}, v14, {s(st)}")
    A(f"v_bfe_u32 v13, {L}, 5, 1")
    A(f"v_lshlrev_b32 v13, 10, v13")
    A(f"v_bfe_u32 v14, {L}, 4, 1")
    A(f"v_lshl_add_u32 v13, v14, 8, v13")
    A(f"v_bfe_u32 v14, {L}, 3, 1")
    A(f"v_lshl_add_u32 v13, v14, 9, v13")
    A(f"v_bfe_u32 v14, {L}, 2, 1")
    A(f"v_lshl_add_u32 v13, v14, 6, v13")
    A(f"v_add_u32 v13, {s(sb)}, v13")
    A(f"v_and_b32 v15, 3, {L}")
    A(f"v_lshl_add_u32 {v(TQK)}, v15, 4, v13")
    A(f"v_lshl_add_u32 {v(TV)}, v15, 3, v13")
    A(f"v_bfe_u32 v13, {L}, 5, 1")
    A(f"v_lshlrev_b32 v13, 8, v13")
    A(f"v_lshl_add_u32 v13, v14, 6, v13")
    A(f"v_bfe_u32 v14, {L}, 3, 1")
    A(f"v_lshl_add_u32 v13, v14, 5, v13")
    A(f"v_lshl_add_u32 v13, v15, 3, v13")
    A(f"v_add_u32 v13, {s(sb)}, v13")
    A(f"v_bfe_u32 v15, {L}, 4, 1")
    A(f"v_lshl_add_u32 {v(TO)}, v15, 10, v13")
    A(f"v_xor_b32 v15, v15, v14")
    A(f"v_lshl_add_u32 v13, v15, 10, v13")
    A(f"s_cmp_eq_u32 {s(S_W)}, {w0}")
    A(f"s_cselect_b64 vcc, -1, 0")
    A(f"v_cndmask_b32 {v(TO0)}, {v(TO)}, v13, vcc")
    A(f"v_cndmask_b32 {v(TO1)}, v13, {v(TO)}, vcc")

    order = list(regb.keys()) + list(ldsb.keys())
    NS = 8
    slot = {}
    for i, b in enumerate(regb.keys()):
        slot[b] = i % NS
    for b, k in ldsb.items():
        slot[b] = k
    issued = []

    def issue(b):
        for i in range(4):
            if b[0] == "o":
                sr, vo, sg, so = SWO, VO, S_CH + 9 + b[1], (64 * (bo ^ b[2]) + 16 * i) * 1152
            else:
                sr, vo, sg, so = {"q": SA, "k": SB, "v": SC}[b[0]], VQ, S_CH + b[1], 16 * i * 8192
            A(f"s_add_u32 m0, {s(sb)}, {slot[b] * 4096 + 1024 * i:#x}")
            A(f"s_add_u32 {s(st)}, {s(sg)}, {so:#x}")
            A(f"buffer_load_dwordx4 {v(vo)}, {sr}, {s(st)} offen nt lds")
            issued.append(b)

    def reads(b, dst):
        for op in range(2):
            for t in range(4):
                if b[0] == "o":
                    va, rel = (TO if b[2] else (TO0, TO1)[op]), (32 * op + 8 * (t // 2) + 2 * (t % 2)) * 64
                else:
                    rel = (32 * (t // 2) + 2 * (t % 2)) * 64 + (32 * op if b[0] == "v" else 8 * op)
                    va = TV if b[0] == "v" else TQK
                A(f"ds_read_b64_tr_b16 {r(dst + 8 * op + 2 * t, 2)}, {v(va)} offset:{slot[b] * 4096 + rel}")

    busy = {}
    nxt = 0

    def fill():
        nonlocal nxt
        while nxt < len(order) and slot[order[nxt]] not in busy and len(busy) < 10:
            busy[slot[order[nxt]]] = order[nxt]
            issue(order[nxt])
            nxt += 1

    fill()
    for b in order:
        pos = max(i for i, x in enumerate(issued) if x == b)
        after = len(issued) - 1 - pos
        assert after <= 63
        A(f"s_waitcnt vmcnt({after})")
        if b in regb:
            reads(b, regb[b])
            A("s_waitcnt lgkmcnt(0)")
            del busy[slot[b]]
            fill()
        else:
            reads(b, TMP)
            A("s_waitcnt lgkmcnt(0)")
            for i in range(4):
                A(f"ds_write_b128 {v(V_WB)}, {v(TMP + 4 * i, 4)} offset:{slot[b] * 4096 + 1024 * i}")
            A("s_waitcnt lgkmcnt(0)")
    return regb, ldsb


def stamp(A, k):
    if DIAG == 1 and k in DSET:
        A(f"s_memtime {s(S_TM + 2 * k, 2)}")


def consts(A):
    L = v(V_LANE)
    n, g, t, x, y = 24, 25, 26, 27, 28
    A(f"v_and_b32 {v(n)}, 15, {L}")
    A(f"v_lshrrev_b32 {v(g)}, 4, {L}")
    A(f"v_and_b32 {v(t)}, 1, {v(g)}")
    A(f"v_lshlrev_b32 {v(t)}, 2, {v(t)}")
    A(f"v_and_b32 {v(x)}, 7, {v(n)}")
    A(f"v_sub_u32 {v(t)}, {v(x)}, {v(t)}")
    A(f"v_lshrrev_b32 {v(x)}, 3, {v(n)}")
    A(f"v_lshl_add_u32 {v(x)}, {v(x)}, 2, {v(t)}")
    A(f"v_cmp_gt_u32 vcc, 4, {v(t)}")
    A(f"v_cndmask_b32 {v(x)}, 63, {v(x)}, vcc")
    for k in range(4):
        A(f"v_mov_b32 {v(V_SEL + k)}, 0")
        A(f"v_mov_b32 {v(y)}, 0x3f80")
        A(f"v_cmp_eq_u32 vcc, {2 * k}, {v(x)}")
        A(f"v_cndmask_b32 {v(V_SEL + k)}, {v(V_SEL + k)}, {v(y)}, vcc")
        A(f"v_mov_b32 {v(y)}, 0x3f800000")
        A(f"v_cmp_eq_u32 vcc, {2 * k + 1}, {v(x)}")
        A(f"v_cndmask_b32 {v(V_SEL + k)}, {v(V_SEL + k)}, {v(y)}, vcc")
    A(f"v_min_u32 {v(t)}, 2, {v(g)}")
    A(f"v_lshlrev_b32 {v(x)}, 4, {v(n)}")
    A(f"v_lshl_add_u32 {v(V_SRD)}, {v(t)}, 9, {v(x)}")
    A(f"v_and_b32 {v(x)}, 0x70, {v(x)}")
    A(f"v_lshl_add_u32 {v(V_ORD)}, {v(g)}, 7, {v(x)}")
    A(f"v_and_b32 {v(x)}, 8, {v(n)}")
    A(f"v_add_u32 {v(V_OWR)}, {v(V_ORD)}, {v(x)}")
    A(f"v_mov_b32 {v(y)}, 0x3f803f80")
    A(f"v_cmp_gt_u32 vcc, 3, {v(g)}")
    A(f"v_cndmask_b32 {v(V_MASK)}, 0, {v(y)}, vcc")
    A(f"v_and_b32 {v(x)}, 31, {L}")
    A(f"v_lshlrev_b32 {v(x)}, 2, {v(x)}")
    A(f"v_lshrrev_b32 {v(t)}, 5, {L}")
    A(f"v_lshl_add_u32 {v(x)}, {v(t)}, 8, {v(x)}")
    A(f"s_mul_i32 {s(S_T)}, {s(S_W)}, {S_STRIDE}")
    A(f"v_add_u32 {v(x)}, {s(S_T)}, {v(x)}")
    A(f"v_mov_b32 {v(y)}, 0xf149f2ca")
    A(f"ds_write_b32 {v(x)}, {v(y)} offset:{L_S + 1152}")
    A(f"s_mov_b32 {s(S_EX0)}, 0x00ff00ff")
    A(f"s_mov_b32 {s(S_EX0 + 1)}, 0x00ff00ff")
    A(f"s_mov_b32 {s(S_EX1)}, 0")
    A(f"s_mov_b32 {s(S_EX1 + 1)}, 0x00ff00ff")
    cs = 128 ** -0.5 * math.log2(math.e)
    A(f"s_mov_b32 {s(S_CS)}, {f32(cs):#x}")
    A(f"s_mov_b32 {s(S_CS + 1)}, {f32(cs):#x}")
    A(f"v_mov_b32 {v(x)}, 0x44444444")
    A(f"v_mov_b32 {v(y)}, 0xeeeeeeee")
    A(f"v_cmp_gt_u32 vcc, 8, {v(n)}")
    A(f"v_cndmask_b32 {v(V_IDX)}, {v(y)}, {v(x)}, vcc")


V_CR, V_CP, V_NEG = V_M + 28, V_M + 29, V_M + 32


def red_addr():
    t = V_M + 30
    return [f"v_and_b32 {v(V_CR)}, 0x380, {v(V_L16)}",
            f"v_and_b32 {v(t)}, 0x70, {v(V_L16)}",
            f"v_lshl_add_u32 {v(V_CR)}, {v(V_CR)}, 3, {v(t)}",
            f"v_bfe_u32 {v(V_CP)}, {v(V_L16)}, 8, 1",
            f"v_bfe_u32 {v(t)}, {v(V_L16)}, 9, 1",
            f"v_lshl_add_u32 {v(V_CP)}, {v(V_CP)}, 1, {v(t)}",
            f"v_and_b32 {v(t)}, 0x30, {v(V_L16)}",
            f"v_lshl_add_u32 {v(V_CP)}, {v(V_CP)}, 2, {v(t)}",
            f"v_and_b32 {v(t)}, 0x40, {v(V_L16)}",
            f"v_lshl_add_u32 {v(V_CP)}, {v(t)}, 3, {v(V_CP)}",
            f"v_and_b32 {v(t)}, 0x80, {v(V_L16)}",
            f"v_lshl_add_u32 {v(V_CP)}, {v(t)}, 23, {v(V_CP)}"]


def loop(A, w, fast, sync, regb, ldsb):
    np_ = len(PAIRS[w])
    bo = w // 2
    tag = f"{w}{'f' if fast else 's'}"
    sc = "" if fast else " sc1"
    M = lambda c: v(V_M + 4 * c, 4)
    ACC = lambda k: v(V_ACC + 4 * k, 4)
    idx = v(V_IDX)
    L16 = v(V_L16)
    cho = chunk_order(w)
    nown = 3 if w == 0 else 2
    cvt = lambda d, x: f"v_cvt_pk_bf16_f32 {v(d)}, {v(x)}, {v(x + 1)}"
    zero = lambda d, n: [f"v_mov_b64 {v(d + 2 * i, 2)}, 0" for i in range(n // 2)]
    dpp = "row_ror:8 row_mask:0xf bank_mask:0xf"

    def ldsop(b, op, dst):
        o = ldsb[b] * 4096 + op * 2048
        return [f"ds_read_b128 {v(dst, 4)}, {v(V_WB)} offset:{o}",
                f"ds_read_b128 {v(dst + 4, 4)}, {v(V_WB)} offset:{o + 1024}"]

    def pre():
        for x in ldsop(("k", 0), 0, V_B0) + ldsop(("k", 0), 1, V_B1) + ldsop(("k", 1), 0, V_M + 12) + \
                ldsop(("k", 1), 1, V_M + 20) + zero(V_ACC, 16):
            A(x)
        if w:
            A(f"v_mov_b64 {v(V_NEG, 2)}, -1")
            A(f"v_mov_b64 {v(V_NEG + 2, 2)}, -1")

    def gather():
        A(f"buffer_load_dwordx4 {M(0)}, {L16}, {WS}, {s(S_GOFF)} offen sc1")
        A(f"buffer_load_dwordx4 {M(1)}, {L16}, {WS}, {s(S_GOFF)} offen offset:1024 sc1")
        if w == 0:
            A(f"buffer_load_dwordx4 {M(2)}, {L16}, {WS}, {s(S_G2)} offen sc1")

    if w:
        for x in red_addr():
            A(x)
    pre()
    if DIAG == 2:
        A(f"s_memtime {s(S_TM + 2, 2)}")
        A(f"s_memrealtime {s(S_TM + 6, 2)}")
    A(f"s_branch L_chk{tag}")

    A.label(f"L_top{tag}")
    stamp(A, 0)
    gather()
    A(f"s_mov_b32 {s(S_SPIN)}, 0")
    if sync:
        A(f"v_cmp_eq_u32 vcc, 0, {v(V_POLL)}")
        A(f"s_and_b64 vcc, vcc, {s(S_FM, 2)}")
        A(f"s_cbranch_vccnz L_slow{tag}")
    A.label(f"L_chk{tag}")
    for j in range(nown):
        A(f"ds_write_b128 {L16}, {M(j)} offset:{L_M + 1024 * cho[j]}")
    mx = V_M + 8 if w else V_M + 32
    g = [V_M + i for i in range(4 * nown)]
    A(f"v_max3_u32 {v(mx)}, {v(g[0])}, {v(g[1])}, {v(g[2])}")
    for i in range(3, 4 * nown - 1, 2):
        A(f"v_max3_u32 {v(mx)}, {v(mx)}, {v(g[i])}, {v(g[i + 1])}")
    A(f"v_max_u32 {v(mx)}, {v(mx)}, {v(g[-1])}")
    A(f"v_cmp_eq_u32 vcc, -1, {v(mx)}")
    if not NOWAIT & 1:
        A(f"s_cbranch_vccnz L_retry{tag}")
    stamp(A, 1)
    seq = [("k", 0, 0), ("q", 0, 0), ("k", 0, 1), ("q", 0, 1), ("k", 1, 0), ("k", 1, 1), ("q", 1, 0), ("q", 1, 1)]
    for c in range(2, 6):
        for t in range(2):
            seq += [("k", c, t), ("q", c, t)] if c in K_LDS else [("q", c, t), ("k", c, t)]
    for t in range(2):
        for c in range(6, 9):
            seq += [("q", c, t), ("k", c, t)]
    main, fill = [], {}
    F = lambda i, *x: fill.setdefault(i, []).extend(x)
    for i, (m, c, t) in enumerate(seq):
        if m == "k" and c in K_LDS:
            b = v(V_M + 12 + 8 * t if c == 1 else (V_B0, V_B1)[t], 8)
        else:
            b = r(regb[(m, c)] + 8 * t, 8)
        main.append(f"{SM} {ACC(2 * t + (m == 'k'))}, {M(c)}, {b}, {idx}")
    pos = {x: i for i, x in enumerate(seq)}
    BAR = P("BAR1", 3)
    rd = {c: f"ds_read_b128 {M(c)}, {L16} offset:{L_M + 1024 * cho[c]}" for c in range(nown, 9)}
    misc = []
    if w:
        misc += [f"buffer_store_dwordx4 {v(V_NEG, 4)}, {v(V_CR)}, {WS}, {s(S_RA + i)} offen{sc}" for i in range(4)]
        misc += [f"buffer_store_dword {v(V_NEG)}, {v(V_CP)}, {WS}, {s(S_MRA)} offen{sc}"]
        spread(fill, misc, 0, 1, 2)
    F(BAR, "s_waitcnt lgkmcnt(0)", "s_barrier")
    if DIAG == 1 and 2 in DSET:
        F(BAR, f"s_memtime {s(S_TM + 4, 2)}")
    if w:
        F(BAR, rd[2])
    k = max(BAR + 1, 4)
    F(k, rd[3], rd[4])
    k3 = ldsop(("k", 3), 0, V_B0) + ldsop(("k", 3), 1, V_B1)
    spread(fill, k3[:2] + [rd[5]] + k3[2:] + [rd[6], rd[7], rd[8]], k + 1)
    if sync:
        F(k + 9, "s_mov_b64 exec, 1", f"buffer_store_dword {idx}, {L16}, {WS}, {s(S_FLG)} offen sc1", "s_mov_b64 exec, -1")
    for t in range(2):
        spread(fill, ldsop(("k", 5), t, (V_B0, V_B1)[t]), pos[("k", 3, t)] + 2)
    F(pos[("k", 5, 0)], f"buffer_load_dwordx4 {v(V_B0, 4)}, {L16}, {WS}, {s(S_KOFF)} offen{KVSC}",
      f"s_add_u32 {s(S_T)}, {s(S_KOFF)}, 4096")
    F(pos[("k", 5, 0)] + 1, f"buffer_load_dwordx4 {v(V_B0 + 4, 4)}, {L16}, {WS}, {s(S_T)} offen{KVSC}")
    spread(fill, zero(V_B1, 8), pos[("k", 5, 1)] + 1)
    a_ = V_ACC
    n = len(seq)
    spread(fill, [cvt(a_ + k, a_ + 2 * k) for k in range(4)], n - 5)
    weave(A, main, fill)
    stamp(A, 3)
    VA = lambda t: v(V_B1 + 4 * t, 4)
    vq = [f"{SM} {VA(t)}, {M(c)}, {r(regb[('v', c)] + 8 * t, 8)}, {idx}" for c in range(9) for t in range(2)]
    vq.reverse()

    def vs(n):
        for _ in range(n):
            A(vq.pop())
    X = v(a_, 4)
    A(f"{MF} {v(a_ + 4, 4)}, {v(a_, 4)}, {v(V_SEL, 4)}, 0")
    for k in range(4):
        A(cvt(a_ + 8 + k, a_ + 8 + 2 * k))
    A(f"{MF} {v(a_ + 12, 4)}, {v(a_ + 8, 4)}, {v(V_SEL, 4)}, 0")
    A(cvt(a_, a_ + 4))
    A(cvt(a_ + 1, a_ + 6))
    vs(1)
    A(cvt(a_ + 2, a_ + 12))
    A(cvt(a_ + 3, a_ + 14))
    so = L_S + S_STRIDE * w
    A(f"{MF} {v(a_ + 4, 4)}, {v(V_B0, 4)}, {X}, 0")
    A(f"buffer_store_dwordx4 {X}, {L16}, {WS}, {s(S_KMOFF)} offen sc1")
    A(f"{MF} {v(a_ + 12, 4)}, {v(V_B0 + 4, 4)}, {X}, 0")
    VO0, VO1 = V_B0, V_M + 16
    A(f"buffer_load_dwordx4 {v(VO0, 4)}, {L16}, {WS}, {s(S_VOFF)} offen{KVSC}")
    A(f"{MF} {v(a_ + 8, 4)}, {X}, {X}, 0")
    vs(1)
    A(f"s_mov_b64 exec, {s(S_EX0, 2)}")
    A(f"ds_write_b128 {L16}, {v(a_ + 4, 4)} offset:{so}")
    A(f"ds_write_b128 {L16}, {v(a_ + 12, 4)} offset:{so + 128}")
    A(f"s_mov_b64 exec, {s(S_EX1, 2)}")
    A(f"ds_write_b128 {L16}, {v(a_ + 8, 4)} offset:{so + 512}")
    A("s_mov_b64 exec, -1")
    vs(P("VC", 4))
    A("s_waitcnt lgkmcnt(0)")
    A("s_barrier")
    stamp(A, 4)
    SP = [V_M, V_M + 8, V_ACC, V_ACC + 8]
    srd_ = lambda k, h: f"ds_read_b128 {v(SP[k] + 4 * h, 4)}, {v(V_SRD)} offset:{L_S + S_STRIDE * k + 256 * h}"
    done = lambda: 18 - len(vq)
    for k, h in [(2, 0), (3, 0), (2, 1), (3, 1), (0, 0), (0, 1), (1, 0), (1, 1)]:
        if k < 2:
            while done() < 2 * (2 * k + h + 1):
                vs(1)
        A(srd_(k, h))
        if (k, h) in ((3, 0), (3, 1)) and vq:
            vs(1)
    MASK, LL, O0, O1 = V_ACC, V_ACC + 4, V_M + 24, V_M + 28
    while done() < 10:
        vs(1)
    A(f"buffer_load_dwordx4 {v(VO1, 4)}, {L16}, {WS}, {s(S_VOFF)} offen offset:1024{KVSC}")
    extra = [f"s_add_u32 {s(S_KOFF)}, {s(S_KOFF)}, 0x40000", f"s_add_u32 {s(S_VOFF)}, {s(S_VOFF)}, 0x40000"]
    if w < 2:
        extra += [f"s_sub_u32 {s(S_T)}, {s(S_VOFF)}, 2048" if w else f"s_mov_b32 {s(S_T)}, {s(S_KOFF)}",
                  f"buffer_load_dword {v(V_POLL)}, {v(V_POLL)}, {WS}, {s(S_T)} offen{PFSC}"]
    if sync:
        extra += [f"s_min_u32 {s(S_T)}, {s(S_STEP)}, 61", f"s_lshl_b32 {s(S_T)}, {s(S_T)}, 13",
                  f"s_add_u32 {s(S_T)}, {s(S_T)}, {s(S_FA)}",
                  f"buffer_load_dword {v(V_POLL)}, {L16}, {WS}, {s(S_T)} offen sc1"]
    extra += [f"s_add_u32 {s(S_T + 1)}, {s(S_KMOFF)}, {VM - KM:#x}"]
    zs = {11: [f"v_lshlrev_b32 {v(V_POLL)}, 3, {L16}"] if w < 2 else [], 13: [f"v_mov_b32 {v(VO1 + 5)}, 0"],
          14: [f"v_mov_b32 {v(VO1 + 7)}, 0"], 15: zero(O0, 2), 16: zero(O0 + 2, 2), 17: zero(O1, 2), 18: zero(O1 + 2, 2)}
    while vq:
        vs(1)
        for x in zs.get(done(), []) + extra[:2]:
            A(x)
        extra = extra[2:]
    for x in extra:
        A(x)
    pk = lambda d, x, y: f"v_pk_add_f32 {v(d, 2)}, {v(x, 2)}, {v(y, 2)}"
    for k in range(0, 8, 2):
        A(pk(SP[2] + k, SP[2] + k, SP[3] + k))
    for k in range(0, 8, 2):
        A(pk(SP[0] + k, SP[0] + k, SP[2] + k))
    for k in range(0, 8, 2):
        A(pk(SP[0] + k, SP[0] + k, SP[1] + k))
    stamp(A, 5)
    S0 = SP[0]
    ta, tb, tc, td = V_M + 8, V_M + 9, V_M + 10, V_M + 11
    PP = V_M + 12
    WB = [V_B1, V_ACC + 8, V_B0, V_M + 16]
    OC = [V_M + 32, V_ACC, V_M + 24, V_ACC + 4, V_M + 28][:np_]
    A(f"v_max3_f32 {v(ta)}, {v(S0)}, {v(S0 + 1)}, {v(S0 + 2)}")
    A(f"v_max3_f32 {v(tb)}, {v(S0 + 3)}, {v(S0 + 4)}, {v(S0 + 5)}")
    A(f"v_max3_f32 {v(ta)}, {v(ta)}, {v(S0 + 6)}, {v(S0 + 7)}")
    A(f"v_max_f32 {v(tc)}, {v(ta)}, {v(tb)}")
    A(cvt(VO0 + 4, V_B1))
    A(cvt(VO0 + 6, V_B1 + 2))
    A(f"v_max_f32_dpp {v(ta)}, {v(tc)}, {v(tc)} {dpp}")
    A(f"v_max_f32_dpp {v(tb)}, {v(tc)}, {v(tc)} {dpp}")
    A(cvt(VO0 + 5, V_B1 + 4))
    A(cvt(VO0 + 7, V_B1 + 6))
    A(f"v_permlane32_swap_b32 {v(ta)}, {v(tb)}")
    A(f"v_max_f32 {v(tc)}, {v(ta)}, {v(tb)}")
    A(f"v_max_f32 {v(td)}, {v(ta)}, {v(tb)}")
    A(cvt(VO1 + 4, V_B1 + 4))
    A(cvt(VO1 + 6, V_B1 + 6))
    A(f"v_permlane16_swap_b32 {v(tc)}, {v(td)}")
    A(f"v_max_f32 {v(tc)}, {v(tc)}, {v(td)}")
    A(f"v_mul_f32 {v(tc)}, {s(S_CS)}, {v(tc)}")
    for k in range(0, 8, 2):
        A(f"v_pk_fma_f32 {v(S0 + k, 2)}, {v(S0 + k, 2)}, {s(S_CS, 2)}, {v(tc, 2)} op_sel_hi:[1,1,0] neg_lo:[0,0,1] neg_hi:[0,0,1]")
    side = [f"buffer_store_dwordx4 {v(VO0 + 4, 4)}, {L16}, {WS}, {s(S_T + 1)} offen sc1"] + \
        ldsop(("o", 0, 0), w % 2, WB[0]) + ldsop(("o", 1, 0), w % 2, WB[1])
    mk = [f"v_mov_b32 {v(MASK + k)}, {v(V_MASK)}" for k in range(4)]
    for k in range(8):
        A(f"v_exp_f32 {v(S0 + k)}, {v(S0 + k)}")
        if side:
            A(side.pop(0))
        if k % 2 == 1 and k > 1:
            A(cvt(PP + k // 2 - 1, S0 + k - 3))
        elif k in (0, 1, 2):
            A(mk.pop())
    A(mk.pop())
    A(cvt(PP + 3, S0 + 6))
    stamp(A, 6)
    A(f"{SM} {v(O0, 4)}, {v(PP, 4)}, {v(VO0, 8)}, {idx}")
    for x in ldsop(("o", 2, 0), w % 2, WB[2]):
        A(x)
    A(f"{SM} {v(O1, 4)}, {v(PP, 4)}, {v(VO1, 8)}, {idx}")
    for x in ldsop(("o", 3, 0), w % 2, WB[3]):
        A(x)
    A(f"{MF} {v(LL, 4)}, {v(MASK, 4)}, {v(PP, 4)}, 0")
    A(f"s_cmp_eq_u32 {s(S_STEP)}, 63")
    A(cvt(O0, O0))
    A(cvt(O0 + 1, O0 + 2))
    A(f"s_cbranch_scc1 L_last{tag}")
    A(cvt(O0 + 2, O1))
    A(cvt(O0 + 3, O1 + 2))
    for x in zero(OC[1], 4):
        A(x)
    A(f"{MF} {v(O1, 4)}, {v(O0, 4)}, {v(V_SEL, 4)}, 0")
    A(f"v_add_f32_dpp {v(tc)}, {v(LL)}, {v(LL)} {dpp}")
    for x in zero(OC[0], 4):
        A(x)
    A(f"v_rcp_f32 {v(tc)}, {v(tc)}")
    for x in zero(OC[2], 4) + zero(OC[3], 4):
        A(x)
    OWN = V_M + 12
    for k in range(0, 4, 2):
        A(f"v_pk_mul_f32 {v(O1 + k, 2)}, {v(O1 + k, 2)}, {v(tc, 2)} op_sel_hi:[1,0]")
    A(cvt(OWN, O1))
    A(cvt(OWN + 1, O1 + 2))
    A(f"ds_write_b64 {v(V_OWR)}, {v(OWN, 2)} offset:{L_O + 512 * w}")
    A(f"s_add_u32 {s(S_PCUR)}, {s(S_POFF)}, {s(S_PST)}")
    A(f"v_mov_b32_dpp {v(OWN + 2)}, {v(OWN)} {dpp}")
    A(f"v_mov_b32_dpp {v(OWN + 3)}, {v(OWN + 1)} {dpp}")
    stamp(A, 7)
    oth = [2 * (1 - bo), 2 * (1 - bo) + 1, w ^ 1]
    OA = {w: OWN, oth[0]: V_M, oth[1]: V_M + 4, oth[2]: V_M + 8}
    blk = lambda p, kk: ("o", p, (kk // 2) ^ bo)
    seq = [(p, w) for p in range(np_)]
    for p in range(np_):
        seq += sorted([(p, kk) for kk in oth], key=lambda x: blk(*x) in ldsb)
    lpos = [i for i, x in enumerate(seq) if blk(*x) in ldsb]
    assert lpos[:4] == [0, 1, 2, 3]
    main, fill = [], {}
    for i, (p, kk) in enumerate(seq):
        b = blk(p, kk)
        w_ = v(WB[lpos.index(i) % 4], 8) if b in ldsb else r(regb[b] + 8 * (kk % 2), 8)
        main.append(f"{SM} {v(OC[p], 4)}, {v(OA[kk], 4)}, {w_}, {idx}")
    BAR = P("BAR3", 2)
    if np_ == 5:
        spread(fill, zero(OC[4], 4), 0)
    nrd = 0
    refill = {j: ldsop(blk(*seq[lpos[j + 4]]), seq[lpos[j + 4]][1] % 2, WB[j % 4]) for j in range(len(lpos) - 4)}
    for j in range(2):
        F(j, *refill[j])
    F(BAR, "s_waitcnt lgkmcnt(4)", "s_barrier")
    for kk in oth:
        F(BAR, f"ds_read_b128 {v(OA[kk], 4)}, {v(V_ORD)} offset:{L_O + 512 * kk}")
    F(max(BAR + 1, 3), *refill[2])
    F(max(BAR + 2, 4), *refill[3])
    for j in range(4, len(lpos) - 4):
        F(lpos[j], *refill[j])
    tail = []
    for p in range(np_):
        e = np_ + 3 * p + 2
        pr = PAIRS[w][p]
        if p == 4:
            d = OC[p]
            ops = [cvt(d, d), cvt(d + 1, d + 2), f"v_min_u32 {v(d)}, -2, {v(d)}"]
            st_ = [f"s_add_u32 {s(S_T)}, {s(S_PCUR)}, {(pr // 2) * 32768:#x}",
                   f"buffer_store_dwordx2 {v(d, 2)}, {L16}, {WS}, {s(S_T)} offen offset:{8 * (pr % 2)}{sc}"]
        else:
            d = OC[p - p % 2] + 2 * (p % 2)
            ops = [cvt(d, OC[p]), cvt(d + 1, OC[p] + 2), f"v_min_u32 {v(d)}, -2, {v(d)}"]
            st_ = [f"s_add_u32 {s(S_T)}, {s(S_PCUR)}, {(pr // 2) * 32768:#x}",
                   f"buffer_store_dwordx4 {v(OC[p - 1], 4)}, {L16}, {WS}, {s(S_T)} offen{sc}"] if p % 2 else []
        for i, x in enumerate(ops):
            if e + 2 + i < len(seq):
                F(e + 2 + i, x)
            else:
                tail.append(x)
        if st_:
            if e + 4 < len(seq):
                F(e + 4, *st_)
            else:
                tail = [st_[0]] + tail + [st_[1]] if p == np_ - 1 and not any("buffer" in x for x in tail) else tail + st_
    weave(A, main, fill)
    for x in tail:
        A(x)
    stamp(A, 8)
    R0, RS, RD, mx = V_M, V_M + 16, V_M + 20, V_M + 24

    def rsetup():
        t = V_M + 25
        o = [f"v_bfe_u32 {v(t)}, {L16}, 4, 1", f"v_lshlrev_b32 {v(t)}, 4, {v(t)}", f"v_mov_b32 {v(mx)}, 0x3f80",
             f"v_lshlrev_b32 {v(mx)}, {v(t)}, {v(mx)}", f"v_bfe_u32 {v(t)}, {L16}, 5, 3"]
        for k in range(4):
            o += [f"v_cmp_eq_u32 vcc, {k}, {v(t)}", f"s_add_u32 {s(S_RA + k)}, {s(S_T + 2)}, {8192 * k}",
                  f"v_cndmask_b32 {v(RS + k)}, 0, {v(mx)}, vcc"]
        return [f"s_add_u32 {s(S_T + 2)}, {s(S_POFF)}, {s(S_PRD)}"] + o
    early = (red_addr() + rsetup()) if w else []
    cut = P("RCUT", 16) if w >= 2 else 0
    for x in early[:cut]:
        A(x)
    A("s_barrier")
    if w == 1:
        A(f"s_cmp_eq_u32 {s(S_RED)}, 0")
        A(f"s_cbranch_scc1 L_nored{tag}")
    if w:
        for x in early[cut:]:
            A(x)
        rl = [f"buffer_load_dwordx4 {v(R0 + 4 * k, 4)}, {v(V_CR)}, {WS}, {s(S_RA + k)} offen sc1" for k in range(4)]
        for x in rl:
            A(x)
        A(f"s_mov_b32 {s(S_SPIN)}, 0")
        A(f"s_add_u32 {s(S_T)}, {s(S_MNXT)}, {s(S_PUB)}")
        A.label(f"L_rchk{tag}")
        for k in range(4):
            A(f"{MF} {v(RD, 4)}, {v(R0 + 4 * k, 4)}, {v(RS, 4)}, {v(RD, 4) if k else 0}")
            if k == 0:
                A(f"v_max_u32 {v(mx)}, {v(R0)}, {v(R0 + 2)}")
            else:
                A(f"v_max3_u32 {v(mx)}, {v(mx)}, {v(R0 + 4 * k)}, {v(R0 + 4 * k + 2)}")
        A(f"v_cmp_eq_u32 vcc, -1, {v(mx)}")
        if not NOWAIT & 2:
            A(f"s_cbranch_vccnz L_r{tag}")
        stamp(A, 9)
        A(f"v_permlane32_swap_b32 {v(RD)}, {v(RD + 2)}")
        A(f"v_permlane32_swap_b32 {v(RD + 1)}, {v(RD + 3)}")
        A(pk(RD, RD, RD + 2))
        A(cvt(RD, RD))
        A(f"v_min_u32 {v(RD)}, -2, {v(RD)}")
        A(f"buffer_store_dword {v(RD)}, {v(V_CP)}, {WS}, {s(S_T)} offen{sc}")
    A.label(f"L_nored{tag}")
    stamp(A, 10)

    def advance():
        if DIAG == 1:
            diag_dump(A)
        A(f"s_add_u32 {s(S_STEP)}, {s(S_STEP)}, 1")
        A(f"s_xor_b32 {s(S_POFF)}, {s(S_POFF)}, {PR ^ (PR + PR_STRIDE):#x}")
        A(f"s_add_u32 {s(S_MRA)}, {s(S_MCUR)}, {s(S_PUB)}")
        A(f"s_mov_b32 {s(S_T)}, {s(S_MPRV)}")
        A(f"s_mov_b32 {s(S_MPRV)}, {s(S_MCUR)}")
        A(f"s_mov_b32 {s(S_MCUR)}, {s(S_MNXT)}")
        A(f"s_mov_b32 {s(S_MNXT)}, {s(S_T)}")
        A(f"s_add_u32 {s(S_GOFF)}, {s(S_MCUR)}, {2048 * w}")
        if w == 0:
            A(f"s_add_u32 {s(S_G2)}, {s(S_MCUR)}, 8192")
        if sync:
            A(f"s_add_u32 {s(S_FLG)}, {s(S_FLG)}, 8192")
        A(f"s_add_u32 {s(S_KMOFF)}, {s(S_KMOFF)}, 0x20000")
        pre()
    advance()
    A("s_barrier")
    for _ in range(P("GDELAY", 0)):
        A("s_nop 7")
    A(f"s_branch L_top{tag}")
    A.label(f"L_retry{tag}")
    gather()
    A(f"s_add_u32 {s(S_SPIN)}, {s(S_SPIN)}, 1")
    if DIAG == 2:
        A(f"s_add_u32 {s(S_TM + 12)}, {s(S_TM + 12)}, 1")
    A(f"s_cmp_lt_u32 {s(S_SPIN)}, {SPIN_MAX}")
    A(f"s_cbranch_scc1 L_chk{tag}")
    A("s_branch L_fail")
    if w:
        A.label(f"L_r{tag}")
        for x in rl:
            A(x)
        A(f"s_add_u32 {s(S_SPIN)}, {s(S_SPIN)}, 1")
        if DIAG == 2:
            A(f"s_add_u32 {s(S_TM + 14)}, {s(S_TM + 14)}, 1")
        A(f"s_cmp_lt_u32 {s(S_SPIN)}, {SPIN_MAX}")
        A(f"s_cbranch_scc1 L_rchk{tag}")
        A("s_branch L_fail")
    if sync:
        A.label(f"L_slow{tag}")
        A(f"s_min_u32 {s(S_T)}, {s(S_STEP)}, 62")
        A(f"s_lshl_b32 {s(S_T)}, {s(S_T)}, 13")
        A(f"s_add_u32 {s(S_T)}, {s(S_T)}, {s(S_FA)}")
        A(f"s_sub_u32 {s(S_T)}, {s(S_T)}, 8192")
        poll_mask(A, V_POLL, s(S_T), s(S_FM, 2), S_T + 1)
        A(f"s_branch L_chk{tag}")
    A.label(f"L_last{tag}")
    if DIAG == 2:
        A(f"s_memtime {s(S_TM + 4, 2)}")
        A(f"s_memrealtime {s(S_TM + 8, 2)}")
        diag_dump(A)
    if sync:
        A(f"s_add_u32 {s(S_FLG)}, {s(S_FLG)}, 8192")
        A("s_waitcnt vmcnt(0)")
        A("s_mov_b64 exec, 1")
        A(f"buffer_store_dword {idx}, {L16}, {WS}, {s(S_FLG)} offen sc1")
        A("s_mov_b64 exec, -1")
    A("s_branch L_exit")


DIAG_OFF = 0xC000000


def diag_dump(A):
    A("s_waitcnt lgkmcnt(0)")
    A(f"s_lshl_b32 {s(S_T)}, {s(S_H)}, 2")
    A(f"s_add_u32 {s(S_T)}, {s(S_T)}, {s(S_W)}")
    A(f"s_lshl_b32 {s(S_T)}, {s(S_T)}, 6")
    A(f"s_add_u32 {s(S_T)}, {s(S_T)}, {s(S_STEP)}")
    A(f"s_lshl_b32 {s(S_T)}, {s(S_T)}, 6")
    A(f"s_add_u32 {s(S_T)}, {s(S_T)}, {DIAG_OFF:#x}")
    A(f"v_mov_b32 {v(V_T0)}, 0")
    for k in range(11):
        A(f"v_writelane_b32 {v(V_T0)}, {s(S_TM + 2 * k)}, {k}")
    A(f"v_lshrrev_b32 {v(V_T1)}, 2, {v(V_L16)}")
    A("s_mov_b64 exec, 0xffff")
    A(f"buffer_store_dword {v(V_T0)}, {v(V_T1)}, {WS}, {s(S_T)} offen")
    A("s_mov_b64 exec, -1")


def role_rec(A, sync):
    srd(A, S_A, KA_WQ, SZ_W)
    srd(A, S_B, KA_WK, SZ_W)
    srd(A, S_C, KA_WV, SZ_W)
    srd(A, S_WO, KA_WO, SZ_W)
    A("s_waitcnt lgkmcnt(0)")
    A(f"s_cmp_lt_u32 {s(S_W)}, 2")
    A("s_cbranch_scc0 L_rec4")
    for np_ in (5, 4):
        if np_ == 4:
            A.label("L_rec4")
        regb, ldsb = prologue_weights(A, np_)
        srd(A, S_A, KA_MEM0, SZ_MEM0)
        L = v(V_LANE)
        A(f"v_and_b32 v20, 7, {L}")
        A(f"v_mul_u32_u24 v20, 1152, v20")
        A(f"v_lshrrev_b32 v21, 3, {L}")
        A(f"v_lshl_add_u32 v20, v21, 4, v20")
        A(f"s_lshl_b32 {s(S_T)}, {s(S_W)}, 8")
        A("s_waitcnt lgkmcnt(0)")
        A(f"buffer_load_dwordx4 v[32:35], v20, {SA}, {s(S_T)} offen")
        A(f"buffer_load_dwordx4 v[36:39], v20, {SA}, {s(S_T)} offen offset:128")
        A(f"buffer_load_dwordx4 v[40:43], v20, {SA}, 0 offen offset:1024")
        consts(A)
        A(f"s_mov_b32 {s(S_STEP)}, 0")
        A(f"s_mov_b32 {s(S_POFF)}, {PR:#x}")
        A(f"s_mov_b32 {s(S_MCUR)}, {MR:#x}")
        A(f"s_mov_b32 {s(S_MNXT)}, {MR + MR_STRIDE:#x}")
        A(f"s_mov_b32 {s(S_MPRV)}, {MR + 2 * MR_STRIDE:#x}")
        A(f"s_lshl_b32 {s(S_T)}, {s(S_H)}, 13")
        A(f"s_lshl_b32 {s(S_T + 1)}, {s(S_W)}, 10")
        A(f"s_add_u32 {s(S_KOFF)}, {s(S_T)}, {s(S_T + 1)}")
        A(f"s_add_u32 {s(S_VOFF)}, {s(S_KOFF)}, {s(S_T + 1)}")
        A(f"s_add_u32 {s(S_KOFF)}, {s(S_KOFF)}, {KB:#x}")
        A(f"s_add_u32 {s(S_VOFF)}, {s(S_VOFF)}, {VB:#x}")
        A(f"s_lshl_b32 {s(S_T)}, {s(S_H)}, 12")
        A(f"s_add_u32 {s(S_KMOFF)}, {s(S_T)}, {s(S_T + 1)}")
        A(f"s_add_u32 {s(S_KMOFF)}, {s(S_KMOFF)}, {KM:#x}")
        A(f"s_lshl_b32 {s(S_PST)}, {s(S_H)}, 10")
        if np_ == 5:
            A(f"s_cmp_lt_u32 {s(S_H)}, 8")
            A(f"s_cselect_b32 {s(S_RED)}, {s(S_W)}, 0")
            A(f"s_add_u32 {s(S_T)}, {s(S_H)}, 64")
        else:
            A(f"s_and_b32 {s(S_T)}, {s(S_W)}, 1")
            A(f"s_lshl_b32 {s(S_T)}, {s(S_T)}, 5")
            A(f"s_add_u32 {s(S_T)}, {s(S_T)}, {s(S_H)}")
        A(f"s_lshr_b32 {s(S_T + 1)}, {s(S_T)}, 3")
        A(f"s_and_b32 {s(S_T + 2)}, {s(S_T)}, 7")
        A(f"s_lshl_b32 {s(S_PRD)}, {s(S_T + 1)}, 15")
        A(f"s_lshl_b32 {s(S_T + 3)}, {s(S_T + 2)}, 7")
        A(f"s_add_u32 {s(S_PRD)}, {s(S_PRD)}, {s(S_T + 3)}")
        A(f"s_lshl_b32 {s(S_PUB)}, {s(S_T + 1)}, 10")
        A(f"s_and_b32 {s(S_T + 3)}, {s(S_T)}, 4")
        A(f"s_lshl_b32 {s(S_T + 3)}, {s(S_T + 3)}, 6")
        A(f"s_add_u32 {s(S_PUB)}, {s(S_PUB)}, {s(S_T + 3)}")
        A(f"s_and_b32 {s(S_T + 3)}, {s(S_T)}, 1")
        A(f"s_lshl_b32 {s(S_T + 3)}, {s(S_T + 3)}, 7")
        A(f"s_add_u32 {s(S_PUB)}, {s(S_PUB)}, {s(S_T + 3)}")
        A(f"s_and_b32 {s(S_T + 3)}, {s(S_T)}, 2")
        A(f"s_lshl_b32 {s(S_T + 3)}, {s(S_T + 3)}, 5")
        A(f"s_add_u32 {s(S_PUB)}, {s(S_PUB)}, {s(S_T + 3)}")
        if np_ == 5:
            A(f"s_cmp_eq_u32 {s(S_RED)}, 0")
            A(f"s_cselect_b32 {s(S_PUB)}, {OOR:#x}, {s(S_PUB)}")
        for k in range(4):
            A(f"s_mov_b32 {s(S_RA + k)}, {OOR:#x}")
        A(f"s_mov_b32 {s(S_MRA)}, {OOR:#x}")
        A(f"s_lshr_b32 {s(S_T)}, {s(S_H)}, 1")
        A(f"s_lshl_b32 {s(S_T)}, {s(S_T)}, 9")
        A(f"s_and_b32 {s(S_T + 1)}, {s(S_H)}, 1")
        A(f"s_lshl_b32 {s(S_T + 2)}, {s(S_T + 1)}, 1")
        A(f"s_lshl_b32 {s(S_FM)}, 0x330, {s(S_T + 2)}")
        A(f"s_mov_b32 {s(S_FM + 1)}, 0")
        A(f"s_add_u32 {s(S_FA)}, {s(S_T)}, {F_A + 2 * 8192:#x}")
        A(f"s_lshl_b32 {s(S_T + 1)}, {s(S_T + 1)}, 2")
        A(f"s_add_u32 {s(S_T + 1)}, {s(S_T + 1)}, {s(S_W)}")
        A(f"s_lshl_b32 {s(S_T + 1)}, {s(S_T + 1)}, 4")
        A(f"s_add_u32 {s(S_FLG)}, {s(S_T)}, {s(S_T + 1)}")
        A(f"s_add_u32 {s(S_FLG)}, {s(S_FLG)}, {F_A + 12 * 16 - 8192:#x}")
        wait_registered(A)
        if sync:
            for k in (2, 1):
                A(f"s_sub_u32 {s(S_T)}, {s(S_FA)}, {8192 * k}")
                poll_mask(A, V_POLL, s(S_T), s(S_FM, 2), S_T + 1)
        for k in range(12):
            A(f"v_min_u32 {v(V_M + k)}, -2, {v(32 + k)}")
        if DIAG == 2:
            A(f"s_mov_b32 {s(S_TM + 12)}, 0")
            A(f"s_mov_b32 {s(S_TM + 14)}, 0")
        w0 = 0 if np_ == 5 else 2
        A(f"s_cmp_ge_u32 {s(S_MODE)}, 32")
        if REC_LIMIT < 32:
            A(f"s_cmp_eq_u32 {s(S_MODE)}, -1")
        A(f"s_cbranch_scc0 L_slowmode{np_}")
        for fast in (True, False):
            if not fast:
                A.label(f"L_slowmode{np_}")
            A(f"s_cmp_eq_u32 {s(S_W)}, {w0}")
            A(f"s_cbranch_scc0 L_odd{np_}{fast}")
            loop(A, w0, fast, sync, regb, ldsb)
            A.label(f"L_odd{np_}{fast}")
            loop(A, w0 + 1, fast, sync, regb, ldsb)


def register(A):
    A(f"s_getreg_b32 {s(S_T)}, hwreg(HW_REG_XCC_ID)")
    A(f"s_and_b32 {s(S_T)}, {s(S_T)}, 15")
    A(f"s_cmp_eq_u32 {s(S_W)}, 0")
    A("s_cbranch_scc0 L_regwait")
    A("s_mov_b64 exec, 1")
    A("v_mov_b32 v2, 0")
    A("v_mov_b32 v3, 1")
    A(f"s_mov_b32 {s(S_T + 1)}, 64")
    A(f"s_cmp_eq_u32 {s(S_T)}, 0")
    A("s_cbranch_scc0 L_regbulk")
    A(f"buffer_atomic_add v3, v2, {SDBG}, 0 offen sc0 sc1")
    A(f"v_readfirstlane_b32 {s(S_T + 1)}, v3")
    A(f"s_cmp_lt_u32 {s(S_T + 1)}, {REC_LIMIT}")
    A("s_cbranch_scc1 L_regdone")
    A.label("L_regbulk")
    A("v_mov_b32 v3, 1")
    A(f"buffer_atomic_add v3, v2, {SDBG}, 0 offen offset:128 sc0 sc1")
    A(f"v_readfirstlane_b32 {s(S_T + 1)}, v3")
    A(f"s_sub_u32 {s(S_T + 2)}, 255, {s(S_T + 1)}")
    A(f"s_add_u32 {s(S_T + 1)}, {s(S_T + 1)}, 32")
    A(f"s_cmp_lt_u32 {s(S_T + 1)}, 256")
    A(f"s_cselect_b32 {s(S_T + 1)}, {s(S_T + 1)}, {s(S_T + 2)}")
    A.label("L_regdone")
    A(f"v_mov_b32 v3, {s(S_T + 1)}")
    A("ds_write_b32 v2, v3")
    A("s_mov_b64 exec, -1")
    A("s_waitcnt lgkmcnt(0)")
    A.label("L_regwait")
    A("s_barrier")
    A("v_mov_b32 v2, 0")
    A("ds_read_b32 v3, v2")
    A(f"v_readfirstlane_b32 {s(S_H)}, v3")
    A("s_barrier")
    A(f"s_cmp_lt_u32 {s(S_H)}, 32")
    A("s_cbranch_scc1 L_rec")
    A(f"s_sub_u32 {s(S_IDX)}, {s(S_H)}, 32")


def init_ws(A):
    A(f"s_lshl_b32 {s(S_T)}, s2, 12")
    A(f"s_lshl_b32 {s(S_T + 1)}, {s(S_W)}, 10")
    A(f"s_add_u32 {s(S_T)}, {s(S_T)}, {s(S_T + 1)}")
    A(f"s_add_u32 {s(S_T + 1)}, {s(S_T)}, {FLAGS_END:#x}")
    for k in range(4):
        A(f"v_mov_b32 {v(4 + k)}, 0")
        A(f"v_mov_b32 {v(8 + k)}, -1")
    A(f"buffer_store_dwordx4 v[4:7], {v(V_L16)}, {WS}, {s(S_T)} offen sc1")
    A(f"buffer_store_dwordx4 v[8:11], {v(V_L16)}, {WS}, {s(S_T + 1)} offen sc1")
    A("s_waitcnt vmcnt(0)")
    A("s_barrier")


def role_rec_standalone(A):
    if DIAG == 2:
        A(f"s_memtime {s(S_TM, 2)}")
        A(f"s_memrealtime {s(S_TM + 10, 2)}")
    init_ws(A)
    register(A)
    A("s_branch L_exit")
    A.label("L_rec")
    role_rec(A, False)
```

```python
import sys, re
from common import *
import bulk, rec

HEADER = open("cdna_kernels/" + NAME + ".s.ref").read().split("; @launch")[0]
DIAG = rec.DIAG
TB = 0xD000000


def tstamp(A, k):
    if not os.environ.get("TS"):
        return
    A(f"s_memrealtime s[96:97]")
    A(f"s_lshl_b32 s98, s99, 2")
    A(f"s_add_u32 s98, s98, {s(S_W)}")
    A(f"s_lshl_b32 s98, s98, 6")
    A(f"s_add_u32 s98, s98, {TB + 4 * k:#x}")
    A("s_waitcnt lgkmcnt(0)")
    A("v_mov_b32 v8, s96")
    A("s_mov_b64 exec, 1")
    A(f"buffer_store_dword v8, {v(V_L16)}, {WS}, s98 offen")
    A("s_mov_b64 exec, -1")


def build():
    A = Asm()
    A("s_cmp_ge_u32 s2, 256")
    A("s_cbranch_scc1 L_exit")
    entry(A)
    if DIAG == 2:
        A(f"s_memtime {s(rec.S_TM, 2)}")
        A(f"s_memrealtime {s(rec.S_TM + 10, 2)}")
    rec.init_ws(A)
    rec.register(A)
    A(f"s_mov_b32 s99, {s(rec.S_H)}")
    tstamp(A, 0)
    A(f"s_cmp_lt_u32 {s(S_IDX)}, 192")
    A("s_cbranch_scc1 L_p1_qkv")
    A(f"s_sub_u32 {s(S_IDX)}, {s(S_IDX)}, 192")
    bulk.role_ln1(A, True)
    A(f"s_add_u32 {s(S_IDX)}, {s(S_IDX)}, 192")
    A("s_branch L_p2")
    A.label("L_p1_qkv")
    bulk.role_qkv(A, True)
    A.label("L_p2")
    tstamp(A, 1)
    A(f"v_lshrrev_b32 {v(V_LANE)}, 4, {v(V_L16)}")
    A("s_barrier")
    lo = 0
    roles = [("bc", bulk.NWG_BC), ("dd", bulk.NWG_DD), ("ee", bulk.NWG_EE), ("r1", bulk.NWG_R1), ("r2", bulk.NWG_R2)]
    for n, k in roles:
        A(f"s_cmp_lt_u32 {s(S_IDX)}, {k}")
        A(f"s_cbranch_scc1 L_role_{n}")
        A(f"s_sub_u32 {s(S_IDX)}, {s(S_IDX)}, {k}")
    A("s_branch L_exit")
    for n, k in roles:
        A.label(f"L_role_{n}")
        getattr(bulk, "role_" + n)(A, True)
        tstamp(A, 2)
        A("s_branch L_exit")
    A.label("L_fail")
    A.label("L_exit")
    A("s_endpgm")
    A.label("L_rec")
    rec.role_rec(A, True)
    body = A.finish()
    k = NAME + "_kernel"
    o = HEADER + "; @launch grid=(256,1,1) block=(256,1,1) lds=163840\n"
    o += '.amdgcn_target "amdgcn-amd-amdhsa--gfx950"\n.text\n'
    o += f".globl {k}\n.p2align 8\n.type {k},@function\n{k}:\n{body}"
    o += '.section .rodata,"a"\n.p2align 6\n' + descriptor(k)
    return o


if __name__ == "__main__":
    open(sys.argv[1], "w").write(build())
```

```python
import re

TRANS = ("v_exp_f32", "v_log_f32", "v_rcp_f32", "v_rsq_f32", "v_sqrt_f32", "v_sin_f32", "v_cos_f32",
         "v_rcp_iflag_f32")


def v(i, n=1):
    assert 0 <= i and i + n <= 256, (i, n)
    return f"v{i}" if n == 1 else f"v[{i}:{i + n - 1}]"


def a(i, n=1):
    assert 0 <= i and i + n <= 256, (i, n)
    return f"a{i}" if n == 1 else f"a[{i}:{i + n - 1}]"


def r(i, n=1):
    if i < 256:
        assert i + n <= 256, (i, n)
        return v(i, n)
    return a(i - 256, n)


def s(i, n=1):
    assert 0 <= i and i + n <= 102, (i, n)
    return f"s{i}" if n == 1 else f"s[{i}:{i + n - 1}]"


_REG = re.compile(r"^(-|abs\(|-abs\(|\|)?([vas])(\d+|\[(\d+):(\d+)\])\)?\|?$")


def regs_of(tok):
    tok = tok.strip()
    if tok in ("vcc",):
        return [("s", "vcc_lo"), ("s", "vcc_hi")]
    if tok in ("vcc_lo", "vcc_hi", "m0", "exec_lo", "exec_hi"):
        return [("s", tok)]
    if tok == "exec":
        return [("s", "exec_lo"), ("s", "exec_hi")]
    m = _REG.match(tok)
    if not m:
        return []
    k = m.group(2)
    if m.group(4) is not None:
        lo, hi = int(m.group(4)), int(m.group(5))
    else:
        lo = hi = int(m.group(3))
    if k == "s":
        return [("s", i) for i in range(lo, hi + 1)]
    off = 256 if k == "a" else 0
    return [("v", off + i) for i in range(lo, hi + 1)]


class Ins:
    __slots__ = ("text", "op", "ops", "mods", "defs", "uses", "kind", "passes", "srcc", "srcab",
                 "label", "target", "cnt", "wide_store", "data", "comment", "auto", "dpp", "nowait")

    def __init__(self, text):
        self.text = text
        self.label = None
        self.target = None
        self.auto = False
        self.defs, self.uses = set(), set()
        self.kind = None
        self.passes = 0
        self.srcc, self.srcab, self.data = set(), set(), set()
        self.cnt = None
        self.wide_store = False
        self.dpp = False
        self.nowait = False
        t = text.split(";")[0].strip()
        if t.endswith(":"):
            self.label = t[:-1]
            self.kind = "label"
            self.op = ""
            return
        if t.startswith(".") or t == "":
            self.kind = "dir"
            self.op = ""
            return
        sp = t.split(None, 1)
        self.op = op = sp[0]
        rest = sp[1] if len(sp) > 1 else ""
        parts = [p.strip() for p in re.split(r",(?![^\[\(]*[\]\)])", rest)] if rest else []
        mods = []
        if parts:
            last = parts[-1].split()
            parts[-1] = last[0] if last else ""
            mods = last[1:]
        self.ops, self.mods = parts, mods
        R = [regs_of(p) for p in parts]
        allr = lambda lst: set(x for l in lst for x in l)
        if op.startswith("v_mfma") or op.startswith("v_smfmac"):
            self.kind = "mfma"
            self.passes = 8 if "32x32" in op else 4
            self.defs = set(R[0])
            if op.startswith("v_smfmac"):
                self.srcc = set(R[0])
                self.srcab = allr(R[1:4])
            else:
                self.srcc = set(R[3])
                self.srcab = allr(R[1:3])
            self.uses = self.srcc | self.srcab
        elif op.startswith("v_"):
            self.kind = "valu"
            self.dpp = any(m.startswith(("row_", "quad_perm", "wave_")) for m in mods) or op.endswith("_dpp")
            base = op.replace("_e32", "").replace("_e64", "").replace("_dpp", "").replace("_sdwa", "")
            if base == "v_nop":
                pass
            elif base.startswith("v_permlane") and "swap" in base or base == "v_swap_b32":
                self.defs = allr(R[0:2])
                self.uses = allr(R[0:2])
            elif base in ("v_add_co_u32", "v_sub_co_u32", "v_addc_co_u32", "v_subb_co_u32", "v_subrev_co_u32",
                          "v_mad_u64_u32", "v_div_scale_f32"):
                self.defs = allr(R[0:2])
                self.uses = allr(R[2:])
            else:
                self.defs = set(R[0])
                self.uses = allr(R[1:])
                if base in ("v_fmac_f32", "v_dot2c_f32_bf16", "v_writelane_b32", "v_pk_fmac_f16") or self.dpp:
                    self.uses |= set(R[0])
                if base.startswith("v_cmpx"):
                    raise ValueError("avoid v_cmpx: " + text)
        elif op.startswith("buffer_") or op.startswith("global_"):
            self.kind = "vmem"
            self.cnt = "vm"
            if op.startswith("buffer_load"):
                if "lds" in mods:
                    self.uses = allr(R) | {("s", "m0")}
                    self.kind = "vmem"
                else:
                    self.defs = set(R[0])
                    self.uses = allr(R[1:])
            elif op.startswith("buffer_store"):
                self.uses = allr(R)
                self.data = set(R[0])
                self.wide_store = len(R[0]) >= 3
            elif op.startswith("buffer_atomic"):
                self.uses = allr(R)
                if "sc0" in mods:
                    self.defs = set(R[0][:1]) if "cmpswap" in op else set(R[0])
            elif op in ("buffer_wbl2", "buffer_inv"):
                pass
            else:
                raise ValueError("unsupported vmem " + text)
        elif op.startswith("ds_"):
            self.kind = "ds"
            self.cnt = "lgkm"
            if op.startswith("ds_read") or op.startswith("ds_bpermute") or op.startswith("ds_swizzle") \
                    or op.startswith("ds_permute") or "_rtn" in op:
                self.defs = set(R[0])
                self.uses = allr(R[1:])
            else:
                self.uses = allr(R)
        elif op.startswith("s_load") or op in ("s_memtime", "s_memrealtime"):
            self.kind = "smem"
            self.cnt = "smem"
            self.defs = set(R[0])
            self.uses = allr(R[1:])
        elif op.startswith("s_"):
            self.kind = "salu"
            if op in ("s_branch",) or op.startswith("s_cbranch"):
                self.target = parts[0]
                if "vcc" in op:
                    self.uses = set(regs_of("vcc"))
            elif op in ("s_waitcnt", "s_barrier", "s_nop", "s_sleep", "s_setprio", "s_endpgm", "s_sethalt"):
                pass
            elif op.startswith("s_cmp") or op.startswith("s_bitcmp"):
                self.uses = allr(R)
            elif op == "s_getreg_b32":
                self.defs = set(R[0])
            elif "saveexec" in op:
                self.defs = set(R[0]) | set(regs_of("exec"))
                self.uses = allr(R[1:]) | set(regs_of("exec"))
            else:
                self.defs = set(R[0])
                self.uses = allr(R[1:])
                if op in ("s_addk_i32", "s_mulk_i32", "s_cmovk_i32", "s_cmov_b32"):
                    self.uses |= set(R[0])
        else:
            raise ValueError("unknown instruction " + text)

    @property
    def states(self):
        if self.kind in ("label", "dir"):
            return 0
        if self.op == "s_nop":
            return int(self.ops[0], 0) + 1
        return 1

    def base(self):
        return self.op.replace("_e32", "").replace("_e64", "").replace("_dpp", "").replace("_sdwa", "")


def isv(x):
    return x[0] == "v"


def need(p, c):
    n = 0
    pv = {x for x in p.defs if isv(x)}
    ps = {x for x in p.defs if not isv(x)}
    if p.kind == "valu":
        cb = c.base() if c.op else ""
        if c.kind == "mfma" and pv & c.uses:
            n = max(n, 2)
        if c.kind == "valu":
            if pv & c.uses:
                if c.dpp or cb.startswith("v_permlane"):
                    n = max(n, 2)
                if cb in ("v_readlane_b32", "v_readfirstlane_b32"):
                    n = max(n, 1)
                if p.base() in TRANS:
                    n = max(n, 1)
            if (pv & (c.uses | c.defs)) and (any(m.startswith(("op_sel", "dst_sel")) for m in p.mods)) \
                    and not (p.op.startswith("v_pk_") and p.op.endswith("_f32")):
                n = max(n, 1)
            if ps & c.uses:
                n = max(n, 4 if cb in ("v_readlane_b32", "v_writelane_b32") else 2)
        if p.base().startswith("v_dot2") and pv & (c.uses | c.defs) and c.kind in ("valu", "mfma", "vmem", "ds"):
            same_c = c.base() == p.base() and not (pv & set(x for t in c.ops[1:3] for x in regs_of(t)))
            if not same_c:
                n = max(n, 3)
        if c.kind == "vmem" and ps & c.uses:
            n = max(n, 5)
    if p.kind == "mfma":
        big = {4: 8, 8: 12}[p.passes]
        if c.kind == "mfma":
            if p.defs & c.srcab:
                n = max(n, big)
            if p.defs & c.srcc:
                if not (p.defs == c.srcc and p.passes == c.passes):
                    n = max(n, {4: 6, 8: 10}[p.passes])
            elif p.defs & c.defs:
                if not (p.defs == c.defs and p.passes == c.passes):
                    n = max(n, {4: 6, 8: 10}[p.passes])
        elif c.kind in ("valu", "vmem", "ds"):
            if p.defs & (c.uses | c.defs):
                n = max(n, big)
            if c.kind == "valu" and p.srcc & c.defs:
                n = max(n, {4: 3, 8: 7}[p.passes])
    if p.kind == "vmem" and p.wide_store and p.data & c.defs:
        n = max(n, 2 if c.kind in ("valu", "mfma") else 1)
    if p.kind == "salu" and ("s", "m0") in p.defs and c.kind == "vmem" and "lds" in c.mods:
        n = max(n, 1)
    return n


MAXW = 12
CMAX = {"vm": 63, "lgkm": 15}


class Asm:
    def __init__(self):
        self.ins = []
        self._uid = 0
        self.relax = True

    def __call__(self, text):
        for line in text.split("\n"):
            line = line.strip()
            if line:
                self.ins.append(Ins(line))
        return self

    def nw(self, text):
        i = Ins(text.strip())
        i.nowait = True
        self.ins.append(i)

    def ghost(self, text):
        i = Ins(text.strip())
        i.nowait = True
        i.defs = set()
        self.ins.append(i)

    def label(self, name):
        self.ins.append(Ins(name + ":"))

    def uid(self, base):
        self._uid += 1
        return f"{base}_{self._uid}"

    def _cfg(self):
        lab = {x.label: i for i, x in enumerate(self.ins) if x.label}
        succ = []
        for i, x in enumerate(self.ins):
            sc = []
            if x.op == "s_endpgm":
                pass
            elif x.op == "s_branch":
                sc = [lab[x.target]]
            else:
                if i + 1 < len(self.ins):
                    sc.append(i + 1)
                if x.target:
                    sc.append(lab[x.target])
            succ.append(sc)
        pred = [[] for _ in self.ins]
        for i, sc in enumerate(succ):
            for j in sc:
                pred[j].append(i)
        return succ, pred

    def insert_waits(self):
        while True:
            succ, pred = self._cfg()
            n = len(self.ins)
            state = [None] * n
            state[0] = {}
            entries = [i for i in range(n) if not pred[i]]
            work = []
            for e in entries:
                state[e] = {}
                work.append(e)
            fix = {}
            while work:
                i = work.pop()
                st = dict(state[i])
                x = self.ins[i]
                if x.kind not in ("label", "dir"):
                    touched = (x.uses | x.defs) if not x.nowait else set()
                    req = {}
                    for g in touched:
                        for c in ("vm", "lgkm", "smem"):
                            if (g, c) not in st:
                                continue
                            k = st[(g, c)]
                            cc = "lgkm" if c == "smem" else c
                            k = 0 if c == "smem" else min(k, CMAX[cc])
                            if g not in x.uses and x.cnt == c and c != "smem":
                                continue
                            req[cc] = min(req.get(cc, 99), k)
                    if req:
                        old = fix.get(i, {})
                        for cc, k in req.items():
                            old[cc] = min(old.get(cc, 99), k)
                        fix[i] = old
                        st = self._apply_wait(st, req)
                    if x.op == "s_waitcnt":
                        st = self._apply_wait(st, self._parse_wait(x))
                    if x.cnt and x.cnt != "smem":
                        st = {gc: (k + 1 if gc[1] == x.cnt else k) for gc, k in st.items()}
                    for g in x.defs:
                        for c in ("vm", "lgkm", "smem"):
                            st.pop((g, c), None)
                        if x.cnt:
                            st[(g, x.cnt)] = 0
                for j in succ[i]:
                    if state[j] is None:
                        state[j] = st
                        work.append(j)
                    else:
                        m = dict(state[j])
                        ch = False
                        for gc, k in st.items():
                            if gc not in m or k < m[gc]:
                                m[gc] = k
                                ch = True
                        if ch:
                            state[j] = m
                            work.append(j)
            if not fix:
                return
            out = []
            for i, x in enumerate(self.ins):
                if i in fix:
                    w = Ins("s_waitcnt " + " ".join(f"{c}cnt({k})" for c, k in sorted(fix[i].items(), reverse=True)))
                    w.auto = True
                    out.append(w)
                out.append(x)
            self.ins = out

    @staticmethod
    def _parse_wait(x):
        d = {}
        for c, k in re.findall(r"(vm|lgkm)cnt\((\d+)\)", x.text):
            d[c] = int(k)
        return d

    @staticmethod
    def _apply_wait(st, req):
        out = {}
        for (g, c), k in st.items():
            if c == "smem":
                if req.get("lgkm", 99) == 0:
                    continue
            elif c in req and k >= req[c]:
                continue
            out[(g, c)] = k
        return out

    def insert_nops(self):
        changed = True
        while changed:
            changed = False
            succ, pred = self._cfg()
            add = {}
            for i, c in enumerate(self.ins):
                if c.kind in ("label", "dir") or not (c.uses or c.defs):
                    continue
                worst = 0
                stack = [(j, 0, 0 if c.kind == "mfma" else None) for j in pred[i]]
                seen = {}
                while stack:
                    j, d, dm = stack.pop()
                    if d >= MAXW or seen.get((j, dm), 99) <= d:
                        continue
                    seen[(j, dm)] = d
                    p = self.ins[j]
                    if p.kind == "mfma" and dm is not None and self.relax:
                        d += max(0, p.passes - 1 - dm)
                    if p.kind in ("valu", "mfma", "vmem", "salu"):
                        k = need(p, c) - d
                        if k > worst:
                            worst = k
                    st = p.states + add.get(j, 0)
                    if p.kind == "mfma":
                        dm2 = add.get(j, 0)
                    else:
                        dm2 = None if dm is None or dm + st >= 8 else dm + st
                    for q in pred[j]:
                        stack.append((q, d + st, dm2))
                if worst > 0:
                    add[i] = worst
            if add:
                changed = True
                out = []
                for i, x in enumerate(self.ins):
                    if i in add:
                        w = Ins(f"s_nop {add[i] - 1}")
                        w.auto = True
                        out.append(w)
                    out.append(x)
                self.ins = out

    def finish(self):
        self.insert_waits()
        self.insert_nops()
        return self.text()

    def text(self):
        o = []
        for x in self.ins:
            if x.kind in ("label", "dir"):
                o.append(x.text)
            else:
                o.append("  " + x.text)
        return "\n".join(o) + "\n"
```

```python
from common import *

WREG = 224
MF = "v_mfma_f32_16x16x32_bf16"


def load_weights(A, nchunk, dmas, reads, slot_bytes, nslots, s_base, s_tmp, pol="nt"):
    issued = []

    def issue(c):
        for (sr, vo, so, rel) in dmas(c):
            A(f"s_add_u32 m0, {s(s_base)}, {(c % nslots) * slot_bytes + rel:#x}")
            A(f"s_mov_b32 {s(s_tmp)}, {so:#x}")
            A(f"buffer_load_dwordx4 {v(vo)}, {sr}, {s(s_tmp)} offen {pol} lds")
            issued.append(c)

    for c in range(min(nslots, nchunk)):
        issue(c)
    for c in range(nchunk):
        after = sum(1 for x in issued if x > c)
        assert after <= 63
        A(f"s_waitcnt vmcnt({after})")
        for (dst, va, rel) in reads(c):
            A(f"ds_read_b64_tr_b16 {r(dst, 2)}, {v(va)} offset:{(c % nslots) * slot_bytes + rel}")
        if c + nslots < nchunk:
            A("s_waitcnt lgkmcnt(0)")
            issue(c + nslots)
    A("s_waitcnt lgkmcnt(0)")


def tr_addr(A, dst, t0, t1, row_g, row_r, rowbytes, colbytes, s_base):
    A(f"v_lshrrev_b32 {v(t0)}, 4, {v(V_LANE)}")
    A(f"v_mul_u32_u24 {v(t0)}, {row_g * rowbytes}, {v(t0)}")
    A(f"v_bfe_u32 {v(t1)}, {v(V_LANE)}, 2, 2")
    A(f"v_mul_u32_u24 {v(t1)}, {row_r * rowbytes}, {v(t1)}")
    A(f"v_add_u32 {v(t0)}, {v(t0)}, {v(t1)}")
    A(f"v_and_b32 {v(t1)}, 3, {v(V_LANE)}")
    A(f"v_mul_u32_u24 {v(t1)}, {colbytes}, {v(t1)}")
    A(f"v_add3_u32 {v(dst)}, {v(t0)}, {v(t1)}, {s(s_base)}")


def role_ln1(A, sync):
    X, D, ONES, ACC = 16, 96, 4, 8
    su = S_T
    srd(A, S_B, KA_X, SZ_X)
    A(f"s_lshl_b32 {s(su)}, {s(S_IDX)}, 2")
    A(f"s_add_u32 {s(su)}, {s(su)}, {s(S_W)}")
    A(f"s_mul_i32 {s(su + 1)}, {s(su)}, {16 * 1152}")
    A(f"v_and_b32 v2, 15, {v(V_LANE)}")
    A(f"v_mul_u32_u24 v2, 1152, v2")
    A(f"v_and_b32 v3, 48, {v(V_LANE)}")
    A(f"v_add_u32 v2, v2, v3")
    A("s_waitcnt lgkmcnt(0)")
    for c in range(18):
        A(f"buffer_load_dwordx4 {v(X + 4 * c, 4)}, v2, {SB}, {s(su + 1)} offen offset:{64 * c}")
    for i in range(4):
        A(f"v_mov_b32 {v(ONES + i)}, 0x3f803f80")
    for c in range(18):
        A(f"{MF} {v(ACC, 4)}, {v(ONES, 4)}, {v(X + 4 * c, 4)}, {v(ACC, 4) if c else 0}")
    MEAN, MB = 12, 13
    A(f"v_mul_f32 {v(MEAN)}, {1.0 / 576:.9e}, {v(ACC)}".replace(f"{1.0 / 576:.9e}", f"{f32(1.0 / 576):#x}"))
    A(f"v_mov_b32 {v(MB)}, {v(MEAN)}")
    bf16_round(A, MB)
    for i in range(4):
        A(f"v_mov_b32 {v(ONES + i)}, 0")
    for i in range(72):
        lo, hi = D + 2 * i, D + 2 * i + 1
        A(f"v_lshlrev_b32 {v(lo)}, 16, {v(X + i)}")
        A(f"v_and_b32 {v(hi)}, 0xffff0000, {v(X + i)}")
        A(f"v_sub_f32 v2, {v(lo)}, {v(MEAN)}")
        A(f"v_sub_f32 v3, {v(hi)}, {v(MEAN)}")
        A(f"v_sub_f32 {v(lo)}, {v(lo)}, {v(MB)}")
        A(f"v_sub_f32 {v(hi)}, {v(hi)}, {v(MB)}")
        A(f"v_fmac_f32 {v(ONES + (2 * i) % 4)}, v2, v2")
        A(f"v_fmac_f32 {v(ONES + (2 * i + 1) % 4)}, v3, v3")
    A(f"v_add_f32 {v(ONES)}, {v(ONES)}, {v(ONES + 1)}")
    A(f"v_add_f32 {v(ONES + 2)}, {v(ONES + 2)}, {v(ONES + 3)}")
    A(f"v_add_f32 {v(ONES)}, {v(ONES)}, {v(ONES + 2)}")
    xg_reduce(A, "v_add_f32", ONES, 2)
    A(f"v_mul_f32 {v(ONES)}, {f32(1.0 / 576):#x}, {v(ONES)}")
    bf16_round(A, ONES)
    A(f"v_add_f32 {v(ONES)}, {f32(1e-5):#x}, {v(ONES)}")
    bf16_round(A, ONES)
    A(f"v_sqrt_f32 {v(ONES)}, {v(ONES)}")
    bf16_round(A, ONES)
    A(f"v_rcp_f32 {v(ONES)}, {v(ONES)}")
    A(f"s_mul_i32 {s(su + 1)}, {s(su)}, {18 * 1024}")
    A(f"s_add_u32 {s(su + 1)}, {s(su + 1)}, {XH:#x}")
    for c in range(18):
        for j in range(4):
            i = 4 * c + j
            lo, hi = D + 2 * i, D + 2 * i + 1
            A(f"v_cvt_pk_bf16_f32 v2, {v(lo)}, {v(hi)}")
            A(f"v_lshlrev_b32 {v(lo)}, 16, v2")
            A(f"v_and_b32 {v(hi)}, 0xffff0000, v2")
            A(f"v_mul_f32 {v(lo)}, {v(lo)}, {v(ONES)}")
            A(f"v_mul_f32 {v(hi)}, {v(hi)}, {v(ONES)}")
            A(f"v_cvt_pk_bf16_f32 {v(X + i)}, {v(lo)}, {v(hi)}")
        if c and c % 4 == 0:
            A(f"s_add_u32 {s(su + 1)}, {s(su + 1)}, 4096")
        A(f"buffer_store_dwordx4 {v(X + 4 * c, 4)}, {v(V_L16)}, {WS}, {s(su + 1)} offen offset:{1024 * (c % 4)} sc1")
    if sync:
        wait_registered(A)
        A(f"s_lshl_b32 {s(su)}, {s(S_IDX)}, 2")
        A(f"s_add_u32 {s(su)}, {s(su)}, {s(S_W)}")
        lane0_off(A, 2, "0")
        A(f"v_mov_b32 v3, 1")
        A(f"s_lshl_b32 {s(su + 1)}, {s(su)}, 2")
        A(f"s_add_u32 {s(su + 1)}, {s(su + 1)}, {F_LN:#x}")
        A("s_waitcnt vmcnt(0)")
        A(f"buffer_store_dword v3, v2, {WS}, {s(su + 1)} offen sc1")


def f32(x):
    import struct
    return struct.unpack("<I", struct.pack("<f", x))[0]


class Gemm:
    S_IT, S_NX, S_LD, S_FLG, S_FPREV, S_POLL, S_OUT, S_SPIN = 36, 37, 38, 42, 43, 44, 45, 49
    V_RD, V_WR, V_LDOFF, V_FLAG0, V_ONE, V_POLLOFF, V_POLL = 2, 3, 4, 5, 6, 7, 8

    def __init__(self, A, name, sync, step, end, nload, stage_reg):
        self.A, self.name, self.sync = A, name, sync
        self.step, self.end, self.nload, self.stage = step, end, nload, stage_reg

    def set_load_base(self, s_it):
        raise NotImplementedError

    def set_poll_base(self, s_it):
        raise NotImplementedError

    def set_out_base(self):
        raise NotImplementedError

    def extra_loads(self):
        return []

    def loads(self):
        out = []
        for i in range(self.nload):
            out.append(f"buffer_load_dwordx4 {v(self.stage + 4 * i, 4)}, {v(self.V_LDOFF)}, {WS}, "
                       f"{s(self.S_LD + i // 4)} offen offset:{1024 * (i % 4)} sc1")
        return self.extra_loads() + out

    def writes(self):
        return [f"ds_write_b128 {v(self.V_WR)}, {v(self.stage + 4 * i, 4)} offset:{1024 * i}"
                for i in range(self.nload)]

    def post_loads(self):
        return []

    def ld_bases(self):
        A = self.A
        for k in range(1, (self.nload + 3) // 4):
            A(f"s_add_u32 {s(self.S_LD + k)}, {s(self.S_LD)}, {4096 * k}")

    def issue_poll(self):
        if not self.sync:
            return []
        A = self.A

        def f():
            A(f"s_add_u32 {s(S_T)}, {s(self.S_NX)}, {self.step}")
            A(f"s_min_u32 {s(S_T)}, {s(S_T)}, {self.end - 1}")
            self.set_poll_base(S_T)
            A(f"buffer_load_dword {v(self.V_POLL)}, {v(self.V_POLLOFF)}, {WS}, {s(self.S_POLL)} offen sc1")
        return [f]

    def flag_store(self, sreg):
        return f"buffer_store_dword {v(self.V_ONE)}, {v(self.V_FLAG0)}, {WS}, {s(sreg)} offen sc1"

    def finish_stage(self):
        A = self.A
        A("s_waitcnt lgkmcnt(0)")
        A("s_barrier")
        A(f"v_xor_b32 {v(self.V_RD)}, 0x10000, {v(self.V_RD)}")
        A(f"v_xor_b32 {v(self.V_WR)}, 0x10000, {v(self.V_WR)}")

    def blocking_fetch(self):
        A = self.A
        if self.sync:
            self.set_poll_base(self.S_NX)
            poll_block(A, self.V_POLL, self.V_POLLOFF, s(self.S_POLL), True, self.S_SPIN)
        self.set_load_base(self.S_NX)
        self.ld_bases()
        for x in self.loads():
            A(x)
        for f in self.issue_poll():
            f()
        for x in self.writes():
            A(x)

    def emit(self, flag_at, write_at):
        A, n = self.A, self.name
        A(f"v_mov_b32 {v(self.V_ONE)}, 1")
        lane0_off(A, self.V_FLAG0, "0")
        A(f"s_mov_b32 {s(self.S_FPREV)}, {OOR:#x}")
        A(f"s_mov_b32 {s(self.S_NX)}, {s(self.S_IT)}")
        self.blocking_fetch()
        self.finish_stage()
        if n in ("qk", "vv"):
            tstamp(A, 4, 200)
        A.label(f"L_{n}_top")
        for x in self.post_loads():
            x() if callable(x) else A(x)
        self.set_out_base()
        A(f"s_add_u32 {s(self.S_NX)}, {s(self.S_IT)}, {self.step}")
        A(f"s_cmp_ge_u32 {s(self.S_NX)}, {self.end}")
        A(f"s_cbranch_scc1 L_{n}_nopf")
        if self.sync:
            A(f"v_cmp_eq_u32 vcc, 0, {v(self.V_POLL)}")
            A(f"s_cbranch_vccnz L_{n}_nopf")
        self.set_load_base(self.S_NX)
        self.ld_bases()
        lds = self.loads()
        for x in lds:
            A(x)
        main, fill = self.compute()
        if self.sync:
            fill.setdefault(flag_at, []).extend([f"s_waitcnt vmcnt({len(lds)})", self.flag_store(self.S_FPREV)])
            fill[flag_at].extend(self.issue_poll())
        spread(fill, self.writes(), write_at, 2)
        weave(A, main, fill)
        for x in self.epilogue():
            A(x)
        A(f"s_mov_b32 {s(self.S_FPREV)}, {s(self.S_FLG)}")
        A(f"s_mov_b32 {s(self.S_IT)}, {s(self.S_NX)}")
        self.finish_stage()
        A(f"s_branch L_{n}_top")
        A.label(f"L_{n}_nopf")
        main, fill = self.compute()
        if self.sync:
            fill.setdefault(flag_at, []).extend(["s_waitcnt vmcnt(0)", self.flag_store(self.S_FPREV)])
        weave(A, main, fill)
        for x in self.epilogue():
            A(x)
        if self.sync:
            A("s_waitcnt vmcnt(0)")
            A(self.flag_store(self.S_FLG))
        A(f"s_mov_b32 {s(self.S_FPREV)}, {OOR:#x}")
        A(f"s_cmp_ge_u32 {s(self.S_NX)}, {self.end}")
        A(f"s_cbranch_scc1 L_{n}_done")
        self.blocking_fetch()
        A(f"s_mov_b32 {s(self.S_IT)}, {s(self.S_NX)}")
        self.finish_stage()
        A(f"s_branch L_{n}_top")
        A.label(f"L_{n}_done")


class QKV(Gemm):
    ACC, BF, STG, OUT, V_OUT = 12, 44, 76, 112, 9
    S_MAT, S_HP, S_OB = 50, 51, 52

    def __init__(self, A, name, sync, isv):
        super().__init__(A, name, sync, 4, int(os.environ.get('QEND', 64)), 9, self.STG)
        self.isv = isv

    def set_load_base(self, s_it):
        self.A(f"s_mul_i32 {s(self.S_LD)}, {s(s_it)}, 36864")
        self.A(f"s_add_u32 {s(self.S_LD)}, {s(self.S_LD)}, {XH:#x}")

    def set_poll_base(self, s_it):
        self.A(f"s_lshl_b32 {s(self.S_POLL)}, {s(s_it)}, 3")

    def set_out_base(self):
        A = self.A
        A(f"s_lshl_b32 {s(self.S_OUT)}, {s(self.S_IT)}, 18")
        A(f"s_add_u32 {s(self.S_OUT)}, {s(self.S_OUT)}, {s(self.S_OB)}")
        A(f"s_add_u32 {s(self.S_OUT + 1)}, {s(self.S_OUT)}, 4096")
        A(f"s_lshl_b32 {s(self.S_FLG)}, {s(self.S_IT)}, 13")
        A(f"s_add_u32 {s(self.S_FLG)}, {s(self.S_FLG)}, {s(self.S_OB + 1)}")

    def compute(self):
        main, fill = [], {}
        bf = lambda c, u: self.BF + ((c % 4) * 2 + u) * 4
        rd = lambda c, u: f"ds_read_b128 {v(bf(c, u), 4)}, {v(self.V_RD)} offset:{(u * 18 + c) * 1024}"
        pre = [rd(c, u) for c in range(3) for u in range(2)]
        for x in pre:
            self.A(x)
        for c in range(18):
            for u in range(2):
                for t in range(4):
                    acc = v(self.ACC + (u * 4 + t) * 4, 4)
                    w = r(WREG + (c * 4 + t) * 4, 4)
                    b = v(bf(c, u), 4)
                    ab = f"{b}, {w}" if self.isv else f"{w}, {b}"
                    main.append(f"{MF} {acc}, {ab}, {acc if c else 0}")
            if c + 3 < 18:
                fill.setdefault(8 * c, []).append(rd(c + 3, 0))
                fill.setdefault(8 * c + 1, []).append(rd(c + 3, 1))
        return main, fill

    def epilogue(self):
        o = []
        acc = lambda u, t, k: v(self.ACC + (u * 4 + t) * 4 + k)
        if self.isv:
            for t in range(4):
                d = self.OUT + 4 * t
                o += [f"v_cvt_pk_bf16_f32 {v(d)}, {acc(0, t, 0)}, {acc(0, t, 1)}",
                      f"v_cvt_pk_bf16_f32 {v(d + 1)}, {acc(1, t, 0)}, {acc(1, t, 1)}",
                      f"v_cvt_pk_bf16_f32 {v(d + 2)}, {acc(0, t, 2)}, {acc(0, t, 3)}",
                      f"v_cvt_pk_bf16_f32 {v(d + 3)}, {acc(1, t, 2)}, {acc(1, t, 3)}",
                      f"buffer_store_dwordx4 {v(d, 4)}, {v(self.V_OUT)}, {WS}, {s(self.S_OUT)} offen offset:{1024 * t} sc1"]
        else:
            for u in range(2):
                for cc in range(2):
                    d = self.OUT + 4 * (u * 2 + cc)
                    o += [f"v_cvt_pk_bf16_f32 {v(d)}, {acc(u, 2 * cc, 0)}, {acc(u, 2 * cc, 1)}",
                          f"v_cvt_pk_bf16_f32 {v(d + 1)}, {acc(u, 2 * cc, 2)}, {acc(u, 2 * cc, 3)}",
                          f"v_cvt_pk_bf16_f32 {v(d + 2)}, {acc(u, 2 * cc + 1, 0)}, {acc(u, 2 * cc + 1, 1)}",
                          f"v_cvt_pk_bf16_f32 {v(d + 3)}, {acc(u, 2 * cc + 1, 2)}, {acc(u, 2 * cc + 1, 3)}",
                          f"buffer_store_dwordx4 {v(d, 4)}, {v(self.V_OUT)}, {WS}, {s(self.S_OUT + u)} offen offset:{1024 * cc} sc1"]
        return o

    def body(self):
        A = self.A
        sb, st = S_T, S_T + 1
        A(f"s_lshl_b32 {s(st)}, {s(self.S_HP)}, 9")
        A(f"s_lshl_b32 {s(st + 1)}, {s(S_W)}, 7")
        A(f"s_add_u32 {s(st)}, {s(st)}, {s(st + 1)}")
        A(f"v_lshrrev_b32 v10, 3, {v(V_LANE)}")
        A(f"v_lshlrev_b32 v10, 13, v10")
        A(f"v_and_b32 v11, 7, {v(V_LANE)}")
        A(f"v_lshlrev_b32 v11, 4, v11")
        A(f"v_add3_u32 v10, v10, v11, {s(st)}")
        A(f"s_mul_i32 {s(sb)}, {s(S_W)}, 36864")
        tr_addr(A, 11, 12, 13, 8, 1, 128, 8 if self.isv else 16, sb)
        dmas = lambda c: [(SA, 10, (32 * c + 8 * i) * 8192, 1024 * i) for i in range(4)]

        def reads(c):
            o = []
            for t in range(4):
                col = 32 * t if self.isv else 64 * (t // 2) + 8 * (t % 2)
                for rd in range(2):
                    o.append((WREG + (c * 4 + t) * 4 + 2 * rd, 11, 512 * rd + col))
            return o
        load_weights(A, 18, dmas, reads, 4096, 9, sb, st)
        if self.sync:
            tstamp(A, 3)
            wait_registered(A)
        A("s_barrier")
        A(f"v_or_b32 {v(self.V_RD)}, 0x10000, {v(V_L16)}")
        A(f"s_mul_i32 {s(st)}, {s(S_W)}, 9216")
        A(f"v_add_u32 {v(self.V_WR)}, {s(st)}, {v(V_L16)}")
        A(f"v_mov_b32 {v(self.V_LDOFF)}, {v(self.V_WR)}")
        A(f"v_and_b32 {v(self.V_POLLOFF)}, 1, {v(V_LANE)}")
        A(f"v_lshlrev_b32 {v(self.V_POLLOFF)}, 2, {v(self.V_POLLOFF)}")
        A(f"s_lshr_b32 {s(st)}, {s(S_W)}, 1")
        A(f"s_lshl_b32 {s(st + 1)}, {s(self.S_HP)}, 1")
        A(f"s_add_u32 {s(st)}, {s(st)}, {s(st + 1)}")
        A(f"s_lshl_b32 {s(st)}, {s(st)}, 13")
        A(f"s_and_b32 {s(st + 1)}, {s(S_W)}, 1")
        A(f"s_lshl_b32 {s(st + 1)}, {s(st + 1)}, {12 if self.isv else 11}")
        A(f"s_add_u32 {s(st)}, {s(st)}, {s(st + 1)}")
        A(f"v_add_u32 {v(self.V_OUT)}, {s(st)}, {v(V_L16)}")
        A(f"s_add_u32 {s(self.S_OB)}, {s(self.S_MAT)}, 1")
        A(f"s_lshl_b32 {s(self.S_OB)}, {s(self.S_OB)}, 24")
        A(f"s_lshl_b32 {s(st)}, {s(self.S_HP)}, 9")
        A(f"s_lshl_b32 {s(st + 1)}, {s(self.S_MAT)}, 6")
        A(f"s_add_u32 {s(st)}, {s(st)}, {s(st + 1)}")
        A(f"s_lshl_b32 {s(st + 1)}, {s(S_W)}, 4")
        A(f"s_add_u32 {s(st)}, {s(st)}, {s(st + 1)}")
        A(f"s_add_u32 {s(self.S_OB + 1)}, {s(st)}, {F_A:#x}")
        self.emit(flag_at=40, write_at=100)


def role_qkv(A, sync):
    A(f"s_and_b32 {s(Gemm.S_IT)}, {s(S_IDX)}, 3")
    A(f"s_bfe_u32 {s(QKV.S_HP)}, {s(S_IDX)}, {2 | (4 << 16):#x}")
    A(f"s_lshr_b32 {s(QKV.S_MAT)}, {s(S_IDX)}, 6")
    A(f"s_cmp_eq_u32 {s(QKV.S_MAT)}, 2")
    A("s_cbranch_scc1 L_qkv_v")
    srd(A, S_A, KA_WQ, SZ_W)
    A(f"s_load_dwordx2 {s(S_T, 2)}, s[0:1], {KA_WK}")
    A("s_waitcnt lgkmcnt(0)")
    A(f"s_cmp_eq_u32 {s(QKV.S_MAT)}, 1")
    A(f"s_cselect_b32 {s(S_A)}, {s(S_T)}, {s(S_A)}")
    A(f"s_cselect_b32 {s(S_A + 1)}, {s(S_T + 1)}, {s(S_A + 1)}")
    QKV(A, "qk", sync, False).body()
    A("s_branch L_qkv_end")
    A.label("L_qkv_v")
    srd(A, S_A, KA_WV, SZ_W)
    A("s_waitcnt lgkmcnt(0)")
    QKV(A, "vv", sync, True).body()
    A.label("L_qkv_end")


def gemm_addr(A, g, per_wave):
    st = S_T + 1
    A(f"v_or_b32 {v(g.V_RD)}, 0x10000, {v(V_L16)}")
    A(f"s_mul_i32 {s(st)}, {s(S_W)}, {per_wave * 1024}")
    A(f"v_add_u32 {v(g.V_WR)}, {s(st)}, {v(V_L16)}")
    A(f"v_mov_b32 {v(g.V_LDOFF)}, {v(g.V_WR)}")


def cvt2(d, x):
    return f"v_cvt_pk_bf16_f32 {v(d)}, {v(x)}, {v(x + 1)}"


NWG_BC = 64
BC_REP = 4


class BC(Gemm):
    V_OUT, V_OUT2, V_KM, BIAS = 9, 10, 11, 12
    Q, K, KMR, V, VMR, ACC, OF = 20, 36, 68, 84, 116, 132, 204
    S_HP, S_HB, S_Q, S_K, S_V, S_KM, S_CS = 50, 51, 53, 54, 56, 58, 60

    def __init__(self, A, sync):
        super().__init__(A, "bc", sync, BC_REP, 64, 0, 0)

    def set_load_base(self, s_it):
        A = self.A
        A(f"s_lshl_b32 {s(self.S_KM)}, {s(s_it)}, 5")
        A(f"s_add_u32 {s(self.S_KM)}, {s(self.S_KM)}, {s(self.S_HB)}")
        A(f"s_lshl_b32 {s(self.S_V)}, {s(self.S_KM)}, 13")
        A(f"s_lshl_b32 {s(self.S_KM)}, {s(self.S_KM)}, 12")
        A(f"s_add_u32 {s(self.S_K)}, {s(self.S_V)}, {KB:#x}")
        A(f"s_add_u32 {s(self.S_K + 1)}, {s(self.S_V)}, {KB + 4096:#x}")
        A(f"s_add_u32 {s(self.S_Q)}, {s(self.S_V)}, {s(self.S_HB + 1)}")
        A(f"s_add_u32 {s(self.S_V + 1)}, {s(self.S_V)}, {VB + 4096:#x}")
        A(f"s_add_u32 {s(self.S_V)}, {s(self.S_V)}, {VB:#x}")
        A(f"s_add_u32 {s(self.S_KM + 1)}, {s(self.S_KM)}, {VM:#x}")
        A(f"s_add_u32 {s(self.S_KM)}, {s(self.S_KM)}, {KM:#x}")

    def ld_bases(self):
        pass

    def loads(self):
        ld = lambda d, vo, so, i: f"buffer_load_dwordx4 {v(d, 4)}, {v(vo)}, {WS}, {s(so)} offen offset:{1024 * i} sc1"
        o = []
        for c in range(4):
            o += [ld(self.Q + 4 * c, V_L16, self.S_Q, c), ld(self.K + 4 * c, V_L16, self.S_K, c),
                  ld(self.K + 16 + 4 * c, V_L16, self.S_K + 1, c), ld(self.KMR + 4 * c, self.V_KM, self.S_KM, c)]
        for t in range(8):
            o.append(ld(self.V + 4 * t, V_L16, self.S_V + t // 4, t % 4))
            if t % 2 == 0:
                o.append(ld(self.VMR + 2 * t, V_L16, self.S_KM + 1, t // 2))
        return o

    def writes(self):
        return []

    def finish_stage(self):
        self.A(f"v_xor_b32 {v(self.V_RD)}, 0x10000, {v(self.V_RD)}")
        self.A(f"v_xor_b32 {v(self.V_WR)}, 0x10000, {v(self.V_WR)}")

    def set_poll_base(self, s_it):
        A = self.A
        A(f"s_lshl_b32 {s(self.S_POLL)}, {s(s_it)}, 13")
        A(f"s_lshl_b32 {s(S_T + 1)}, {s(self.S_HP)}, 9")
        A(f"s_add_u32 {s(self.S_POLL)}, {s(self.S_POLL)}, {s(S_T + 1)}")
        A(f"s_add_u32 {s(self.S_POLL)}, {s(self.S_POLL)}, {F_A:#x}")

    def set_out_base(self):
        A = self.A
        A(f"s_lshl_b32 {s(self.S_OUT)}, {s(self.S_IT)}, 5")
        A(f"s_add_u32 {s(self.S_OUT)}, {s(self.S_OUT)}, {s(self.S_HP)}")
        A(f"s_mul_i32 {s(self.S_OUT)}, {s(self.S_OUT)}, 18432")
        A(f"s_add_u32 {s(self.S_OUT)}, {s(self.S_OUT)}, {P1:#x}")
        A(f"s_add_u32 {s(self.S_OUT + 1)}, {s(self.S_OUT)}, {16 * 18432}")
        A(f"s_lshl_b32 {s(self.S_FLG)}, {s(self.S_IT)}, 4")
        A(f"s_add_u32 {s(self.S_FLG)}, {s(self.S_FLG)}, {s(self.S_HP)}")
        A(f"s_lshl_b32 {s(self.S_FLG)}, {s(self.S_FLG)}, 2")
        A(f"s_add_u32 {s(self.S_FLG)}, {s(self.S_FLG)}, {s(S_W)}")
        A(f"s_lshl_b32 {s(self.S_FLG)}, {s(self.S_FLG)}, 2")
        A(f"s_add_u32 {s(self.S_FLG)}, {s(self.S_FLG)}, {F_BC:#x}")

    def post_loads(self):
        a = self.ACC
        S, OT, L, PT, PM0, PM1, ONE, HALF, T = a, a + 12, a + 44, a + 48, a + 52, a + 56, a + 60, a + 64, a + 68
        con = [f"v_mov_b32 {v(ONE + i)}, 0x3f803f80" for i in range(4)] + \
              [f"v_mov_b32 {v(HALF + i)}, 0x3f003f00" for i in range(4)] + \
              [f"v_mov_b32 {v(x)}, 0" for x in (PM0 + 1, PM0 + 3, PM1, PM1 + 2)]
        o = []
        for c in range(4):
            q = v(self.Q + 4 * c, 4)
            o += [f"{MF} {v(S, 4)}, {v(self.K + 4 * c, 4)}, {q}, {v(S, 4) if c else v(self.BIAS, 4)}", con.pop(),
                  f"{MF} {v(S + 4, 4)}, {v(self.K + 16 + 4 * c, 4)}, {q}, {v(S + 4, 4) if c else v(self.BIAS + 4, 4)}", con.pop(),
                  f"{MF} {v(S + 8, 4)}, {v(self.KMR + 4 * c, 4)}, {q}, {v(S + 8, 4) if c else 0}", con.pop()]
        o += [f"v_max3_f32 {v(T)}, {v(S)}, {v(S + 1)}, {v(S + 2)}",
              f"v_max3_f32 {v(T + 1)}, {v(S + 3)}, {v(S + 4)}, {v(S + 5)}",
              f"v_max3_f32 {v(T)}, {v(T)}, {v(S + 6)}, {v(S + 7)}",
              f"v_max3_f32 {v(T + 1)}, {v(T + 1)}, {v(S + 8)}, {v(S + 9)}",
              f"v_max3_f32 {v(T)}, {v(T)}, {v(S + 10)}, {v(S + 11)}",
              f"v_max_f32 {v(T)}, {v(T)}, {v(T + 1)}",
              lambda: xg_reduce(self.A, "v_max_f32", T, T + 1),
              f"v_mul_f32 {v(T)}, {s(self.S_CS)}, {v(T)}"]
        for k in range(0, 12, 2):
            o.append(f"v_pk_fma_f32 {v(S + k, 2)}, {v(S + k, 2)}, {s(self.S_CS, 2)}, {v(T, 2)} "
                     "op_sel_hi:[1,1,0] neg_lo:[0,0,1] neg_hi:[0,0,1]")
        o += [f"v_exp_f32 {v(S + k)}, {v(S + k)}" for k in range(12)]
        o += [cvt2(PM0, S + 8), cvt2(PT, S), cvt2(PT + 1, S + 4), cvt2(PT + 2, S + 2), cvt2(PM0 + 2, S + 10),
              cvt2(PT + 3, S + 6), cvt2(PM1 + 1, S + 8), cvt2(PM1 + 3, S + 10)]
        o += [f"{MF} {v(L, 4)}, {v(ONE, 4)}, {v(PT, 4)}, 0"]
        o += [f"{MF} {v(OT + 4 * t, 4)}, {v(self.V + 4 * t, 4)}, {v(PT, 4)}, 0" for t in range(2)]
        o += [f"{MF} {v(L, 4)}, {v(HALF, 4)}, {v(PM0, 4)}, {v(L, 4)}"]
        o += [f"{MF} {v(OT + 4 * t, 4)}, {v(self.V + 4 * t, 4)}, {v(PT, 4)}, 0" for t in range(2, 8)]
        o += [f"v_rcp_f32 {v(T)}, {v(L)}"]
        fin = []
        for t in range(8):
            d = OT + 4 * t
            o.append(f"{MF} {v(d, 4)}, {v(self.VMR + 4 * (t // 2), 4)}, {v((PM0, PM1)[t % 2], 4)}, {v(d, 4)}")
            fin += [f"v_pk_mul_f32 {v(d, 2)}, {v(d, 2)}, {v(T, 2)} op_sel_hi:[1,0]",
                    f"v_pk_mul_f32 {v(d + 2, 2)}, {v(d + 2, 2)}, {v(T, 2)} op_sel_hi:[1,0]",
                    cvt2(OT + 2 * t, d), cvt2(OT + 2 * t + 1, d + 2)]
            if t % 2:
                fin.append(f"ds_write_b128 {v(self.V_WR)}, {v(OT + 2 * t - 2, 4)} offset:{1024 * (t // 2)}")
        return o + fin + ["s_waitcnt lgkmcnt(0)", "s_barrier"]

    def compute(self):
        main, fill = [], {}
        of = lambda i: self.OF + 4 * (i % 5)
        rd = lambda i: f"ds_read_b128 {v(of(i), 4)}, {v(self.V_RD)} offset:{((i % 2) * 8 + i // 2) * 1024}"
        for i in range(4):
            self.A(rd(i))
        for i in range(16):
            kc, u = i // 2, i % 2
            for t in range(9):
                acc = v(self.ACC + (u * 9 + t) * 4, 4)
                main.append(f"{MF} {acc}, {r(WREG + (kc * 9 + t) * 4, 4)}, {v(of(i), 4)}, {acc if kc else 0}")
            if i + 4 < 16:
                fill.setdefault(9 * i, []).append(rd(i + 4))
        return main, fill

    def epilogue(self):
        o = []
        for u in range(2):
            for p in range(4):
                d = self.ACC + (u * 9 + 2 * p) * 4
                o += [cvt2(d + k, d + 2 * k) for k in range(4)]
                o.append(f"buffer_store_dwordx4 {v(d, 4)}, {v(self.V_OUT)}, {WS}, {s(self.S_OUT + u)} offen offset:{1024 * p} sc1")
            d = self.ACC + (u * 9 + 8) * 4
            o += [cvt2(d, d), cvt2(d + 1, d + 2),
                  f"buffer_store_dwordx2 {v(d, 2)}, {v(self.V_OUT2)}, {WS}, {s(self.S_OUT + u)} offen sc1"]
        return o

    def body(self):
        A = self.A
        sb, st = S_T, S_T + 1
        L = v(V_LANE)
        pb, po = S_T + 3, S_T + 4
        A(f"s_mul_i32 {s(pb)}, {s(S_W)}, 9")
        A(f"s_add_u32 {s(pb)}, {s(pb)}, 1")
        A(f"s_lshr_b32 {s(pb)}, {s(pb)}, 1")
        A(f"s_lshr_b32 {s(po)}, {s(S_W)}, 1")
        A(f"s_mul_i32 {s(po)}, {s(po)}, 9")
        A(f"s_add_u32 {s(po)}, {s(po)}, 4")
        A(f"s_mul_i32 {s(st)}, {s(self.S_HP)}, {256 * 1152}")
        A(f"s_lshl_b32 {s(st + 1)}, {s(po)}, 6")
        A(f"s_add_u32 {s(st + 1)}, {s(st + 1)}, {s(st)}")
        A(f"v_lshrrev_b32 v21, 2, {L}")
        A(f"v_mul_u32_u24 v21, 1152, v21")
        A(f"v_and_b32 v22, 3, {L}")
        A(f"v_lshlrev_b32 v22, 4, v22")
        A(f"v_add3_u32 v21, v21, v22, {s(st + 1)}")
        A(f"s_lshl_b32 {s(st + 1)}, {s(pb)}, 6")
        A(f"s_add_u32 {s(st + 1)}, {s(st + 1)}, {s(st)}")
        A(f"v_lshrrev_b32 v20, 4, {L}")
        A(f"v_mul_u32_u24 v20, 1152, v20")
        A(f"v_and_b32 v22, 15, {L}")
        A(f"v_lshlrev_b32 v22, 4, v22")
        A(f"v_add3_u32 v20, v20, v22, {s(st + 1)}")
        A(f"s_mul_i32 {s(sb)}, {s(S_W)}, 40960")
        tr_addr(A, 22, 24, 25, 4, 1, 256, 16, sb)
        tr_addr(A, 23, 24, 25, 4, 1, 64, 16, sb)
        A(f"s_and_b32 {s(st)}, {s(S_W)}, 1")
        A(f"s_lshl_b32 {s(st)}, {s(st)}, 3")
        A(f"v_add_u32 v23, {s(st)}, v23")
        A(f"s_lshl_b32 {s(pb)}, {s(pb)}, 10")
        A(f"v_add_u32 {v(self.V_OUT)}, {s(pb)}, {v(V_L16)}")
        A(f"s_lshl_b32 {s(po)}, {s(po)}, 10")
        A(f"s_add_u32 {s(po)}, {s(po)}, {s(st)}")
        A(f"v_add_u32 {v(self.V_OUT2)}, {s(po)}, {v(V_L16)}")
        dmas = lambda c: [(SA, 20, (32 * c + 4 * i) * 1152, 1024 * i) for i in range(8)] + \
                         [(SA, 21, (32 * c + 16 * i) * 1152, 8192 + 1024 * i) for i in range(2)]

        def reads(c):
            o = []
            for t in range(9):
                for rd in range(2):
                    if t < 8:
                        o.append((WREG + (c * 9 + t) * 4 + 2 * rd, 22, 4096 * rd + 64 * (t // 2) + 8 * (t % 2)))
                    else:
                        o.append((WREG + (c * 9 + t) * 4 + 2 * rd, 23, 8192 + 1024 * rd))
            return o
        load_weights(A, 8, dmas, reads, 10240, 4, sb, st)
        A("s_barrier")
        A(f"s_lshr_b32 {s(st)}, {s(S_W)}, 1")
        A(f"s_and_b32 {s(st + 1)}, {s(S_W)}, 1")
        A(f"s_lshl_b32 {s(self.S_HB)}, {s(self.S_HP)}, 1")
        A(f"s_add_u32 {s(self.S_HB)}, {s(self.S_HB)}, {s(st)}")
        A(f"s_lshl_b32 {s(self.S_HB + 1)}, {s(st + 1)}, 12")
        A(f"s_add_u32 {s(self.S_HB + 1)}, {s(self.S_HB + 1)}, {QB:#x}")
        A(f"s_lshl_b32 {s(pb)}, {s(st + 1)}, 1")
        A(f"s_add_u32 {s(pb)}, {s(pb)}, {s(st)}")
        A(f"s_lshl_b32 {s(pb)}, {s(pb)}, 12")
        A(f"v_mov_b32 {v(self.V_RD)}, {v(V_L16)}")
        A(f"v_add_u32 {v(self.V_WR)}, {s(pb)}, {v(V_L16)}")
        A(f"v_or_b32 {v(self.V_KM)}, 0x80, {v(V_L16)}")
        A(f"v_min_u32 {v(self.V_POLLOFF)}, {19 * 16}, {v(V_L16)}")
        import math
        cs = 128 ** -0.5 * math.log2(math.e)
        A(f"s_mov_b32 {s(self.S_CS)}, {f32(cs):#x}")
        A(f"s_mov_b32 {s(self.S_CS + 1)}, {f32(cs):#x}")
        A(f"v_and_b32 v20, 15, {L}")
        A(f"s_lshl_b32 {s(st + 1)}, {s(st + 1)}, 4")
        A(f"v_add_u32 v20, {s(st + 1)}, v20")
        A(f"v_lshrrev_b32 v21, 4, {L}")
        A(f"v_lshlrev_b32 v21, 2, v21")
        A(f"v_sub_u32 v20, v20, v21")
        A(f"v_mov_b32 v21, 0xf149f2ca")
        for k in range(8):
            A(f"v_cmp_gt_i32 vcc, {16 * (k // 4) + k % 4}, v20")
            A(f"v_cndmask_b32 {v(self.BIAS + k)}, 0, v21, vcc")
        self.emit(flag_at=4, write_at=0)


def role_bc(A, sync):
    A(f"s_and_b32 {s(Gemm.S_IT)}, {s(S_IDX)}, {BC_REP - 1}")
    A(f"s_lshr_b32 {s(BC.S_HP)}, {s(S_IDX)}, {BC_REP.bit_length() - 1}")
    srd(A, S_A, KA_WO, SZ_W)
    A("s_waitcnt lgkmcnt(0)")
    BC(A, sync).body()


NWG_R1 = 18
NWG_R2 = 18


def reducer(A, sync, first):
    n = "r1" if first else "r2"
    NP = 16 if first else 6
    S_U, S_P, S_X, S_PL, S_SP, S_O = 36, 37, 38, 39, 40, 41
    SEL, ONE, ACC, VX, VPO, VPL, VST, VF0, T, IN = 4, 10, 16, 2, 3, 14, 15, 24, 26, 40
    L = v(V_LANE)
    if first:
        srd(A, S_B, KA_X, SZ_X)
    else:
        srd(A, S_B, KA_OUT, SZ_X)
    A(f"v_and_b32 v20, 15, {L}")
    A(f"v_mul_u32_u24 {v(VX)}, 1152, v20")
    A(f"v_and_b32 v21, 48, {L}")
    A(f"s_lshl_b32 {s(S_T)}, {s(S_IDX)}, 6")
    A(f"v_add3_u32 {v(VX)}, {v(VX)}, v21, {s(S_T)}")
    A(f"v_lshrrev_b32 v21, 4, {L}")
    A(f"v_lshrrev_b32 v22, 2, v20")
    A(f"v_and_b32 v23, 3, {L}")
    A(f"v_cmp_eq_u32 vcc, v21, v22")
    A(f"v_cndmask_b32 v23, 7, v23, vcc")
    for k in (0, 1, 4, 5):
        A(f"v_mov_b32 {v(SEL + k)}, 0")
    for k in range(2):
        A(f"v_mov_b32 v22, 0x3f80")
        A(f"v_cmp_eq_u32 vcc, {2 * k}, v23")
        A(f"v_cndmask_b32 {v(SEL + 2 + k)}, 0, v22, vcc")
        A(f"v_mov_b32 v22, 0x3f800000")
        A(f"v_cmp_eq_u32 vcc, {2 * k + 1}, v23")
        A(f"v_cndmask_b32 {v(SEL + 2 + k)}, {v(SEL + 2 + k)}, v22, vcc")
    if first:
        for k in range(4):
            A(f"v_mov_b32 {v(ONE + k)}, 0x3f803f80")
        A(f"v_lshlrev_b32 v20, 3, v20")
        A(f"v_mov_b32 {v(VST)}, {OOR:#x}")
        A(f"v_cmp_eq_u32 vcc, 0, v21")
        A(f"v_cndmask_b32 {v(VST)}, {v(VST)}, v20, vcc")
        A(f"v_lshlrev_b32 {v(VPO)}, 2, {L}")
        lane0_off(A, VF0, "0")
        A(f"v_mov_b32 {v(VF0 + 1)}, 1")
    else:
        A(f"s_mul_i32 {s(S_T)}, {s(S_IDX)}, 43")
        A(f"s_lshr_b32 {s(S_T)}, {s(S_T)}, 8")
        A(f"s_lshl_b32 {s(S_T)}, {s(S_T)}, 7")
        A(f"v_min_u32 {v(VPO)}, 23, {L}")
        A(f"v_lshlrev_b32 {v(VPO)}, 2, {v(VPO)}")
        A(f"v_add_u32 {v(VPO)}, {s(S_T)}, {v(VPO)}")
    A(f"s_mov_b32 {s(S_U)}, {s(S_W)}")
    A("s_waitcnt lgkmcnt(0)")
    A.label(f"L_{n}_top")
    A(f"s_mul_i32 {s(S_X)}, {s(S_U)}, 18432")
    A(f"s_lshl_b32 {s(S_T)}, {s(S_IDX)}, 10")
    A(f"s_add_u32 {s(S_O)}, {s(S_X)}, {s(S_T)}")
    A(f"s_mul_i32 {s(S_P)}, {s(S_X)}, {NP}")
    A(f"s_add_u32 {s(S_P)}, {s(S_P)}, {s(S_T)}")
    A(f"s_add_u32 {s(S_P)}, {s(S_P)}, {P1 if first else P2:#x}")
    A(f"s_add_u32 {s(S_O)}, {s(S_O)}, {HH:#x}")
    if first:
        A(f"buffer_load_dwordx4 {v(IN, 4)}, {v(VX)}, {SB}, {s(S_X)} offen")
    if sync:
        if first:
            A(f"s_lshr_b32 {s(S_PL)}, {s(S_U)}, 1")
            A(f"s_lshl_b32 {s(S_PL)}, {s(S_PL)}, 8")
            A(f"s_add_u32 {s(S_PL)}, {s(S_PL)}, {F_BC:#x}")
        else:
            A(f"s_lshl_b32 {s(S_PL)}, {s(S_U)}, 9")
            A(f"s_add_u32 {s(S_PL)}, {s(S_PL)}, {F_E:#x}")
        poll_block(A, VPL, VPO, s(S_PL), True, S_SP)
    if not first:
        A(f"buffer_load_dwordx4 {v(IN, 4)}, {v(V_L16)}, {WS}, {s(S_O)} offen sc1")
    for p in range(NP):
        A(f"buffer_load_dwordx4 {v(IN + 4 + 4 * p, 4)}, {v(V_L16)}, {WS}, {s(S_P)} offen sc1")
        if p + 1 < NP:
            A(f"s_add_u32 {s(S_P)}, {s(S_P)}, 18432")
    for p in range(NP + 1):
        A(f"{MF} {v(ACC, 4)}, {v(SEL + 2, 4)}, {v(IN + 4 * p, 4)}, {v(ACC, 4) if p else 0}")
        A(f"{MF} {v(ACC + 4, 4)}, {v(SEL, 4)}, {v(IN + 4 * p, 4)}, {v(ACC + 4, 4) if p else 0}")
    for k in range(4):
        A(cvt2(IN + k, ACC + 2 * k))
    if not first:
        A(f"buffer_store_dwordx4 {v(IN, 4)}, {v(VX)}, {SB}, {s(S_X)} offen")
    else:
        A(f"buffer_store_dwordx4 {v(IN, 4)}, {v(V_L16)}, {WS}, {s(S_O)} offen sc1")
        A(f"{MF} {v(T, 4)}, {v(ONE, 4)}, {v(IN, 4)}, 0")
        for k in range(4):
            A(f"v_lshlrev_b32 {v(ACC + 2 * k)}, 16, {v(IN + k)}")
            A(f"v_and_b32 {v(ACC + 2 * k + 1)}, 0xffff0000, {v(IN + k)}")
        A(f"s_lshl_b32 {s(S_T)}, {s(S_U)}, 5")
        A(f"s_add_u32 {s(S_T)}, {s(S_T)}, {s(S_IDX)}")
        A(f"s_lshl_b32 {s(S_T + 1)}, {s(S_T)}, 7")
        A(f"s_add_u32 {s(S_T + 1)}, {s(S_T + 1)}, {ST:#x}")
        A(f"v_mul_f32 {v(T + 2)}, {f32(-1.0 / 32):#x}, {v(T)}")
        for k in range(0, 8, 2):
            A(f"v_pk_add_f32 {v(ACC + k, 2)}, {v(ACC + k, 2)}, {v(T + 2, 2)} op_sel_hi:[1,0]")
        A(f"v_pk_mul_f32 {v(ACC, 2)}, {v(ACC, 2)}, {v(ACC, 2)}")
        for k in range(2, 8, 2):
            A(f"v_pk_fma_f32 {v(ACC, 2)}, {v(ACC + k, 2)}, {v(ACC + k, 2)}, {v(ACC, 2)}")
        A(f"v_add_f32 {v(T + 1)}, {v(ACC)}, {v(ACC + 1)}")
        xg_reduce(A, "v_add_f32", T + 1, T + 2)
        A(f"buffer_store_dwordx2 {v(T, 2)}, {v(VST)}, {WS}, {s(S_T + 1)} offen sc1")
        if sync:
            A(f"s_lshl_b32 {s(S_T)}, {s(S_T)}, 2")
            A(f"s_add_u32 {s(S_T)}, {s(S_T)}, {F_R1:#x}")
            A("s_waitcnt vmcnt(0)")
            A(f"buffer_store_dword {v(VF0 + 1)}, {v(VF0)}, {WS}, {s(S_T)} offen sc1")
    A(f"s_add_u32 {s(S_U)}, {s(S_U)}, 4")
    A(f"s_cmp_lt_u32 {s(S_U)}, 128")
    A(f"s_cbranch_scc1 L_{n}_top")


def role_r1(A, sync):
    reducer(A, sync, True)


def role_r2(A, sync):
    reducer(A, sync, False)


NWG_DD = 72


class DD(Gemm):
    ACC, BF, STG, CS, SN, SC_, T, V_ST, V_ST4, V_VAL = 12, 28, 44, 64, 80, 90, 100, 9, 10, 11
    S_SL, S_ST = 50, 51

    def __init__(self, A, sync):
        super().__init__(A, "dd", sync, 2, 128, 5, self.STG)

    def set_load_base(self, s_it):
        A = self.A
        A(f"s_mul_i32 {s(self.S_LD)}, {s(s_it)}, 18432")
        A(f"s_add_u32 {s(self.S_LD)}, {s(self.S_LD)}, {HH:#x}")
        A(f"s_lshl_b32 {s(self.S_ST)}, {s(s_it)}, 12")
        A(f"s_add_u32 {s(self.S_ST)}, {s(self.S_ST)}, {ST:#x}")

    def extra_loads(self):
        return [f"buffer_load_dwordx2 {v(self.SN + 2 * i, 2)}, {v(self.V_ST if i < 4 else self.V_ST4)}, {WS}, "
                f"{s(self.S_ST)} offen offset:{512 * i} sc1" for i in range(5)]

    def post_loads(self):
        return [f"v_mov_b64 {v(self.SC_ + 2 * i, 2)}, {v(self.SN + 2 * i, 2)}" for i in range(5)]

    def set_poll_base(self, s_it):
        self.A(f"s_lshl_b32 {s(self.S_POLL)}, {s(s_it)}, 7")
        self.A(f"s_add_u32 {s(self.S_POLL)}, {s(self.S_POLL)}, {F_R1:#x}")

    def set_out_base(self):
        A = self.A
        A(f"s_mul_i32 {s(self.S_OUT)}, {s(self.S_IT)}, 144")
        A(f"s_add_u32 {s(self.S_OUT)}, {s(self.S_OUT)}, {s(self.S_SL)}")
        A(f"s_lshl_b32 {s(self.S_OUT)}, {s(self.S_OUT)}, 10")
        A(f"s_add_u32 {s(self.S_OUT)}, {s(self.S_OUT)}, {ACT:#x}")
        A(f"s_lshl_b32 {s(self.S_FLG)}, {s(self.S_IT)}, 8")
        A(f"s_add_u32 {s(self.S_FLG)}, {s(self.S_FLG)}, {s(self.S_SL)}")
        A(f"s_lshl_b32 {s(self.S_FLG)}, {s(self.S_FLG)}, 2")
        A(f"s_add_u32 {s(self.S_FLG)}, {s(self.S_FLG)}, {F_D:#x}")

    def stats(self):
        S, T = self.SC_, self.T
        o = []
        xg = lambda op, x, t: [f"v_mov_b32 {v(t)}, {v(x)}", f"v_permlane32_swap_b32 {v(x)}, {v(t)}",
                               f"{op} {v(x)}, {v(x)}, {v(t)}", f"v_mov_b32 {v(t)}, {v(x)}",
                               f"v_permlane16_swap_b32 {v(x)}, {v(t)}", f"{op} {v(x)}, {v(x)}, {v(t)}"]
        rnd = lambda x: [f"v_cvt_pk_bf16_f32 {v(x)}, {v(x)}, {v(x)}", f"v_and_b32 {v(x)}, 0xffff0000, {v(x)}"]
        o += [f"v_add_f32 {v(T)}, {v(S)}, {v(S + 2)}", f"v_add_f32 {v(T + 1)}, {v(S + 4)}, {v(S + 6)}",
              f"v_add_f32 {v(T + 2)}, {v(S + 1)}, {v(S + 3)}", f"v_add_f32 {v(T + 3)}, {v(S + 5)}, {v(S + 7)}",
              f"v_add_f32 {v(T)}, {v(T)}, {v(S + 8)}", f"v_add_f32 {v(T + 2)}, {v(T + 2)}, {v(S + 9)}",
              f"v_add_f32 {v(T)}, {v(T)}, {v(T + 1)}", f"v_add_f32 {v(T + 2)}, {v(T + 2)}, {v(T + 3)}"]
        o += xg("v_add_f32", T, T + 1)
        o += [f"v_mul_f32 {v(T + 1)}, {f32(-1.0 / 18):#x}, {v(T)}"]
        o += [f"v_add_f32 {v(S + 2 * i)}, {v(S + 2 * i)}, {v(T + 1)}" for i in range(5)]
        o += [f"v_mul_f32 {v(S + 8)}, {v(S + 8)}, {v(self.V_VAL)}", f"v_mul_f32 {v(T + 3)}, {v(S)}, {v(S)}"]
        o += [f"v_fmac_f32 {v(T + 3)}, {v(S + 2 * i)}, {v(S + 2 * i)}" for i in range(1, 5)]
        o += [f"v_fmac_f32 {v(T + 2)}, {f32(1.0 / 32):#x}, {v(T + 3)}"]
        o += xg("v_add_f32", T + 2, T + 1)
        o += [f"v_mul_f32 {v(T)}, {f32(-1.0 / 576):#x}, {v(T)}"] + rnd(T)
        o += [f"v_mul_f32 {v(T + 2)}, {f32(1.0 / 576):#x}, {v(T + 2)}"] + rnd(T + 2)
        o += [f"v_add_f32 {v(T + 2)}, {f32(1e-5):#x}, {v(T + 2)}"] + rnd(T + 2)
        o += [f"v_sqrt_f32 {v(T + 2)}, {v(T + 2)}"] + rnd(T + 2)
        o += [f"v_rcp_f32 {v(T + 2)}, {v(T + 2)}", f"v_mul_f32 {v(T + 2)}, {v(T + 2)}, {v(T + 2)}"]
        return o

    def compute(self):
        main, fill = [], {}
        bf = lambda c: self.BF + (c % 4) * 4
        rd = lambda c: f"ds_read_b128 {v(bf(c), 4)}, {v(self.V_RD)} offset:{c * 1024}"
        for c in range(3):
            self.A(rd(c))
        for c in range(18):
            for t in range(4):
                acc = v(self.ACC + 4 * t, 4)
                main.append(f"{MF} {acc}, {r(WREG + (c * 4 + t) * 4, 4)}, {v(bf(c), 4)}, {acc if c else 0}")
            if c + 3 < 18:
                fill.setdefault(4 * c, []).append(rd(c + 3))
        spread(fill, self.stats(), 2, 1)
        return main, fill

    def epilogue(self):
        a, T = self.ACC, self.T
        o = [f"v_pk_fma_f32 {v(a + k, 2)}, {v(self.CS + k, 2)}, {v(T, 2)}, {v(a + k, 2)} op_sel_hi:[1,0,1]" for k in range(0, 16, 2)]
        o += [f"v_max_f32 {v(a + k)}, 0, {v(a + k)}" for k in range(8)]
        o += [f"v_pk_mul_f32 {v(a + 8 + k, 2)}, {v(a + 8 + k, 2)}, {v(T + 2, 2)} op_sel_hi:[1,0]" for k in range(0, 8, 2)]
        o += [f"v_pk_mul_f32 {v(a + k, 2)}, {v(a + k, 2)}, {v(a + 8 + k, 2)}" for k in range(0, 8, 2)]
        o += [cvt2(T + 4 + k, a + 2 * k) for k in range(4)]
        o += [f"buffer_store_dwordx4 {v(T + 4, 4)}, {v(V_L16)}, {WS}, {s(self.S_OUT)} offen sc1"]
        return o

    def body(self):
        A = self.A
        sb, st = S_T, S_T + 1
        L = v(V_LANE)
        A(f"s_lshl_b32 {s(self.S_SL)}, {s(self.S_SL)}, 2")
        A(f"s_add_u32 {s(self.S_SL)}, {s(self.S_SL)}, {s(S_W)}")
        A(f"s_lshl_b32 {s(st)}, {s(self.S_SL)}, 6")
        A(f"v_lshrrev_b32 v20, 2, {L}")
        A(f"v_mul_u32_u24 v20, 9216, v20")
        A(f"v_and_b32 v21, 3, {L}")
        A(f"v_lshlrev_b32 v21, 4, v21")
        A(f"v_add3_u32 v20, v20, v21, {s(st)}")
        A(f"s_mul_i32 {s(sb)}, {s(S_W)}, 36864")
        tr_addr(A, 21, 22, 23, 8, 1, 64, 16, sb)
        dmas = lambda c: [((SA, SB)[i // 2], 20, (32 * c + 16 * (i % 2)) * 9216, 1024 * i) for i in range(4)]
        reads = lambda c: [(WREG + (c * 4 + t) * 4 + 2 * rd, 21, 2048 * (t // 2) + 8 * (t % 2) + 256 * rd)
                           for t in range(4) for rd in range(2)]
        load_weights(A, 18, dmas, reads, 4096, 9, sb, st)
        A("s_barrier")
        for k in range(4):
            A(f"v_mov_b32 {v(self.BF + k)}, 0x3f803f80")
        for c in range(18):
            for t in range(4):
                cs = v(self.CS + 4 * t, 4)
                A(f"{MF} {cs}, {r(WREG + (c * 4 + t) * 4, 4)}, {v(self.BF, 4)}, {cs if c else 0}")
        gemm_addr(A, self, 4)
        A(f"s_min_u32 {s(st)}, {s(S_W)}, 1")
        A(f"s_lshl_b32 {s(st)}, {s(st)}, 10")
        A(f"v_add_u32 {v(self.V_WR)}, {s(st)}, {v(self.V_WR)}")
        A(f"v_mov_b32 {v(self.V_LDOFF)}, {v(self.V_WR)}")
        A(f"v_min_u32 {v(self.V_POLLOFF)}, 17, {L}")
        A(f"v_lshlrev_b32 {v(self.V_POLLOFF)}, 2, {v(self.V_POLLOFF)}")
        A(f"v_lshlrev_b32 {v(self.V_ST)}, 3, {L}")
        A(f"v_mov_b32 {v(self.V_ST4)}, {OOR:#x}")
        A(f"v_cmp_gt_u32 vcc, 32, {L}")
        A(f"v_cndmask_b32 {v(self.V_ST4)}, {v(self.V_ST4)}, {v(self.V_ST)}, vcc")
        A(f"v_cndmask_b32 {v(self.V_VAL)}, 0, 1.0, vcc")
        self.emit(flag_at=16, write_at=60)


def role_dd(A, sync):
    A(f"s_and_b32 {s(Gemm.S_IT)}, {s(S_IDX)}, 1")
    A(f"s_lshr_b32 {s(DD.S_SL)}, {s(S_IDX)}, 1")
    srd(A, S_A, KA_WG, SZ_WF)
    srd(A, S_B, KA_WU, SZ_WF)
    A("s_waitcnt lgkmcnt(0)")
    DD(A, sync).body()


NWG_EE = 36


class EE(Gemm):
    ACC, BF, STG, V_OUT, V_OUT2 = 12, 28, 44, 9, 10
    S_KS, S_NS = 50, 51

    def __init__(self, A, sync):
        super().__init__(A, "ee", sync, 2, 128, 6, self.STG)

    def set_load_base(self, s_it):
        A = self.A
        A(f"s_mul_i32 {s(self.S_LD)}, {s(s_it)}, 6")
        A(f"s_add_u32 {s(self.S_LD)}, {s(self.S_LD)}, {s(self.S_KS)}")
        A(f"s_mul_i32 {s(self.S_LD)}, {s(self.S_LD)}, 24576")
        A(f"s_add_u32 {s(self.S_LD)}, {s(self.S_LD)}, {ACT:#x}")

    def set_poll_base(self, s_it):
        self.A(f"s_lshl_b32 {s(self.S_POLL)}, {s(s_it)}, 10")
        self.A(f"s_add_u32 {s(self.S_POLL)}, {s(self.S_POLL)}, {F_D:#x}")

    def set_out_base(self):
        A = self.A
        A(f"s_mul_i32 {s(self.S_OUT)}, {s(self.S_IT)}, 6")
        A(f"s_add_u32 {s(self.S_OUT)}, {s(self.S_OUT)}, {s(self.S_KS)}")
        A(f"s_mul_i32 {s(self.S_OUT)}, {s(self.S_OUT)}, 18432")
        A(f"s_add_u32 {s(self.S_OUT)}, {s(self.S_OUT)}, {P2:#x}")
        A(f"s_lshl_b32 {s(self.S_FLG)}, {s(self.S_IT)}, 9")
        A(f"s_add_u32 {s(self.S_FLG)}, {s(self.S_FLG)}, {s(self.S_NS)}")

    def compute(self):
        main, fill = [], {}
        bf = lambda c: self.BF + (c % 4) * 4
        rd = lambda c: f"ds_read_b128 {v(bf(c), 4)}, {v(self.V_RD)} offset:{c * 1024}"
        for c in range(3):
            self.A(rd(c))
        for c in range(24):
            for t in range(3):
                acc = v(self.ACC + 4 * t, 4)
                main.append(f"{MF} {acc}, {r(WREG + (c * 3 + t) * 4, 4)}, {v(bf(c), 4)}, {acc if c else 0}")
            if c + 3 < 24:
                fill.setdefault(3 * c, []).append(rd(c + 3))
        return main, fill

    def epilogue(self):
        a = self.ACC
        return [cvt2(a + k, a + 2 * k) for k in range(4)] + \
            [f"buffer_store_dwordx4 {v(a, 4)}, {v(self.V_OUT)}, {WS}, {s(self.S_OUT)} offen sc1",
             cvt2(a + 8, a + 8), cvt2(a + 9, a + 10),
             f"buffer_store_dwordx2 {v(a + 8, 2)}, {v(self.V_OUT2)}, {WS}, {s(self.S_OUT)} offen sc1"]

    def body(self):
        A = self.A
        sb, st = S_T, S_T + 1
        pb, po = S_T + 3, S_T + 4
        L = v(V_LANE)
        A(f"s_mul_i32 {s(st)}, {s(self.S_NS)}, 6")
        A(f"s_mul_i32 {s(pb)}, {s(S_W)}, 3")
        A(f"s_add_u32 {s(pb)}, {s(pb)}, 1")
        A(f"s_lshr_b32 {s(pb)}, {s(pb)}, 1")
        A(f"s_add_u32 {s(pb)}, {s(pb)}, {s(st)}")
        A(f"s_lshr_b32 {s(po)}, {s(S_W)}, 1")
        A(f"s_mul_i32 {s(po)}, {s(po)}, 3")
        A(f"s_add_u32 {s(po)}, {s(po)}, 1")
        A(f"s_add_u32 {s(po)}, {s(po)}, {s(st)}")
        A(f"s_mul_i32 {s(st)}, {s(self.S_KS)}, {768 * 1152}")
        A(f"v_lshrrev_b32 v20, 2, {L}")
        A(f"v_mul_u32_u24 v20, 1152, v20")
        A(f"v_and_b32 v21, 3, {L}")
        A(f"v_lshlrev_b32 v21, 4, v21")
        A(f"v_add3_u32 v20, v20, v21, {s(st)}")
        A(f"s_lshl_b32 {s(st)}, {s(po)}, 6")
        A(f"v_add_u32 v21, {s(st)}, v20")
        A(f"s_lshl_b32 {s(st)}, {s(pb)}, 6")
        A(f"v_add_u32 v20, {s(st)}, v20")
        A(f"s_mul_i32 {s(sb)}, {s(S_W)}, 36864")
        tr_addr(A, 22, 24, 25, 8, 1, 64, 16, sb)
        A(f"s_and_b32 {s(st)}, {s(S_W)}, 1")
        A(f"s_lshl_b32 {s(st)}, {s(st)}, 3")
        A(f"v_add_u32 v23, {s(st)}, v22")
        A(f"s_lshl_b32 {s(pb)}, {s(pb)}, 10")
        A(f"v_add_u32 {v(self.V_OUT)}, {s(pb)}, {v(V_L16)}")
        A(f"s_lshl_b32 {s(po)}, {s(po)}, 10")
        A(f"s_add_u32 {s(po)}, {s(po)}, {s(st)}")
        A(f"v_add_u32 {v(self.V_OUT2)}, {s(po)}, {v(V_L16)}")
        dmas = lambda c: [(SA, 20 + i // 2, (32 * c + 16 * (i % 2)) * 1152, 1024 * i) for i in range(4)]
        reads = lambda c: [(WREG + (c * 3 + t) * 4 + 2 * rd, 22 + t // 2, 2048 * (t // 2) + 8 * (t % 2) + 256 * rd)
                           for t in range(3) for rd in range(2)]
        load_weights(A, 24, dmas, reads, 4096, 9, sb, st)
        A("s_barrier")
        gemm_addr(A, self, 6)
        A(f"s_mul_i32 {s(st)}, {s(self.S_KS)}, 96")
        A(f"v_min_u32 {v(self.V_POLLOFF)}, 23, {L}")
        A(f"v_lshlrev_b32 {v(self.V_POLLOFF)}, 2, {v(self.V_POLLOFF)}")
        A(f"v_add_u32 {v(self.V_POLLOFF)}, {s(st)}, {v(self.V_POLLOFF)}")
        A(f"s_lshl_b32 {s(self.S_NS)}, {s(self.S_NS)}, 5")
        A(f"s_lshl_b32 {s(st)}, {s(self.S_KS)}, 2")
        A(f"s_add_u32 {s(self.S_NS)}, {s(self.S_NS)}, {s(st)}")
        A(f"s_add_u32 {s(self.S_NS)}, {s(self.S_NS)}, {s(S_W)}")
        A(f"s_lshl_b32 {s(self.S_NS)}, {s(self.S_NS)}, 2")
        A(f"s_add_u32 {s(self.S_NS)}, {s(self.S_NS)}, {F_E:#x}")
        self.emit(flag_at=16, write_at=58)


def role_ee(A, sync):
    A(f"s_and_b32 {s(Gemm.S_IT)}, {s(S_IDX)}, 1")
    A(f"s_lshr_b32 {s(EE.S_KS)}, {s(S_IDX)}, 1")
    A(f"s_mul_i32 {s(EE.S_NS)}, {s(EE.S_KS)}, 43")
    A(f"s_lshr_b32 {s(EE.S_NS)}, {s(EE.S_NS)}, 8")
    A(f"s_mul_i32 {s(S_T)}, {s(EE.S_NS)}, 6")
    A(f"s_sub_u32 {s(EE.S_KS)}, {s(EE.S_KS)}, {s(S_T)}")
    srd(A, S_A, KA_WD, SZ_WF)
    A("s_waitcnt lgkmcnt(0)")
    EE(A, sync).body()
```

```python
from asm import *
import os
REC_LIMIT = int(os.environ.get("REC_LIMIT", "32"))
V_T0, V_T1, V_JUNK = 8, 9, 10
S_MODE = 67

NAME = "sequential_preLN__memory_aug_recurrent_mem_tr__glu_gated_reglu__prompt"

F_LN = 0x00000
F_A = 0x80000
F_BC = 0x30000
F_R1 = 0x34000
F_E = 0x38000
F_D = 0x50000
FLAGS_END = 0x100000
MR = 0x100000
MR_STRIDE = 0x4000
PR = 0x110000
PR_STRIDE = 0x48000
SENT_END = 0x200000
XH = 0x200000
HH = 0x480000
ST = 0x700000
QB = 0x1000000
KB = 0x2000000
VB = 0x3000000
KM = 0x4000000
VM = 0x4800000
ACT = 0x5000000
P1 = 0x6400000
P2 = 0x9000000
WS_BYTES = 0x10000000
OOR = 0x40000000

KA_X, KA_MEM0, KA_WQ, KA_WK, KA_WV, KA_WO = 0, 8, 16, 24, 32, 40
KA_WG, KA_WU, KA_WD, KA_OUT, KA_DBG, KA_WS = 64, 72, 80, 88, 96, 104
SZ_X = 2048 * 576 * 2
SZ_MEM0 = 8 * 576 * 2
SZ_W = 576 * 4096 * 2
SZ_WF = 576 * 4608 * 2

S_WS = 4
S_A = 8
S_B = 12
S_C = 16
S_DBG = 20
S_IDX = 24
S_W = 25
S_T = 26
WS = s(S_WS, 4)
SA = s(S_A, 4)
SB = s(S_B, 4)
SC = s(S_C, 4)
SDBG = s(S_DBG, 4)

V_L16 = 0
V_LANE = 1


def srd(A, base, ka, size):
    A(f"s_load_dwordx2 {s(base, 2)}, s[0:1], {ka}")
    A(f"s_mov_b32 {s(base + 2)}, {size:#x}")
    A(f"s_mov_b32 {s(base + 3)}, 0x20000")


def entry(A):
    srd(A, S_WS, KA_WS, WS_BYTES)
    srd(A, S_DBG, KA_DBG, 256)
    A(f"v_lshrrev_b32 v2, 6, v0")
    A(f"v_readfirstlane_b32 {s(S_W)}, v2")
    A(f"v_and_b32 {v(V_LANE)}, 63, v0")
    A(f"v_lshlrev_b32 {v(V_L16)}, 4, {v(V_LANE)}")
    A("s_waitcnt lgkmcnt(0)")


def weave(A, main, fill):
    for i, m in enumerate(main):
        A(m)
        for f in fill.get(i, []):
            if callable(f):
                f()
            else:
                A(f)


def spread(fill, items, start, step=1, per=1):
    k = start
    for i in range(0, len(items), per):
        fill.setdefault(k, []).extend(items[i:i + per])
        k += step
    return k


def xg_reduce(A, op, x, t):
    A(f"v_mov_b32 {v(t)}, {v(x)}")
    A(f"v_permlane32_swap_b32 {v(x)}, {v(t)}")
    A(f"{op} {v(x)}, {v(x)}, {v(t)}")
    A(f"v_mov_b32 {v(t)}, {v(x)}")
    A(f"v_permlane16_swap_b32 {v(x)}, {v(t)}")
    A(f"{op} {v(x)}, {v(x)}, {v(t)}")


def bf16_round(A, x):
    A(f"v_cvt_pk_bf16_f32 {v(x)}, {v(x)}, {v(x)}")
    A(f"v_and_b32 {v(x)}, 0xffff0000, {v(x)}")


SPIN_MAX = 1 << 20


def poll_block(A, vdst, voff, soff, sync, stmp, fail="L_fail"):
    if not sync:
        return
    l = A.uid("L_poll")
    d = A.uid("L_polld")
    A(f"s_mov_b32 {s(stmp)}, 0")
    A.label(l)
    A(f"buffer_load_dword {v(vdst)}, {v(voff)}, {WS}, {soff} offen sc1")
    A(f"v_cmp_eq_u32 vcc, 0, {v(vdst)}")
    A(f"s_cbranch_vccz {d}")
    A(f"s_add_u32 {s(stmp)}, {s(stmp)}, 1")
    A(f"s_cmp_lt_u32 {s(stmp)}, {SPIN_MAX}")
    A(f"s_cbranch_scc1 {l}")
    A(f"s_branch {fail}")
    A.label(d)


def poll_mask(A, vdst, soff, mask, stmp, fail="L_fail"):
    l = A.uid("L_poll")
    d = A.uid("L_polld")
    A(f"s_mov_b32 {s(stmp)}, 0")
    A.label(l)
    A(f"buffer_load_dword {v(vdst)}, {v(V_L16)}, {WS}, {soff} offen sc1")
    A(f"v_cmp_eq_u32 vcc, 0, {v(vdst)}")
    A(f"s_and_b64 vcc, vcc, {mask}")
    A(f"s_cbranch_vccz {d}")
    A(f"s_add_u32 {s(stmp)}, {s(stmp)}, 1")
    A(f"s_cmp_lt_u32 {s(stmp)}, {SPIN_MAX}")
    A(f"s_cbranch_scc1 {l}")
    A(f"s_branch {fail}")
    A.label(d)


def wait_registered(A):
    l = A.uid("L_reg")
    A(f"v_mov_b32 {v(V_T0)}, 0")
    A(f"s_mov_b32 {s(S_T + 2)}, 0")
    A.label(l)
    A(f"buffer_load_dword {v(V_T1)}, {v(V_T0)}, {SDBG}, 0 offen sc1")
    A(f"buffer_load_dword {v(V_JUNK)}, {v(V_T0)}, {SDBG}, 0 offen offset:128 sc1")
    A(f"s_add_u32 {s(S_T + 2)}, {s(S_T + 2)}, 1")
    A(f"s_cmp_gt_u32 {s(S_T + 2)}, {SPIN_MAX}")
    A("s_cbranch_scc1 L_fail")
    A(f"v_readfirstlane_b32 {s(S_MODE)}, {v(V_T1)}")
    A(f"v_readfirstlane_b32 {s(S_T + 1)}, {v(V_JUNK)}")
    A(f"s_min_u32 {s(S_T)}, {s(S_MODE)}, {REC_LIMIT}")
    A(f"s_add_u32 {s(S_T)}, {s(S_T)}, {s(S_T + 1)}")
    A(f"s_cmp_lt_u32 {s(S_T)}, 256")
    A(f"s_cbranch_scc1 {l}")


TB = 0xD000000


def tstamp(A, k, vr=8):
    if not os.environ.get("TS"):
        return
    A(f"s_memrealtime s[96:97]")
    A(f"s_lshl_b32 s98, s99, 2")
    A(f"s_add_u32 s98, s98, {s(S_W)}")
    A(f"s_lshl_b32 s98, s98, 6")
    A(f"s_add_u32 s98, s98, {TB + 4 * k:#x}")
    A("s_waitcnt lgkmcnt(0)")
    A(f"v_mov_b32 v{vr}, s96")
    A("s_mov_b64 exec, 1")
    A(f"buffer_store_dword v{vr}, {v(V_L16)}, {WS}, s98 offen")
    A("s_mov_b64 exec, -1")


def lane0_off(A, vdst, vsrc_or_const):
    A(f"v_mov_b32 {v(vdst)}, {OOR:#x}")
    A(f"v_cmp_eq_u32 vcc, 0, {v(V_L16)}")
    A(f"v_cndmask_b32 {v(vdst)}, {v(vdst)}, {vsrc_or_const}, vcc")


def descriptor(kname):
    return f""".amdhsa_kernel {kname}
  .amdhsa_next_free_vgpr 512
  .amdhsa_next_free_sgpr 102
  .amdhsa_accum_offset 256
  .amdhsa_group_segment_fixed_size 0
  .amdhsa_kernarg_size 112
  .amdhsa_user_sgpr_count 2
  .amdhsa_user_sgpr_kernarg_segment_ptr 1
  .amdhsa_system_sgpr_workgroup_id_x 1
.end_amdhsa_kernel
"""
```

```python
import sys, re
from common import *
import bulk, importlib, os
rec = importlib.import_module(os.environ.get('REC', 'rec'))

HEADER = open("cdna_kernels/" + NAME + ".s.ref").read().split("; @launch")[0]
DIAG = rec.DIAG
def build():
    A = Asm()
    A("s_cmp_ge_u32 s2, 256")
    A("s_cbranch_scc1 L_exit")
    entry(A)
    if DIAG == 2:
        A(f"s_memtime {s(rec.S_TM, 2)}")
        A(f"s_memrealtime {s(rec.S_TM + 10, 2)}")
    rec.init_ws(A)
    rec.register(A)
    A(f"s_mov_b32 s99, {s(rec.S_H)}")
    tstamp(A, 0)
    A(f"s_cmp_lt_u32 {s(S_IDX)}, 192")
    A("s_cbranch_scc1 L_p1_qkv")
    A(f"s_sub_u32 {s(S_IDX)}, {s(S_IDX)}, 192")
    bulk.role_ln1(A, True)
    A(f"s_add_u32 {s(S_IDX)}, {s(S_IDX)}, 192")
    A("s_branch L_p2")
    A.label("L_p1_qkv")
    bulk.role_qkv(A, True)
    A.label("L_p2")
    tstamp(A, 1)
    A(f"v_lshrrev_b32 {v(V_LANE)}, 4, {v(V_L16)}")
    A("s_barrier")
    if os.environ.get("EXP"):
        A("s_branch L_exit")
    lo = 0
    roles = [("bc", bulk.NWG_BC), ("dd", bulk.NWG_DD), ("ee", bulk.NWG_EE), ("r1", bulk.NWG_R1), ("r2", bulk.NWG_R2)]
    for n, k in roles:
        A(f"s_cmp_lt_u32 {s(S_IDX)}, {k}")
        A(f"s_cbranch_scc1 L_role_{n}")
        A(f"s_sub_u32 {s(S_IDX)}, {s(S_IDX)}, {k}")
    A("s_branch L_exit")
    for n, k in roles:
        A.label(f"L_role_{n}")
        getattr(bulk, "role_" + n)(A, True)
        tstamp(A, 2)
        A("s_branch L_exit")
    A.label("L_fail")
    A.label("L_exit")
    A("s_endpgm")
    A.label("L_rec")
    rec.role_rec(A, os.environ.get('EXP') != '1')
    body = A.finish()
    k = NAME + "_kernel"
    o = HEADER + "; @launch grid=(256,1,1) block=(256,1,1) lds=163840\n"
    o += '.amdgcn_target "amdgcn-amd-amdhsa--gfx950"\n.text\n'
    o += f".globl {k}\n.p2align 8\n.type {k},@function\n{k}:\n{body}"
    o += '.section .rodata,"a"\n.p2align 6\n' + descriptor(k)
    return o


if __name__ == "__main__":
    open(sys.argv[1], "w").write(build())
```

```python
from common import *

WREG = 224
MF = "v_mfma_f32_16x16x32_bf16"


def load_weights(A, nchunk, dmas, reads, slot_bytes, nslots, s_base, s_tmp, pol="nt"):
    issued = []

    def issue(c):
        for (sr, vo, so, rel) in dmas(c):
            A(f"s_add_u32 m0, {s(s_base)}, {(c % nslots) * slot_bytes + rel:#x}")
            A(f"s_mov_b32 {s(s_tmp)}, {so:#x}")
            A(f"buffer_load_dwordx4 {v(vo)}, {sr}, {s(s_tmp)} offen {pol} lds")
            issued.append(c)

    for c in range(min(nslots, nchunk)):
        issue(c)
    for c in range(nchunk):
        after = sum(1 for x in issued if x > c)
        assert after <= 63
        A(f"s_waitcnt vmcnt({after})")
        for (dst, va, rel) in reads(c):
            A(f"ds_read_b64_tr_b16 {r(dst, 2)}, {v(va)} offset:{(c % nslots) * slot_bytes + rel}")
        if c + nslots < nchunk:
            A("s_waitcnt lgkmcnt(0)")
            issue(c + nslots)
    A("s_waitcnt lgkmcnt(0)")


def tr_addr(A, dst, t0, t1, row_g, row_r, rowbytes, colbytes, s_base):
    A(f"v_lshrrev_b32 {v(t0)}, 4, {v(V_LANE)}")
    A(f"v_mul_u32_u24 {v(t0)}, {row_g * rowbytes}, {v(t0)}")
    A(f"v_bfe_u32 {v(t1)}, {v(V_LANE)}, 2, 2")
    A(f"v_mul_u32_u24 {v(t1)}, {row_r * rowbytes}, {v(t1)}")
    A(f"v_add_u32 {v(t0)}, {v(t0)}, {v(t1)}")
    A(f"v_and_b32 {v(t1)}, 3, {v(V_LANE)}")
    A(f"v_mul_u32_u24 {v(t1)}, {colbytes}, {v(t1)}")
    A(f"v_add3_u32 {v(dst)}, {v(t0)}, {v(t1)}, {s(s_base)}")


def role_ln1(A, sync):
    X, D, ONES, ACC = 16, 96, 4, 8
    su = S_T
    srd(A, S_B, KA_X, SZ_X)
    A(f"s_lshl_b32 {s(su)}, {s(S_IDX)}, 2")
    A(f"s_add_u32 {s(su)}, {s(su)}, {s(S_W)}")
    A(f"s_mul_i32 {s(su + 1)}, {s(su)}, {16 * 1152}")
    A(f"v_and_b32 v2, 15, {v(V_LANE)}")
    A(f"v_mul_u32_u24 v2, 1152, v2")
    A(f"v_and_b32 v3, 48, {v(V_LANE)}")
    A(f"v_add_u32 v2, v2, v3")
    A("s_waitcnt lgkmcnt(0)")
    for c in range(18):
        A(f"buffer_load_dwordx4 {v(X + 4 * c, 4)}, v2, {SB}, {s(su + 1)} offen offset:{64 * c}")
    for i in range(4):
        A(f"v_mov_b32 {v(ONES + i)}, 0x3f803f80")
    for c in range(18):
        A(f"{MF} {v(ACC, 4)}, {v(ONES, 4)}, {v(X + 4 * c, 4)}, {v(ACC, 4) if c else 0}")
    MEAN, MB = 12, 13
    A(f"v_mul_f32 {v(MEAN)}, {1.0 / 576:.9e}, {v(ACC)}".replace(f"{1.0 / 576:.9e}", f"{f32(1.0 / 576):#x}"))
    A(f"v_mov_b32 {v(MB)}, {v(MEAN)}")
    bf16_round(A, MB)
    for i in range(4):
        A(f"v_mov_b32 {v(ONES + i)}, 0")
    for i in range(72):
        lo, hi = D + 2 * i, D + 2 * i + 1
        A(f"v_lshlrev_b32 {v(lo)}, 16, {v(X + i)}")
        A(f"v_and_b32 {v(hi)}, 0xffff0000, {v(X + i)}")
        A(f"v_sub_f32 v2, {v(lo)}, {v(MEAN)}")
        A(f"v_sub_f32 v3, {v(hi)}, {v(MEAN)}")
        A(f"v_sub_f32 {v(lo)}, {v(lo)}, {v(MB)}")
        A(f"v_sub_f32 {v(hi)}, {v(hi)}, {v(MB)}")
        A(f"v_fmac_f32 {v(ONES + (2 * i) % 4)}, v2, v2")
        A(f"v_fmac_f32 {v(ONES + (2 * i + 1) % 4)}, v3, v3")
    A(f"v_add_f32 {v(ONES)}, {v(ONES)}, {v(ONES + 1)}")
    A(f"v_add_f32 {v(ONES + 2)}, {v(ONES + 2)}, {v(ONES + 3)}")
    A(f"v_add_f32 {v(ONES)}, {v(ONES)}, {v(ONES + 2)}")
    xg_reduce(A, "v_add_f32", ONES, 2)
    A(f"v_mul_f32 {v(ONES)}, {f32(1.0 / 576):#x}, {v(ONES)}")
    bf16_round(A, ONES)
    A(f"v_add_f32 {v(ONES)}, {f32(1e-5):#x}, {v(ONES)}")
    bf16_round(A, ONES)
    A(f"v_sqrt_f32 {v(ONES)}, {v(ONES)}")
    bf16_round(A, ONES)
    A(f"v_rcp_f32 {v(ONES)}, {v(ONES)}")
    A(f"s_mul_i32 {s(su + 1)}, {s(su)}, {18 * 1024}")
    A(f"s_add_u32 {s(su + 1)}, {s(su + 1)}, {XH:#x}")
    for c in range(18):
        for j in range(4):
            i = 4 * c + j
            lo, hi = D + 2 * i, D + 2 * i + 1
            A(f"v_cvt_pk_bf16_f32 v2, {v(lo)}, {v(hi)}")
            A(f"v_lshlrev_b32 {v(lo)}, 16, v2")
            A(f"v_and_b32 {v(hi)}, 0xffff0000, v2")
            A(f"v_mul_f32 {v(lo)}, {v(lo)}, {v(ONES)}")
            A(f"v_mul_f32 {v(hi)}, {v(hi)}, {v(ONES)}")
            A(f"v_cvt_pk_bf16_f32 {v(X + i)}, {v(lo)}, {v(hi)}")
        if c and c % 4 == 0:
            A(f"s_add_u32 {s(su + 1)}, {s(su + 1)}, 4096")
        A(f"buffer_store_dwordx4 {v(X + 4 * c, 4)}, {v(V_L16)}, {WS}, {s(su + 1)} offen offset:{1024 * (c % 4)} sc1")
    if sync:
        wait_registered(A)
        A(f"s_lshl_b32 {s(su)}, {s(S_IDX)}, 2")
        A(f"s_add_u32 {s(su)}, {s(su)}, {s(S_W)}")
        lane0_off(A, 2, "0")
        A(f"v_mov_b32 v3, 1")
        A(f"s_lshl_b32 {s(su + 1)}, {s(su)}, 2")
        A(f"s_add_u32 {s(su + 1)}, {s(su + 1)}, {F_LN:#x}")
        A("s_waitcnt vmcnt(0)")
        A(f"buffer_store_dword v3, v2, {WS}, {s(su + 1)} offen sc1")


def f32(x):
    import struct
    return struct.unpack("<I", struct.pack("<f", x))[0]


class Gemm:
    S_IT, S_NX, S_LD, S_FLG, S_FPREV, S_POLL, S_OUT, S_SPIN = 36, 37, 38, 42, 43, 44, 45, 49
    V_RD, V_WR, V_LDOFF, V_FLAG0, V_ONE, V_POLLOFF, V_POLL = 2, 3, 4, 5, 6, 7, 8

    def __init__(self, A, name, sync, step, end, nload, stage_reg):
        self.A, self.name, self.sync = A, name, sync
        self.step, self.end, self.nload, self.stage = step, end, nload, stage_reg

    def set_load_base(self, s_it):
        raise NotImplementedError

    def set_poll_base(self, s_it):
        raise NotImplementedError

    def set_out_base(self):
        raise NotImplementedError

    def extra_loads(self):
        return []

    def loads(self):
        out = []
        for i in range(self.nload):
            out.append(f"buffer_load_dwordx4 {v(self.stage + 4 * i, 4)}, {v(self.V_LDOFF)}, {WS}, "
                       f"{s(self.S_LD + i // 4)} offen offset:{1024 * (i % 4)} sc1")
        return self.extra_loads() + out

    def writes(self):
        return [f"ds_write_b128 {v(self.V_WR)}, {v(self.stage + 4 * i, 4)} offset:{1024 * i}"
                for i in range(self.nload)]

    def post_loads(self):
        return []

    def ld_bases(self):
        A = self.A
        for k in range(1, (self.nload + 3) // 4):
            A(f"s_add_u32 {s(self.S_LD + k)}, {s(self.S_LD)}, {4096 * k}")

    def issue_poll(self):
        if not self.sync:
            return []
        A = self.A

        def f():
            A(f"s_add_u32 {s(S_T)}, {s(self.S_NX)}, {self.step}")
            A(f"s_min_u32 {s(S_T)}, {s(S_T)}, {self.end - 1}")
            self.set_poll_base(S_T)
            A(f"buffer_load_dword {v(self.V_POLL)}, {v(self.V_POLLOFF)}, {WS}, {s(self.S_POLL)} offen sc1")
        return [f]

    def flag_store(self, sreg):
        return f"buffer_store_dword {v(self.V_ONE)}, {v(self.V_FLAG0)}, {WS}, {s(sreg)} offen sc1"

    def finish_stage(self):
        A = self.A
        A("s_waitcnt lgkmcnt(0)")
        A("s_barrier")
        A(f"v_xor_b32 {v(self.V_RD)}, 0x10000, {v(self.V_RD)}")
        A(f"v_xor_b32 {v(self.V_WR)}, 0x10000, {v(self.V_WR)}")

    def blocking_fetch(self):
        A = self.A
        if self.sync:
            self.set_poll_base(self.S_NX)
            poll_block(A, self.V_POLL, self.V_POLLOFF, s(self.S_POLL), True, self.S_SPIN)
        self.set_load_base(self.S_NX)
        self.ld_bases()
        for x in self.loads():
            A(x)
        for f in self.issue_poll():
            f()
        for x in self.writes():
            A(x)

    def emit(self, flag_at, write_at):
        A, n = self.A, self.name
        A(f"v_mov_b32 {v(self.V_ONE)}, 1")
        lane0_off(A, self.V_FLAG0, "0")
        A(f"s_mov_b32 {s(self.S_FPREV)}, {OOR:#x}")
        A(f"s_mov_b32 {s(self.S_NX)}, {s(self.S_IT)}")
        self.blocking_fetch()
        self.finish_stage()
        if n in ("qk", "vv"):
            tstamp(A, 4, 200)
        A.label(f"L_{n}_top")
        for x in self.post_loads():
            x() if callable(x) else A(x)
        self.set_out_base()
        A(f"s_add_u32 {s(self.S_NX)}, {s(self.S_IT)}, {self.step}")
        A(f"s_cmp_ge_u32 {s(self.S_NX)}, {self.end}")
        A(f"s_cbranch_scc1 L_{n}_nopf")
        if self.sync:
            A(f"v_cmp_eq_u32 vcc, 0, {v(self.V_POLL)}")
            A(f"s_cbranch_vccnz L_{n}_nopf")
        self.set_load_base(self.S_NX)
        self.ld_bases()
        lds = self.loads()
        for x in lds:
            A(x)
        main, fill = self.compute()
        if self.sync:
            fill.setdefault(flag_at, []).extend([f"s_waitcnt vmcnt({len(lds)})", self.flag_store(self.S_FPREV)])
            fill[flag_at].extend(self.issue_poll())
        spread(fill, self.writes(), write_at, 2)
        weave(A, main, fill)
        for x in self.epilogue():
            A(x)
        A(f"s_mov_b32 {s(self.S_FPREV)}, {s(self.S_FLG)}")
        A(f"s_mov_b32 {s(self.S_IT)}, {s(self.S_NX)}")
        self.finish_stage()
        A(f"s_branch L_{n}_top")
        A.label(f"L_{n}_nopf")
        main, fill = self.compute()
        if self.sync:
            fill.setdefault(flag_at, []).extend(["s_waitcnt vmcnt(0)", self.flag_store(self.S_FPREV)])
        weave(A, main, fill)
        for x in self.epilogue():
            A(x)
        if self.sync:
            A("s_waitcnt vmcnt(0)")
            A(self.flag_store(self.S_FLG))
        A(f"s_mov_b32 {s(self.S_FPREV)}, {OOR:#x}")
        A(f"s_cmp_ge_u32 {s(self.S_NX)}, {self.end}")
        A(f"s_cbranch_scc1 L_{n}_done")
        self.blocking_fetch()
        A(f"s_mov_b32 {s(self.S_IT)}, {s(self.S_NX)}")
        self.finish_stage()
        A(f"s_branch L_{n}_top")
        A.label(f"L_{n}_done")


class QKV(Gemm):
    ACC, BF, STG, OUT, V_OUT = 12, 44, 76, 112, 9
    S_MAT, S_HP, S_OB = 50, 51, 52

    def __init__(self, A, name, sync, isv):
        super().__init__(A, name, sync, 4, int(os.environ.get('QEND', 64)), 9, self.STG)
        self.isv = isv

    def set_load_base(self, s_it):
        self.A(f"s_mul_i32 {s(self.S_LD)}, {s(s_it)}, 36864")
        self.A(f"s_add_u32 {s(self.S_LD)}, {s(self.S_LD)}, {XH:#x}")

    def set_poll_base(self, s_it):
        self.A(f"s_lshl_b32 {s(self.S_POLL)}, {s(s_it)}, 3")

    def set_out_base(self):
        A = self.A
        A(f"s_lshl_b32 {s(self.S_OUT)}, {s(self.S_IT)}, 18")
        A(f"s_add_u32 {s(self.S_OUT)}, {s(self.S_OUT)}, {s(self.S_OB)}")
        A(f"s_add_u32 {s(self.S_OUT + 1)}, {s(self.S_OUT)}, 4096")
        A(f"s_lshl_b32 {s(self.S_FLG)}, {s(self.S_IT)}, 13")
        A(f"s_add_u32 {s(self.S_FLG)}, {s(self.S_FLG)}, {s(self.S_OB + 1)}")

    def compute(self):
        main, fill = [], {}
        bf = lambda c, u: self.BF + ((c % 4) * 2 + u) * 4
        rd = lambda c, u: f"ds_read_b128 {v(bf(c, u), 4)}, {v(self.V_RD)} offset:{(u * 18 + c) * 1024}"
        pre = [rd(c, u) for c in range(3) for u in range(2)]
        for x in pre:
            self.A(x)
        for c in range(18):
            for u in range(2):
                for t in range(4):
                    acc = v(self.ACC + (u * 4 + t) * 4, 4)
                    w = r(WREG + (c * 4 + t) * 4, 4)
                    b = v(bf(c, u), 4)
                    ab = f"{b}, {w}" if self.isv else f"{w}, {b}"
                    main.append(f"{MF} {acc}, {ab}, {acc if c else 0}")
            if c + 3 < 18:
                fill.setdefault(8 * c, []).append(rd(c + 3, 0))
                fill.setdefault(8 * c + 1, []).append(rd(c + 3, 1))
        return main, fill

    def epilogue(self):
        o = []
        acc = lambda u, t, k: v(self.ACC + (u * 4 + t) * 4 + k)
        if self.isv:
            for t in range(4):
                d = self.OUT + 4 * t
                o += [f"v_cvt_pk_bf16_f32 {v(d)}, {acc(0, t, 0)}, {acc(0, t, 1)}",
                      f"v_cvt_pk_bf16_f32 {v(d + 1)}, {acc(1, t, 0)}, {acc(1, t, 1)}",
                      f"v_cvt_pk_bf16_f32 {v(d + 2)}, {acc(0, t, 2)}, {acc(0, t, 3)}",
                      f"v_cvt_pk_bf16_f32 {v(d + 3)}, {acc(1, t, 2)}, {acc(1, t, 3)}",
                      f"buffer_store_dwordx4 {v(d, 4)}, {v(self.V_OUT)}, {WS}, {s(self.S_OUT)} offen offset:{1024 * t} sc1"]
        else:
            for u in range(2):
                for cc in range(2):
                    d = self.OUT + 4 * (u * 2 + cc)
                    o += [f"v_cvt_pk_bf16_f32 {v(d)}, {acc(u, 2 * cc, 0)}, {acc(u, 2 * cc, 1)}",
                          f"v_cvt_pk_bf16_f32 {v(d + 1)}, {acc(u, 2 * cc, 2)}, {acc(u, 2 * cc, 3)}",
                          f"v_cvt_pk_bf16_f32 {v(d + 2)}, {acc(u, 2 * cc + 1, 0)}, {acc(u, 2 * cc + 1, 1)}",
                          f"v_cvt_pk_bf16_f32 {v(d + 3)}, {acc(u, 2 * cc + 1, 2)}, {acc(u, 2 * cc + 1, 3)}",
                          f"buffer_store_dwordx4 {v(d, 4)}, {v(self.V_OUT)}, {WS}, {s(self.S_OUT + u)} offen offset:{1024 * cc} sc1"]
        return o

    def body(self):
        A = self.A
        sb, st = S_T, S_T + 1
        A(f"s_lshl_b32 {s(st)}, {s(self.S_HP)}, 9")
        A(f"s_lshl_b32 {s(st + 1)}, {s(S_W)}, 7")
        A(f"s_add_u32 {s(st)}, {s(st)}, {s(st + 1)}")
        A(f"v_lshrrev_b32 v10, 3, {v(V_LANE)}")
        A(f"v_lshlrev_b32 v10, 13, v10")
        A(f"v_and_b32 v11, 7, {v(V_LANE)}")
        A(f"v_lshlrev_b32 v11, 4, v11")
        A(f"v_add3_u32 v10, v10, v11, {s(st)}")
        A(f"s_mul_i32 {s(sb)}, {s(S_W)}, 36864")
        tr_addr(A, 11, 12, 13, 8, 1, 128, 8 if self.isv else 16, sb)
        dmas = lambda c: [(SA, 10, (32 * c + 8 * i) * 8192, 1024 * i) for i in range(4)]

        def reads(c):
            o = []
            for t in range(4):
                col = 32 * t if self.isv else 64 * (t // 2) + 8 * (t % 2)
                for rd in range(2):
                    o.append((WREG + (c * 4 + t) * 4 + 2 * rd, 11, 512 * rd + col))
            return o
        load_weights(A, 18, dmas, reads, 4096, 9, sb, st)
        if self.sync:
            tstamp(A, 3)
            wait_registered(A)
        A("s_barrier")
        A(f"v_or_b32 {v(self.V_RD)}, 0x10000, {v(V_L16)}")
        A(f"s_mul_i32 {s(st)}, {s(S_W)}, 9216")
        A(f"v_add_u32 {v(self.V_WR)}, {s(st)}, {v(V_L16)}")
        A(f"v_mov_b32 {v(self.V_LDOFF)}, {v(self.V_WR)}")
        A(f"v_and_b32 {v(self.V_POLLOFF)}, 1, {v(V_LANE)}")
        A(f"v_lshlrev_b32 {v(self.V_POLLOFF)}, 2, {v(self.V_POLLOFF)}")
        A(f"s_lshr_b32 {s(st)}, {s(S_W)}, 1")
        A(f"s_lshl_b32 {s(st + 1)}, {s(self.S_HP)}, 1")
        A(f"s_add_u32 {s(st)}, {s(st)}, {s(st + 1)}")
        A(f"s_lshl_b32 {s(st)}, {s(st)}, 13")
        A(f"s_and_b32 {s(st + 1)}, {s(S_W)}, 1")
        A(f"s_lshl_b32 {s(st + 1)}, {s(st + 1)}, {12 if self.isv else 11}")
        A(f"s_add_u32 {s(st)}, {s(st)}, {s(st + 1)}")
        A(f"v_add_u32 {v(self.V_OUT)}, {s(st)}, {v(V_L16)}")
        A(f"s_add_u32 {s(self.S_OB)}, {s(self.S_MAT)}, 1")
        A(f"s_lshl_b32 {s(self.S_OB)}, {s(self.S_OB)}, 24")
        A(f"s_lshl_b32 {s(st)}, {s(self.S_HP)}, 9")
        A(f"s_lshl_b32 {s(st + 1)}, {s(self.S_MAT)}, 6")
        A(f"s_add_u32 {s(st)}, {s(st)}, {s(st + 1)}")
        A(f"s_lshl_b32 {s(st + 1)}, {s(S_W)}, 4")
        A(f"s_add_u32 {s(st)}, {s(st)}, {s(st + 1)}")
        A(f"s_add_u32 {s(self.S_OB + 1)}, {s(st)}, {F_A:#x}")
        self.emit(flag_at=40, write_at=100)


def role_qkv(A, sync):
    A(f"s_and_b32 {s(Gemm.S_IT)}, {s(S_IDX)}, 3")
    A(f"s_bfe_u32 {s(QKV.S_HP)}, {s(S_IDX)}, {2 | (4 << 16):#x}")
    A(f"s_lshr_b32 {s(QKV.S_MAT)}, {s(S_IDX)}, 6")
    A(f"s_cmp_eq_u32 {s(QKV.S_MAT)}, 2")
    A("s_cbranch_scc1 L_qkv_v")
    srd(A, S_A, KA_WQ, SZ_W)
    A(f"s_load_dwordx2 {s(S_T, 2)}, s[0:1], {KA_WK}")
    A("s_waitcnt lgkmcnt(0)")
    A(f"s_cmp_eq_u32 {s(QKV.S_MAT)}, 1")
    A(f"s_cselect_b32 {s(S_A)}, {s(S_T)}, {s(S_A)}")
    A(f"s_cselect_b32 {s(S_A + 1)}, {s(S_T + 1)}, {s(S_A + 1)}")
    QKV(A, "qk", sync, False).body()
    A("s_branch L_qkv_end")
    A.label("L_qkv_v")
    srd(A, S_A, KA_WV, SZ_W)
    A("s_waitcnt lgkmcnt(0)")
    QKV(A, "vv", sync, True).body()
    A.label("L_qkv_end")


def gemm_addr(A, g, per_wave):
    st = S_T + 1
    A(f"v_or_b32 {v(g.V_RD)}, 0x10000, {v(V_L16)}")
    A(f"s_mul_i32 {s(st)}, {s(S_W)}, {per_wave * 1024}")
    A(f"v_add_u32 {v(g.V_WR)}, {s(st)}, {v(V_L16)}")
    A(f"v_mov_b32 {v(g.V_LDOFF)}, {v(g.V_WR)}")


def cvt2(d, x):
    return f"v_cvt_pk_bf16_f32 {v(d)}, {v(x)}, {v(x + 1)}"


NWG_BC = 64
BC_REP = 4


class BC(Gemm):
    V_OUT, V_OUT2, V_KM, BIAS = 9, 10, 11, 12
    Q, K, KMR, V, VMR, ACC, OF = 20, 36, 68, 84, 116, 132, 204
    S_HP, S_HB, S_Q, S_K, S_V, S_KM, S_CS = 50, 51, 53, 54, 56, 58, 60

    def __init__(self, A, sync):
        super().__init__(A, "bc", sync, BC_REP, 64, 0, 0)

    def set_load_base(self, s_it):
        A = self.A
        A(f"s_lshl_b32 {s(self.S_KM)}, {s(s_it)}, 5")
        A(f"s_add_u32 {s(self.S_KM)}, {s(self.S_KM)}, {s(self.S_HB)}")
        A(f"s_lshl_b32 {s(self.S_V)}, {s(self.S_KM)}, 13")
        A(f"s_lshl_b32 {s(self.S_KM)}, {s(self.S_KM)}, 12")
        A(f"s_add_u32 {s(self.S_K)}, {s(self.S_V)}, {KB:#x}")
        A(f"s_add_u32 {s(self.S_K + 1)}, {s(self.S_V)}, {KB + 4096:#x}")
        A(f"s_add_u32 {s(self.S_Q)}, {s(self.S_V)}, {s(self.S_HB + 1)}")
        A(f"s_add_u32 {s(self.S_V + 1)}, {s(self.S_V)}, {VB + 4096:#x}")
        A(f"s_add_u32 {s(self.S_V)}, {s(self.S_V)}, {VB:#x}")
        A(f"s_add_u32 {s(self.S_KM + 1)}, {s(self.S_KM)}, {VM:#x}")
        A(f"s_add_u32 {s(self.S_KM)}, {s(self.S_KM)}, {KM:#x}")

    def ld_bases(self):
        pass

    def loads(self):
        ld = lambda d, vo, so, i: f"buffer_load_dwordx4 {v(d, 4)}, {v(vo)}, {WS}, {s(so)} offen offset:{1024 * i} sc1"
        o = []
        for c in range(4):
            o += [ld(self.Q + 4 * c, V_L16, self.S_Q, c), ld(self.K + 4 * c, V_L16, self.S_K, c),
                  ld(self.K + 16 + 4 * c, V_L16, self.S_K + 1, c), ld(self.KMR + 4 * c, self.V_KM, self.S_KM, c)]
        for t in range(8):
            o.append(ld(self.V + 4 * t, V_L16, self.S_V + t // 4, t % 4))
            if t % 2 == 0:
                o.append(f"buffer_load_dwordx2 {v(self.VMR + t, 2)}, {v(V_L16)}, {WS}, {s(self.S_KM + 1)} offen offset:{512 * t} sc1")
        return o

    def writes(self):
        return []

    def finish_stage(self):
        self.A(f"v_xor_b32 {v(self.V_RD)}, 0x10000, {v(self.V_RD)}")
        self.A(f"v_xor_b32 {v(self.V_WR)}, 0x10000, {v(self.V_WR)}")

    def set_poll_base(self, s_it):
        A = self.A
        A(f"s_lshl_b32 {s(self.S_POLL)}, {s(s_it)}, 13")
        A(f"s_lshl_b32 {s(S_T + 1)}, {s(self.S_HP)}, 9")
        A(f"s_add_u32 {s(self.S_POLL)}, {s(self.S_POLL)}, {s(S_T + 1)}")
        A(f"s_add_u32 {s(self.S_POLL)}, {s(self.S_POLL)}, {F_A:#x}")

    def set_out_base(self):
        A = self.A
        A(f"s_lshl_b32 {s(self.S_OUT)}, {s(self.S_IT)}, 5")
        A(f"s_add_u32 {s(self.S_OUT)}, {s(self.S_OUT)}, {s(self.S_HP)}")
        A(f"s_mul_i32 {s(self.S_OUT)}, {s(self.S_OUT)}, 18432")
        A(f"s_add_u32 {s(self.S_OUT)}, {s(self.S_OUT)}, {P1:#x}")
        A(f"s_add_u32 {s(self.S_OUT + 1)}, {s(self.S_OUT)}, {16 * 18432}")
        A(f"s_lshl_b32 {s(self.S_FLG)}, {s(self.S_IT)}, 4")
        A(f"s_add_u32 {s(self.S_FLG)}, {s(self.S_FLG)}, {s(self.S_HP)}")
        A(f"s_lshl_b32 {s(self.S_FLG)}, {s(self.S_FLG)}, 2")
        A(f"s_add_u32 {s(self.S_FLG)}, {s(self.S_FLG)}, {s(S_W)}")
        A(f"s_lshl_b32 {s(self.S_FLG)}, {s(self.S_FLG)}, 2")
        A(f"s_add_u32 {s(self.S_FLG)}, {s(self.S_FLG)}, {F_BC:#x}")

    def post_loads(self):
        a = self.ACC
        S, OT, L, PT, PM, ONE, T = a, a + 12, a + 44, a + 48, a + 52, a + 60, a + 68
        M16 = "v_mfma_f32_16x16x16_bf16"
        con = [f"v_mov_b32 {v(ONE + i)}, 0x3f803f80" for i in range(4)] + [f"v_mov_b32 {v(x)}, 0" for x in (PM + 1, PM + 2)]
        o = []
        for c in range(4):
            q = v(self.Q + 4 * c, 4)
            o += [f"{MF} {v(S, 4)}, {v(self.K + 4 * c, 4)}, {q}, {v(S, 4) if c else v(self.BIAS, 4)}", con.pop(),
                  f"{MF} {v(S + 4, 4)}, {v(self.K + 16 + 4 * c, 4)}, {q}, {v(S + 4, 4) if c else v(self.BIAS + 4, 4)}",
                  f"{MF} {v(S + 8, 4)}, {v(self.KMR + 4 * c, 4)}, {q}, {v(S + 8, 4) if c else 0}"]
        o += con
        o += [f"v_max3_f32 {v(T)}, {v(S)}, {v(S + 1)}, {v(S + 2)}",
              f"v_max3_f32 {v(T + 1)}, {v(S + 3)}, {v(S + 4)}, {v(S + 5)}",
              f"v_max3_f32 {v(T)}, {v(T)}, {v(S + 6)}, {v(S + 7)}",
              f"v_max3_f32 {v(T + 1)}, {v(T + 1)}, {v(S + 8)}, {v(S + 9)}",
              f"v_max_f32 {v(T)}, {v(T)}, {v(T + 1)}",
              lambda: xg_reduce(self.A, "v_max_f32", T, T + 1),
              f"v_mul_f32 {v(T)}, {s(self.S_CS)}, {v(T)}"]
        for k in range(0, 10, 2):
            o.append(f"v_pk_fma_f32 {v(S + k, 2)}, {v(S + k, 2)}, {s(self.S_CS, 2)}, {v(T, 2)} "
                     "op_sel_hi:[1,1,0] neg_lo:[0,0,1] neg_hi:[0,0,1]")
        o += [f"v_exp_f32 {v(S + k)}, {v(S + k)}" for k in range(10)]
        o += [cvt2(PT, S), cvt2(PT + 1, S + 4), cvt2(PT + 2, S + 2), cvt2(PM, S + 8), cvt2(PT + 3, S + 6), cvt2(PM + 3, S + 8)]
        o += [f"{MF} {v(L, 4)}, {v(ONE, 4)}, {v(PT, 4)}, 0"]
        o += [f"{MF} {v(OT + 4 * t, 4)}, {v(self.V + 4 * t, 4)}, {v(PT, 4)}, 0" for t in range(3)]
        o += [f"{M16} {v(L, 4)}, {v(ONE, 2)}, {v(PM, 2)}, {v(L, 4)}"]
        o += [f"{MF} {v(OT + 4 * t, 4)}, {v(self.V + 4 * t, 4)}, {v(PT, 4)}, 0" for t in range(3, 8)]
        o += [f"v_rcp_f32 {v(T)}, {v(L)}"]
        fin = []
        for t in range(8):
            d = OT + 4 * t
            o.append(f"{M16} {v(d, 4)}, {v(self.VMR + 2 * (t // 2), 2)}, {v(PM + 2 * (t % 2), 2)}, {v(d, 4)}")
            fin += [f"v_pk_mul_f32 {v(d, 2)}, {v(d, 2)}, {v(T, 2)} op_sel_hi:[1,0]",
                    f"v_pk_mul_f32 {v(d + 2, 2)}, {v(d + 2, 2)}, {v(T, 2)} op_sel_hi:[1,0]",
                    cvt2(OT + 2 * t, d), cvt2(OT + 2 * t + 1, d + 2)]
            if t % 2:
                fin.append(f"ds_write_b128 {v(self.V_WR)}, {v(OT + 2 * t - 2, 4)} offset:{1024 * (t // 2)}")
        return o + fin + ["s_waitcnt lgkmcnt(0)", "s_barrier"]

    def compute(self):
        main, fill = [], {}
        of = lambda i: self.OF + 4 * (i % 5)
        rd = lambda i: f"ds_read_b128 {v(of(i), 4)}, {v(self.V_RD)} offset:{((i % 2) * 8 + i // 2) * 1024}"
        for i in range(4):
            self.A(rd(i))
        for i in range(16):
            kc, u = i // 2, i % 2
            for t in range(9):
                acc = v(self.ACC + (u * 9 + t) * 4, 4)
                main.append(f"{MF} {acc}, {r(WREG + (kc * 9 + t) * 4, 4)}, {v(of(i), 4)}, {acc if kc else 0}")
            if i + 4 < 16:
                fill.setdefault(9 * i, []).append(rd(i + 4))
        return main, fill

    def epilogue(self):
        o = []
        for u in range(2):
            for p in range(4):
                d = self.ACC + (u * 9 + 2 * p) * 4
                o += [cvt2(d + k, d + 2 * k) for k in range(4)]
                o.append(f"buffer_store_dwordx4 {v(d, 4)}, {v(self.V_OUT)}, {WS}, {s(self.S_OUT + u)} offen offset:{1024 * p} sc1")
            d = self.ACC + (u * 9 + 8) * 4
            o += [cvt2(d, d), cvt2(d + 1, d + 2),
                  f"buffer_store_dwordx2 {v(d, 2)}, {v(self.V_OUT2)}, {WS}, {s(self.S_OUT + u)} offen sc1"]
        return o

    def body(self):
        A = self.A
        sb, st = S_T, S_T + 1
        L = v(V_LANE)
        pb, po = S_T + 3, S_T + 4
        A(f"s_mul_i32 {s(pb)}, {s(S_W)}, 9")
        A(f"s_add_u32 {s(pb)}, {s(pb)}, 1")
        A(f"s_lshr_b32 {s(pb)}, {s(pb)}, 1")
        A(f"s_lshr_b32 {s(po)}, {s(S_W)}, 1")
        A(f"s_mul_i32 {s(po)}, {s(po)}, 9")
        A(f"s_add_u32 {s(po)}, {s(po)}, 4")
        A(f"s_mul_i32 {s(st)}, {s(self.S_HP)}, {256 * 1152}")
        A(f"s_lshl_b32 {s(st + 1)}, {s(po)}, 6")
        A(f"s_add_u32 {s(st + 1)}, {s(st + 1)}, {s(st)}")
        A(f"v_lshrrev_b32 v21, 2, {L}")
        A(f"v_mul_u32_u24 v21, 1152, v21")
        A(f"v_and_b32 v22, 3, {L}")
        A(f"v_lshlrev_b32 v22, 4, v22")
        A(f"v_add3_u32 v21, v21, v22, {s(st + 1)}")
        A(f"s_lshl_b32 {s(st + 1)}, {s(pb)}, 6")
        A(f"s_add_u32 {s(st + 1)}, {s(st + 1)}, {s(st)}")
        A(f"v_lshrrev_b32 v20, 4, {L}")
        A(f"v_mul_u32_u24 v20, 1152, v20")
        A(f"v_and_b32 v22, 15, {L}")
        A(f"v_lshlrev_b32 v22, 4, v22")
        A(f"v_add3_u32 v20, v20, v22, {s(st + 1)}")
        A(f"s_mul_i32 {s(sb)}, {s(S_W)}, 40960")
        tr_addr(A, 22, 24, 25, 4, 1, 256, 16, sb)
        tr_addr(A, 23, 24, 25, 4, 1, 64, 16, sb)
        A(f"s_and_b32 {s(st)}, {s(S_W)}, 1")
        A(f"s_lshl_b32 {s(st)}, {s(st)}, 3")
        A(f"v_add_u32 v23, {s(st)}, v23")
        A(f"s_lshl_b32 {s(pb)}, {s(pb)}, 10")
        A(f"v_add_u32 {v(self.V_OUT)}, {s(pb)}, {v(V_L16)}")
        A(f"s_lshl_b32 {s(po)}, {s(po)}, 10")
        A(f"s_add_u32 {s(po)}, {s(po)}, {s(st)}")
        A(f"v_add_u32 {v(self.V_OUT2)}, {s(po)}, {v(V_L16)}")
        dmas = lambda c: [(SA, 20, (32 * c + 4 * i) * 1152, 1024 * i) for i in range(8)] + \
                         [(SA, 21, (32 * c + 16 * i) * 1152, 8192 + 1024 * i) for i in range(2)]

        def reads(c):
            o = []
            for t in range(9):
                for rd in range(2):
                    if t < 8:
                        o.append((WREG + (c * 9 + t) * 4 + 2 * rd, 22, 4096 * rd + 64 * (t // 2) + 8 * (t % 2)))
                    else:
                        o.append((WREG + (c * 9 + t) * 4 + 2 * rd, 23, 8192 + 1024 * rd))
            return o
        load_weights(A, 8, dmas, reads, 10240, 4, sb, st)
        A("s_barrier")
        A(f"s_lshr_b32 {s(st)}, {s(S_W)}, 1")
        A(f"s_and_b32 {s(st + 1)}, {s(S_W)}, 1")
        A(f"s_lshl_b32 {s(self.S_HB)}, {s(self.S_HP)}, 1")
        A(f"s_add_u32 {s(self.S_HB)}, {s(self.S_HB)}, {s(st)}")
        A(f"s_lshl_b32 {s(self.S_HB + 1)}, {s(st + 1)}, 12")
        A(f"s_add_u32 {s(self.S_HB + 1)}, {s(self.S_HB + 1)}, {QB:#x}")
        A(f"s_lshl_b32 {s(pb)}, {s(st + 1)}, 1")
        A(f"s_add_u32 {s(pb)}, {s(pb)}, {s(st)}")
        A(f"s_lshl_b32 {s(pb)}, {s(pb)}, 12")
        A(f"v_mov_b32 {v(self.V_RD)}, {v(V_L16)}")
        A(f"v_add_u32 {v(self.V_WR)}, {s(pb)}, {v(V_L16)}")
        A(f"v_and_b32 {v(self.V_KM)}, 0x3df, {v(V_L16)}")
        A(f"v_min_u32 {v(self.V_POLLOFF)}, {13 * 16}, {v(V_L16)}")
        import math
        cs = 128 ** -0.5 * math.log2(math.e)
        A(f"s_mov_b32 {s(self.S_CS)}, {f32(cs):#x}")
        A(f"s_mov_b32 {s(self.S_CS + 1)}, {f32(cs):#x}")
        A(f"v_and_b32 v20, 15, {L}")
        A(f"s_lshl_b32 {s(st + 1)}, {s(st + 1)}, 4")
        A(f"v_add_u32 v20, {s(st + 1)}, v20")
        A(f"v_lshrrev_b32 v21, 4, {L}")
        A(f"v_lshlrev_b32 v21, 2, v21")
        A(f"v_sub_u32 v20, v20, v21")
        A(f"v_mov_b32 v21, 0xf149f2ca")
        for k in range(8):
            A(f"v_cmp_gt_i32 vcc, {16 * (k // 4) + k % 4}, v20")
            A(f"v_cndmask_b32 {v(self.BIAS + k)}, 0, v21, vcc")
        self.emit(flag_at=4, write_at=0)


def role_bc(A, sync):
    A(f"s_and_b32 {s(Gemm.S_IT)}, {s(S_IDX)}, {BC_REP - 1}")
    A(f"s_lshr_b32 {s(BC.S_HP)}, {s(S_IDX)}, {BC_REP.bit_length() - 1}")
    srd(A, S_A, KA_WO, SZ_W)
    A("s_waitcnt lgkmcnt(0)")
    BC(A, sync).body()


NWG_R1 = 18
NWG_R2 = 18


def reducer(A, sync, first):
    n = "r1" if first else "r2"
    NP = 16 if first else 6
    S_U, S_P, S_X, S_PL, S_SP, S_O = 36, 37, 38, 39, 40, 41
    SEL, ONE, ACC, VX, VPO, VPL, VST, VF0, T, IN = 4, 10, 16, 2, 3, 14, 15, 24, 26, 40
    L = v(V_LANE)
    if first:
        srd(A, S_B, KA_X, SZ_X)
    else:
        srd(A, S_B, KA_OUT, SZ_X)
    A(f"v_and_b32 v20, 15, {L}")
    A(f"v_mul_u32_u24 {v(VX)}, 1152, v20")
    A(f"v_and_b32 v21, 48, {L}")
    A(f"s_lshl_b32 {s(S_T)}, {s(S_IDX)}, 6")
    A(f"v_add3_u32 {v(VX)}, {v(VX)}, v21, {s(S_T)}")
    A(f"v_lshrrev_b32 v21, 4, {L}")
    A(f"v_lshrrev_b32 v22, 2, v20")
    A(f"v_and_b32 v23, 3, {L}")
    A(f"v_cmp_eq_u32 vcc, v21, v22")
    A(f"v_cndmask_b32 v23, 7, v23, vcc")
    for k in (0, 1, 4, 5):
        A(f"v_mov_b32 {v(SEL + k)}, 0")
    for k in range(2):
        A(f"v_mov_b32 v22, 0x3f80")
        A(f"v_cmp_eq_u32 vcc, {2 * k}, v23")
        A(f"v_cndmask_b32 {v(SEL + 2 + k)}, 0, v22, vcc")
        A(f"v_mov_b32 v22, 0x3f800000")
        A(f"v_cmp_eq_u32 vcc, {2 * k + 1}, v23")
        A(f"v_cndmask_b32 {v(SEL + 2 + k)}, {v(SEL + 2 + k)}, v22, vcc")
    if first:
        for k in range(4):
            A(f"v_mov_b32 {v(ONE + k)}, 0x3f803f80")
        A(f"v_lshlrev_b32 v20, 3, v20")
        A(f"v_mov_b32 {v(VST)}, {OOR:#x}")
        A(f"v_cmp_eq_u32 vcc, 0, v21")
        A(f"v_cndmask_b32 {v(VST)}, {v(VST)}, v20, vcc")
        A(f"v_lshlrev_b32 {v(VPO)}, 2, {L}")
        lane0_off(A, VF0, "0")
        A(f"v_mov_b32 {v(VF0 + 1)}, 1")
    else:
        A(f"s_mul_i32 {s(S_T)}, {s(S_IDX)}, 43")
        A(f"s_lshr_b32 {s(S_T)}, {s(S_T)}, 8")
        A(f"s_lshl_b32 {s(S_T)}, {s(S_T)}, 7")
        A(f"v_min_u32 {v(VPO)}, 23, {L}")
        A(f"v_lshlrev_b32 {v(VPO)}, 2, {v(VPO)}")
        A(f"v_add_u32 {v(VPO)}, {s(S_T)}, {v(VPO)}")
    A(f"s_mov_b32 {s(S_U)}, {s(S_W)}")
    A("s_waitcnt lgkmcnt(0)")
    A.label(f"L_{n}_top")
    A(f"s_mul_i32 {s(S_X)}, {s(S_U)}, 18432")
    A(f"s_lshl_b32 {s(S_T)}, {s(S_IDX)}, 10")
    A(f"s_add_u32 {s(S_O)}, {s(S_X)}, {s(S_T)}")
    A(f"s_mul_i32 {s(S_P)}, {s(S_X)}, {NP}")
    A(f"s_add_u32 {s(S_P)}, {s(S_P)}, {s(S_T)}")
    A(f"s_add_u32 {s(S_P)}, {s(S_P)}, {P1 if first else P2:#x}")
    A(f"s_add_u32 {s(S_O)}, {s(S_O)}, {HH:#x}")
    if first:
        A(f"buffer_load_dwordx4 {v(IN, 4)}, {v(VX)}, {SB}, {s(S_X)} offen")
    if sync:
        if first:
            A(f"s_lshr_b32 {s(S_PL)}, {s(S_U)}, 1")
            A(f"s_lshl_b32 {s(S_PL)}, {s(S_PL)}, 8")
            A(f"s_add_u32 {s(S_PL)}, {s(S_PL)}, {F_BC:#x}")
        else:
            A(f"s_lshl_b32 {s(S_PL)}, {s(S_U)}, 9")
            A(f"s_add_u32 {s(S_PL)}, {s(S_PL)}, {F_E:#x}")
        poll_block(A, VPL, VPO, s(S_PL), True, S_SP)
    if not first:
        A(f"buffer_load_dwordx4 {v(IN, 4)}, {v(V_L16)}, {WS}, {s(S_O)} offen sc1")
    for p in range(NP):
        A(f"buffer_load_dwordx4 {v(IN + 4 + 4 * p, 4)}, {v(V_L16)}, {WS}, {s(S_P)} offen sc1")
        if p + 1 < NP:
            A(f"s_add_u32 {s(S_P)}, {s(S_P)}, 18432")
    for p in range(NP + 1):
        A(f"{MF} {v(ACC, 4)}, {v(SEL + 2, 4)}, {v(IN + 4 * p, 4)}, {v(ACC, 4) if p else 0}")
        A(f"{MF} {v(ACC + 4, 4)}, {v(SEL, 4)}, {v(IN + 4 * p, 4)}, {v(ACC + 4, 4) if p else 0}")
    for k in range(4):
        A(cvt2(IN + k, ACC + 2 * k))
    if not first:
        A(f"buffer_store_dwordx4 {v(IN, 4)}, {v(VX)}, {SB}, {s(S_X)} offen")
    else:
        A(f"buffer_store_dwordx4 {v(IN, 4)}, {v(V_L16)}, {WS}, {s(S_O)} offen sc1")
        A(f"{MF} {v(T, 4)}, {v(ONE, 4)}, {v(IN, 4)}, 0")
        for k in range(4):
            A(f"v_lshlrev_b32 {v(ACC + 2 * k)}, 16, {v(IN + k)}")
            A(f"v_and_b32 {v(ACC + 2 * k + 1)}, 0xffff0000, {v(IN + k)}")
        A(f"s_lshl_b32 {s(S_T)}, {s(S_U)}, 5")
        A(f"s_add_u32 {s(S_T)}, {s(S_T)}, {s(S_IDX)}")
        A(f"s_lshl_b32 {s(S_T + 1)}, {s(S_T)}, 7")
        A(f"s_add_u32 {s(S_T + 1)}, {s(S_T + 1)}, {ST:#x}")
        A(f"v_mul_f32 {v(T + 2)}, {f32(-1.0 / 32):#x}, {v(T)}")
        for k in range(0, 8, 2):
            A(f"v_pk_add_f32 {v(ACC + k, 2)}, {v(ACC + k, 2)}, {v(T + 2, 2)} op_sel_hi:[1,0]")
        A(f"v_pk_mul_f32 {v(ACC, 2)}, {v(ACC, 2)}, {v(ACC, 2)}")
        for k in range(2, 8, 2):
            A(f"v_pk_fma_f32 {v(ACC, 2)}, {v(ACC + k, 2)}, {v(ACC + k, 2)}, {v(ACC, 2)}")
        A(f"v_add_f32 {v(T + 1)}, {v(ACC)}, {v(ACC + 1)}")
        xg_reduce(A, "v_add_f32", T + 1, T + 2)
        A(f"buffer_store_dwordx2 {v(T, 2)}, {v(VST)}, {WS}, {s(S_T + 1)} offen sc1")
        if sync:
            A(f"s_lshl_b32 {s(S_T)}, {s(S_T)}, 2")
            A(f"s_add_u32 {s(S_T)}, {s(S_T)}, {F_R1:#x}")
            A("s_waitcnt vmcnt(0)")
            A(f"buffer_store_dword {v(VF0 + 1)}, {v(VF0)}, {WS}, {s(S_T)} offen sc1")
    A(f"s_add_u32 {s(S_U)}, {s(S_U)}, 4")
    A(f"s_cmp_lt_u32 {s(S_U)}, 128")
    A(f"s_cbranch_scc1 L_{n}_top")


def role_r1(A, sync):
    reducer(A, sync, True)


def role_r2(A, sync):
    reducer(A, sync, False)


NWG_DD = 72


class DD(Gemm):
    ACC, BF, STG, CS, SN, SC_, T, V_ST, V_ST4, V_VAL = 12, 28, 44, 64, 80, 90, 100, 9, 10, 11
    S_SL, S_ST = 50, 51

    def __init__(self, A, sync):
        super().__init__(A, "dd", sync, 2, 128, 5, self.STG)

    def set_load_base(self, s_it):
        A = self.A
        A(f"s_mul_i32 {s(self.S_LD)}, {s(s_it)}, 18432")
        A(f"s_add_u32 {s(self.S_LD)}, {s(self.S_LD)}, {HH:#x}")
        A(f"s_lshl_b32 {s(self.S_ST)}, {s(s_it)}, 12")
        A(f"s_add_u32 {s(self.S_ST)}, {s(self.S_ST)}, {ST:#x}")

    def extra_loads(self):
        return [f"buffer_load_dwordx2 {v(self.SN + 2 * i, 2)}, {v(self.V_ST if i < 4 else self.V_ST4)}, {WS}, "
                f"{s(self.S_ST)} offen offset:{512 * i} sc1" for i in range(5)]

    def post_loads(self):
        return [f"v_mov_b64 {v(self.SC_ + 2 * i, 2)}, {v(self.SN + 2 * i, 2)}" for i in range(5)]

    def set_poll_base(self, s_it):
        self.A(f"s_lshl_b32 {s(self.S_POLL)}, {s(s_it)}, 7")
        self.A(f"s_add_u32 {s(self.S_POLL)}, {s(self.S_POLL)}, {F_R1:#x}")

    def set_out_base(self):
        A = self.A
        A(f"s_mul_i32 {s(self.S_OUT)}, {s(self.S_IT)}, 144")
        A(f"s_add_u32 {s(self.S_OUT)}, {s(self.S_OUT)}, {s(self.S_SL)}")
        A(f"s_lshl_b32 {s(self.S_OUT)}, {s(self.S_OUT)}, 10")
        A(f"s_add_u32 {s(self.S_OUT)}, {s(self.S_OUT)}, {ACT:#x}")
        A(f"s_lshl_b32 {s(self.S_FLG)}, {s(self.S_IT)}, 8")
        A(f"s_add_u32 {s(self.S_FLG)}, {s(self.S_FLG)}, {s(self.S_SL)}")
        A(f"s_lshl_b32 {s(self.S_FLG)}, {s(self.S_FLG)}, 2")
        A(f"s_add_u32 {s(self.S_FLG)}, {s(self.S_FLG)}, {F_D:#x}")

    def stats(self):
        S, T = self.SC_, self.T
        o = []
        xg = lambda op, x, t: [f"v_mov_b32 {v(t)}, {v(x)}", f"v_permlane32_swap_b32 {v(x)}, {v(t)}",
                               f"{op} {v(x)}, {v(x)}, {v(t)}", f"v_mov_b32 {v(t)}, {v(x)}",
                               f"v_permlane16_swap_b32 {v(x)}, {v(t)}", f"{op} {v(x)}, {v(x)}, {v(t)}"]
        rnd = lambda x: [f"v_cvt_pk_bf16_f32 {v(x)}, {v(x)}, {v(x)}", f"v_and_b32 {v(x)}, 0xffff0000, {v(x)}"]
        o += [f"v_add_f32 {v(T)}, {v(S)}, {v(S + 2)}", f"v_add_f32 {v(T + 1)}, {v(S + 4)}, {v(S + 6)}",
              f"v_add_f32 {v(T + 2)}, {v(S + 1)}, {v(S + 3)}", f"v_add_f32 {v(T + 3)}, {v(S + 5)}, {v(S + 7)}",
              f"v_add_f32 {v(T)}, {v(T)}, {v(S + 8)}", f"v_add_f32 {v(T + 2)}, {v(T + 2)}, {v(S + 9)}",
              f"v_add_f32 {v(T)}, {v(T)}, {v(T + 1)}", f"v_add_f32 {v(T + 2)}, {v(T + 2)}, {v(T + 3)}"]
        o += xg("v_add_f32", T, T + 1)
        o += [f"v_mul_f32 {v(T + 1)}, {f32(-1.0 / 18):#x}, {v(T)}"]
        o += [f"v_add_f32 {v(S + 2 * i)}, {v(S + 2 * i)}, {v(T + 1)}" for i in range(5)]
        o += [f"v_mul_f32 {v(S + 8)}, {v(S + 8)}, {v(self.V_VAL)}", f"v_mul_f32 {v(T + 3)}, {v(S)}, {v(S)}"]
        o += [f"v_fmac_f32 {v(T + 3)}, {v(S + 2 * i)}, {v(S + 2 * i)}" for i in range(1, 5)]
        o += [f"v_fmac_f32 {v(T + 2)}, {f32(1.0 / 32):#x}, {v(T + 3)}"]
        o += xg("v_add_f32", T + 2, T + 1)
        o += [f"v_mul_f32 {v(T)}, {f32(-1.0 / 576):#x}, {v(T)}"] + rnd(T)
        o += [f"v_mul_f32 {v(T + 2)}, {f32(1.0 / 576):#x}, {v(T + 2)}"] + rnd(T + 2)
        o += [f"v_add_f32 {v(T + 2)}, {f32(1e-5):#x}, {v(T + 2)}"] + rnd(T + 2)
        o += [f"v_sqrt_f32 {v(T + 2)}, {v(T + 2)}"] + rnd(T + 2)
        o += [f"v_rcp_f32 {v(T + 2)}, {v(T + 2)}", f"v_mul_f32 {v(T + 2)}, {v(T + 2)}, {v(T + 2)}"]
        return o

    def compute(self):
        main, fill = [], {}
        bf = lambda c: self.BF + (c % 4) * 4
        rd = lambda c: f"ds_read_b128 {v(bf(c), 4)}, {v(self.V_RD)} offset:{c * 1024}"
        for c in range(3):
            self.A(rd(c))
        for c in range(18):
            for t in range(4):
                acc = v(self.ACC + 4 * t, 4)
                main.append(f"{MF} {acc}, {r(WREG + (c * 4 + t) * 4, 4)}, {v(bf(c), 4)}, {acc if c else 0}")
            if c + 3 < 18:
                fill.setdefault(4 * c, []).append(rd(c + 3))
        spread(fill, self.stats(), 2, 1)
        return main, fill

    def epilogue(self):
        a, T = self.ACC, self.T
        o = [f"v_pk_fma_f32 {v(a + k, 2)}, {v(self.CS + k, 2)}, {v(T, 2)}, {v(a + k, 2)} op_sel_hi:[1,0,1]" for k in range(0, 16, 2)]
        o += [f"v_max_f32 {v(a + k)}, 0, {v(a + k)}" for k in range(8)]
        o += [f"v_pk_mul_f32 {v(a + 8 + k, 2)}, {v(a + 8 + k, 2)}, {v(T + 2, 2)} op_sel_hi:[1,0]" for k in range(0, 8, 2)]
        o += [f"v_pk_mul_f32 {v(a + k, 2)}, {v(a + k, 2)}, {v(a + 8 + k, 2)}" for k in range(0, 8, 2)]
        o += [cvt2(T + 4 + k, a + 2 * k) for k in range(4)]
        o += [f"buffer_store_dwordx4 {v(T + 4, 4)}, {v(V_L16)}, {WS}, {s(self.S_OUT)} offen sc1"]
        return o

    def body(self):
        A = self.A
        sb, st = S_T, S_T + 1
        L = v(V_LANE)
        A(f"s_lshl_b32 {s(self.S_SL)}, {s(self.S_SL)}, 2")
        A(f"s_add_u32 {s(self.S_SL)}, {s(self.S_SL)}, {s(S_W)}")
        A(f"s_lshl_b32 {s(st)}, {s(self.S_SL)}, 6")
        A(f"v_lshrrev_b32 v20, 2, {L}")
        A(f"v_mul_u32_u24 v20, 9216, v20")
        A(f"v_and_b32 v21, 3, {L}")
        A(f"v_lshlrev_b32 v21, 4, v21")
        A(f"v_add3_u32 v20, v20, v21, {s(st)}")
        A(f"s_mul_i32 {s(sb)}, {s(S_W)}, 36864")
        tr_addr(A, 21, 22, 23, 8, 1, 64, 16, sb)
        dmas = lambda c: [((SA, SB)[i // 2], 20, (32 * c + 16 * (i % 2)) * 9216, 1024 * i) for i in range(4)]
        reads = lambda c: [(WREG + (c * 4 + t) * 4 + 2 * rd, 21, 2048 * (t // 2) + 8 * (t % 2) + 256 * rd)
                           for t in range(4) for rd in range(2)]
        load_weights(A, 18, dmas, reads, 4096, 9, sb, st)
        A("s_barrier")
        for k in range(4):
            A(f"v_mov_b32 {v(self.BF + k)}, 0x3f803f80")
        for c in range(18):
            for t in range(4):
                cs = v(self.CS + 4 * t, 4)
                A(f"{MF} {cs}, {r(WREG + (c * 4 + t) * 4, 4)}, {v(self.BF, 4)}, {cs if c else 0}")
        gemm_addr(A, self, 4)
        A(f"s_min_u32 {s(st)}, {s(S_W)}, 1")
        A(f"s_lshl_b32 {s(st)}, {s(st)}, 10")
        A(f"v_add_u32 {v(self.V_WR)}, {s(st)}, {v(self.V_WR)}")
        A(f"v_mov_b32 {v(self.V_LDOFF)}, {v(self.V_WR)}")
        A(f"v_min_u32 {v(self.V_POLLOFF)}, 17, {L}")
        A(f"v_lshlrev_b32 {v(self.V_POLLOFF)}, 2, {v(self.V_POLLOFF)}")
        A(f"v_lshlrev_b32 {v(self.V_ST)}, 3, {L}")
        A(f"v_mov_b32 {v(self.V_ST4)}, {OOR:#x}")
        A(f"v_cmp_gt_u32 vcc, 32, {L}")
        A(f"v_cndmask_b32 {v(self.V_ST4)}, {v(self.V_ST4)}, {v(self.V_ST)}, vcc")
        A(f"v_cndmask_b32 {v(self.V_VAL)}, 0, 1.0, vcc")
        self.emit(flag_at=16, write_at=60)


def role_dd(A, sync):
    A(f"s_and_b32 {s(Gemm.S_IT)}, {s(S_IDX)}, 1")
    A(f"s_lshr_b32 {s(DD.S_SL)}, {s(S_IDX)}, 1")
    srd(A, S_A, KA_WG, SZ_WF)
    srd(A, S_B, KA_WU, SZ_WF)
    A("s_waitcnt lgkmcnt(0)")
    DD(A, sync).body()


NWG_EE = 36


class EE(Gemm):
    ACC, BF, STG, V_OUT, V_OUT2 = 12, 28, 44, 9, 10
    S_KS, S_NS = 50, 51

    def __init__(self, A, sync):
        super().__init__(A, "ee", sync, 2, 128, 6, self.STG)

    def set_load_base(self, s_it):
        A = self.A
        A(f"s_mul_i32 {s(self.S_LD)}, {s(s_it)}, 6")
        A(f"s_add_u32 {s(self.S_LD)}, {s(self.S_LD)}, {s(self.S_KS)}")
        A(f"s_mul_i32 {s(self.S_LD)}, {s(self.S_LD)}, 24576")
        A(f"s_add_u32 {s(self.S_LD)}, {s(self.S_LD)}, {ACT:#x}")

    def set_poll_base(self, s_it):
        self.A(f"s_lshl_b32 {s(self.S_POLL)}, {s(s_it)}, 10")
        self.A(f"s_add_u32 {s(self.S_POLL)}, {s(self.S_POLL)}, {F_D:#x}")

    def set_out_base(self):
        A = self.A
        A(f"s_mul_i32 {s(self.S_OUT)}, {s(self.S_IT)}, 6")
        A(f"s_add_u32 {s(self.S_OUT)}, {s(self.S_OUT)}, {s(self.S_KS)}")
        A(f"s_mul_i32 {s(self.S_OUT)}, {s(self.S_OUT)}, 18432")
        A(f"s_add_u32 {s(self.S_OUT)}, {s(self.S_OUT)}, {P2:#x}")
        A(f"s_lshl_b32 {s(self.S_FLG)}, {s(self.S_IT)}, 9")
        A(f"s_add_u32 {s(self.S_FLG)}, {s(self.S_FLG)}, {s(self.S_NS)}")

    def compute(self):
        main, fill = [], {}
        bf = lambda c: self.BF + (c % 4) * 4
        rd = lambda c: f"ds_read_b128 {v(bf(c), 4)}, {v(self.V_RD)} offset:{c * 1024}"
        for c in range(3):
            self.A(rd(c))
        for c in range(24):
            for t in range(3):
                acc = v(self.ACC + 4 * t, 4)
                main.append(f"{MF} {acc}, {r(WREG + (c * 3 + t) * 4, 4)}, {v(bf(c), 4)}, {acc if c else 0}")
            if c + 3 < 24:
                fill.setdefault(3 * c, []).append(rd(c + 3))
        return main, fill

    def epilogue(self):
        a = self.ACC
        return [cvt2(a + k, a + 2 * k) for k in range(4)] + \
            [f"buffer_store_dwordx4 {v(a, 4)}, {v(self.V_OUT)}, {WS}, {s(self.S_OUT)} offen sc1",
             cvt2(a + 8, a + 8), cvt2(a + 9, a + 10),
             f"buffer_store_dwordx2 {v(a + 8, 2)}, {v(self.V_OUT2)}, {WS}, {s(self.S_OUT)} offen sc1"]

    def body(self):
        A = self.A
        sb, st = S_T, S_T + 1
        pb, po = S_T + 3, S_T + 4
        L = v(V_LANE)
        A(f"s_mul_i32 {s(st)}, {s(self.S_NS)}, 6")
        A(f"s_mul_i32 {s(pb)}, {s(S_W)}, 3")
        A(f"s_add_u32 {s(pb)}, {s(pb)}, 1")
        A(f"s_lshr_b32 {s(pb)}, {s(pb)}, 1")
        A(f"s_add_u32 {s(pb)}, {s(pb)}, {s(st)}")
        A(f"s_lshr_b32 {s(po)}, {s(S_W)}, 1")
        A(f"s_mul_i32 {s(po)}, {s(po)}, 3")
        A(f"s_add_u32 {s(po)}, {s(po)}, 1")
        A(f"s_add_u32 {s(po)}, {s(po)}, {s(st)}")
        A(f"s_mul_i32 {s(st)}, {s(self.S_KS)}, {768 * 1152}")
        A(f"v_lshrrev_b32 v20, 2, {L}")
        A(f"v_mul_u32_u24 v20, 1152, v20")
        A(f"v_and_b32 v21, 3, {L}")
        A(f"v_lshlrev_b32 v21, 4, v21")
        A(f"v_add3_u32 v20, v20, v21, {s(st)}")
        A(f"s_lshl_b32 {s(st)}, {s(po)}, 6")
        A(f"v_add_u32 v21, {s(st)}, v20")
        A(f"s_lshl_b32 {s(st)}, {s(pb)}, 6")
        A(f"v_add_u32 v20, {s(st)}, v20")
        A(f"s_mul_i32 {s(sb)}, {s(S_W)}, 36864")
        tr_addr(A, 22, 24, 25, 8, 1, 64, 16, sb)
        A(f"s_and_b32 {s(st)}, {s(S_W)}, 1")
        A(f"s_lshl_b32 {s(st)}, {s(st)}, 3")
        A(f"v_add_u32 v23, {s(st)}, v22")
        A(f"s_lshl_b32 {s(pb)}, {s(pb)}, 10")
        A(f"v_add_u32 {v(self.V_OUT)}, {s(pb)}, {v(V_L16)}")
        A(f"s_lshl_b32 {s(po)}, {s(po)}, 10")
        A(f"s_add_u32 {s(po)}, {s(po)}, {s(st)}")
        A(f"v_add_u32 {v(self.V_OUT2)}, {s(po)}, {v(V_L16)}")
        dmas = lambda c: [(SA, 20 + i // 2, (32 * c + 16 * (i % 2)) * 1152, 1024 * i) for i in range(4)]
        reads = lambda c: [(WREG + (c * 3 + t) * 4 + 2 * rd, 22 + t // 2, 2048 * (t // 2) + 8 * (t % 2) + 256 * rd)
                           for t in range(3) for rd in range(2)]
        load_weights(A, 24, dmas, reads, 4096, 9, sb, st)
        A("s_barrier")
        gemm_addr(A, self, 6)
        A(f"s_mul_i32 {s(st)}, {s(self.S_KS)}, 96")
        A(f"v_min_u32 {v(self.V_POLLOFF)}, 23, {L}")
        A(f"v_lshlrev_b32 {v(self.V_POLLOFF)}, 2, {v(self.V_POLLOFF)}")
        A(f"v_add_u32 {v(self.V_POLLOFF)}, {s(st)}, {v(self.V_POLLOFF)}")
        A(f"s_lshl_b32 {s(self.S_NS)}, {s(self.S_NS)}, 5")
        A(f"s_lshl_b32 {s(st)}, {s(self.S_KS)}, 2")
        A(f"s_add_u32 {s(self.S_NS)}, {s(self.S_NS)}, {s(st)}")
        A(f"s_add_u32 {s(self.S_NS)}, {s(self.S_NS)}, {s(S_W)}")
        A(f"s_lshl_b32 {s(self.S_NS)}, {s(self.S_NS)}, 2")
        A(f"s_add_u32 {s(self.S_NS)}, {s(self.S_NS)}, {F_E:#x}")
        self.emit(flag_at=16, write_at=58)


def role_ee(A, sync):
    A(f"s_and_b32 {s(Gemm.S_IT)}, {s(S_IDX)}, 1")
    A(f"s_lshr_b32 {s(EE.S_KS)}, {s(S_IDX)}, 1")
    A(f"s_mul_i32 {s(EE.S_NS)}, {s(EE.S_KS)}, 43")
    A(f"s_lshr_b32 {s(EE.S_NS)}, {s(EE.S_NS)}, 8")
    A(f"s_mul_i32 {s(S_T)}, {s(EE.S_NS)}, 6")
    A(f"s_sub_u32 {s(EE.S_KS)}, {s(EE.S_KS)}, {s(S_T)}")
    srd(A, S_A, KA_WD, SZ_WF)
    A("s_waitcnt lgkmcnt(0)")
    EE(A, sync).body()
```

```python
from common import *

WREG = 224
MF = "v_mfma_f32_16x16x32_bf16"


def load_weights(A, nchunk, dmas, reads, slot_bytes, nslots, s_base, s_tmp, pol="nt"):
    issued = []

    def issue(c):
        for (sr, vo, so, rel) in dmas(c):
            A(f"s_add_u32 m0, {s(s_base)}, {(c % nslots) * slot_bytes + rel:#x}")
            A(f"s_mov_b32 {s(s_tmp)}, {so:#x}")
            A(f"buffer_load_dwordx4 {v(vo)}, {sr}, {s(s_tmp)} offen {pol} lds")
            issued.append(c)

    for c in range(min(nslots, nchunk)):
        issue(c)
    for c in range(nchunk):
        after = sum(1 for x in issued if x > c)
        assert after <= 63
        A(f"s_waitcnt vmcnt({after})")
        for (dst, va, rel) in reads(c):
            A(f"ds_read_b64_tr_b16 {r(dst, 2)}, {v(va)} offset:{(c % nslots) * slot_bytes + rel}")
        if c + nslots < nchunk:
            A("s_waitcnt lgkmcnt(0)")
            issue(c + nslots)
    A("s_waitcnt lgkmcnt(0)")


def tr_addr(A, dst, t0, t1, row_g, row_r, rowbytes, colbytes, s_base):
    A(f"v_lshrrev_b32 {v(t0)}, 4, {v(V_LANE)}")
    A(f"v_mul_u32_u24 {v(t0)}, {row_g * rowbytes}, {v(t0)}")
    A(f"v_bfe_u32 {v(t1)}, {v(V_LANE)}, 2, 2")
    A(f"v_mul_u32_u24 {v(t1)}, {row_r * rowbytes}, {v(t1)}")
    A(f"v_add_u32 {v(t0)}, {v(t0)}, {v(t1)}")
    A(f"v_and_b32 {v(t1)}, 3, {v(V_LANE)}")
    A(f"v_mul_u32_u24 {v(t1)}, {colbytes}, {v(t1)}")
    A(f"v_add3_u32 {v(dst)}, {v(t0)}, {v(t1)}, {s(s_base)}")


def role_ln1(A, sync):
    X, D, ONES, ACC = 16, 96, 4, 8
    su = S_T
    srd(A, S_B, KA_X, SZ_X)
    A(f"s_lshl_b32 {s(su)}, {s(S_IDX)}, 2")
    A(f"s_add_u32 {s(su)}, {s(su)}, {s(S_W)}")
    A(f"s_mul_i32 {s(su + 1)}, {s(su)}, {16 * 1152}")
    A(f"v_and_b32 v2, 15, {v(V_LANE)}")
    A(f"v_mul_u32_u24 v2, 1152, v2")
    A(f"v_and_b32 v3, 48, {v(V_LANE)}")
    A(f"v_add_u32 v2, v2, v3")
    A("s_waitcnt lgkmcnt(0)")
    for c in range(18):
        A(f"buffer_load_dwordx4 {v(X + 4 * c, 4)}, v2, {SB}, {s(su + 1)} offen offset:{64 * c}")
    for i in range(4):
        A(f"v_mov_b32 {v(ONES + i)}, 0x3f803f80")
    for c in range(18):
        A(f"{MF} {v(ACC, 4)}, {v(ONES, 4)}, {v(X + 4 * c, 4)}, {v(ACC, 4) if c else 0}")
    MEAN, MB = 12, 13
    A(f"v_mul_f32 {v(MEAN)}, {1.0 / 576:.9e}, {v(ACC)}".replace(f"{1.0 / 576:.9e}", f"{f32(1.0 / 576):#x}"))
    A(f"v_mov_b32 {v(MB)}, {v(MEAN)}")
    bf16_round(A, MB)
    for i in range(4):
        A(f"v_mov_b32 {v(ONES + i)}, 0")
    for i in range(72):
        lo, hi = D + 2 * i, D + 2 * i + 1
        A(f"v_lshlrev_b32 {v(lo)}, 16, {v(X + i)}")
        A(f"v_and_b32 {v(hi)}, 0xffff0000, {v(X + i)}")
        A(f"v_sub_f32 v2, {v(lo)}, {v(MEAN)}")
        A(f"v_sub_f32 v3, {v(hi)}, {v(MEAN)}")
        A(f"v_sub_f32 {v(lo)}, {v(lo)}, {v(MB)}")
        A(f"v_sub_f32 {v(hi)}, {v(hi)}, {v(MB)}")
        A(f"v_fmac_f32 {v(ONES + (2 * i) % 4)}, v2, v2")
        A(f"v_fmac_f32 {v(ONES + (2 * i + 1) % 4)}, v3, v3")
    A(f"v_add_f32 {v(ONES)}, {v(ONES)}, {v(ONES + 1)}")
    A(f"v_add_f32 {v(ONES + 2)}, {v(ONES + 2)}, {v(ONES + 3)}")
    A(f"v_add_f32 {v(ONES)}, {v(ONES)}, {v(ONES + 2)}")
    xg_reduce(A, "v_add_f32", ONES, 2)
    A(f"v_mul_f32 {v(ONES)}, {f32(1.0 / 576):#x}, {v(ONES)}")
    bf16_round(A, ONES)
    A(f"v_add_f32 {v(ONES)}, {f32(1e-5):#x}, {v(ONES)}")
    bf16_round(A, ONES)
    A(f"v_sqrt_f32 {v(ONES)}, {v(ONES)}")
    bf16_round(A, ONES)
    A(f"v_rcp_f32 {v(ONES)}, {v(ONES)}")
    A(f"s_mul_i32 {s(su + 1)}, {s(su)}, {18 * 1024}")
    A(f"s_add_u32 {s(su + 1)}, {s(su + 1)}, {XH:#x}")
    for c in range(18):
        for j in range(4):
            i = 4 * c + j
            lo, hi = D + 2 * i, D + 2 * i + 1
            A(f"v_cvt_pk_bf16_f32 v2, {v(lo)}, {v(hi)}")
            A(f"v_lshlrev_b32 {v(lo)}, 16, v2")
            A(f"v_and_b32 {v(hi)}, 0xffff0000, v2")
            A(f"v_mul_f32 {v(lo)}, {v(lo)}, {v(ONES)}")
            A(f"v_mul_f32 {v(hi)}, {v(hi)}, {v(ONES)}")
            A(f"v_cvt_pk_bf16_f32 {v(X + i)}, {v(lo)}, {v(hi)}")
        if c and c % 4 == 0:
            A(f"s_add_u32 {s(su + 1)}, {s(su + 1)}, 4096")
        A(f"buffer_store_dwordx4 {v(X + 4 * c, 4)}, {v(V_L16)}, {WS}, {s(su + 1)} offen offset:{1024 * (c % 4)} sc1")
    if sync:
        wait_registered(A)
        A(f"s_lshl_b32 {s(su)}, {s(S_IDX)}, 2")
        A(f"s_add_u32 {s(su)}, {s(su)}, {s(S_W)}")
        lane0_off(A, 2, "0")
        A(f"v_mov_b32 v3, 1")
        A(f"s_lshl_b32 {s(su + 1)}, {s(su)}, 2")
        A(f"s_add_u32 {s(su + 1)}, {s(su + 1)}, {F_LN:#x}")
        A("s_waitcnt vmcnt(0)")
        A(f"buffer_store_dword v3, v2, {WS}, {s(su + 1)} offen sc1")


def f32(x):
    import struct
    return struct.unpack("<I", struct.pack("<f", x))[0]


class Gemm:
    S_IT, S_NX, S_LD, S_FLG, S_FPREV, S_POLL, S_OUT, S_SPIN = 36, 37, 38, 42, 43, 44, 45, 49
    V_RD, V_WR, V_LDOFF, V_FLAG0, V_ONE, V_POLLOFF, V_POLL = 2, 3, 4, 5, 6, 7, 8

    def __init__(self, A, name, sync, step, end, nload, stage_reg):
        self.A, self.name, self.sync = A, name, sync
        self.step, self.end, self.nload, self.stage = step, end, nload, stage_reg

    def set_load_base(self, s_it):
        raise NotImplementedError

    def set_poll_base(self, s_it):
        raise NotImplementedError

    def set_out_base(self):
        raise NotImplementedError

    def extra_loads(self):
        return []

    def loads(self):
        out = []
        for i in range(self.nload):
            out.append(f"buffer_load_dwordx4 {v(self.stage + 4 * i, 4)}, {v(self.V_LDOFF)}, {WS}, "
                       f"{s(self.S_LD + i // 4)} offen offset:{1024 * (i % 4)} sc1")
        return self.extra_loads() + out

    def writes(self):
        return [f"ds_write_b128 {v(self.V_WR)}, {v(self.stage + 4 * i, 4)} offset:{1024 * i}"
                for i in range(self.nload)]

    def post_loads(self):
        return []

    def ld_bases(self):
        A = self.A
        for k in range(1, (self.nload + 3) // 4):
            A(f"s_add_u32 {s(self.S_LD + k)}, {s(self.S_LD)}, {4096 * k}")

    def issue_poll(self):
        if not self.sync:
            return []
        A = self.A

        def f():
            A(f"s_add_u32 {s(S_T)}, {s(self.S_NX)}, {self.step}")
            A(f"s_min_u32 {s(S_T)}, {s(S_T)}, {self.end - 1}")
            self.set_poll_base(S_T)
            A(f"buffer_load_dword {v(self.V_POLL)}, {v(self.V_POLLOFF)}, {WS}, {s(self.S_POLL)} offen sc1")
        return [f]

    def flag_store(self, sreg):
        return f"buffer_store_dword {v(self.V_ONE)}, {v(self.V_FLAG0)}, {WS}, {s(sreg)} offen sc1"

    def finish_stage(self):
        A = self.A
        A("s_waitcnt lgkmcnt(0)")
        A("s_barrier")
        A(f"v_xor_b32 {v(self.V_RD)}, 0x10000, {v(self.V_RD)}")
        A(f"v_xor_b32 {v(self.V_WR)}, 0x10000, {v(self.V_WR)}")

    def blocking_fetch(self):
        A = self.A
        if self.sync:
            self.set_poll_base(self.S_NX)
            poll_block(A, self.V_POLL, self.V_POLLOFF, s(self.S_POLL), True, self.S_SPIN)
        self.set_load_base(self.S_NX)
        self.ld_bases()
        for x in self.loads():
            A(x)
        for f in self.issue_poll():
            f()
        for x in self.writes():
            A(x)

    def emit(self, flag_at, write_at):
        A, n = self.A, self.name
        A(f"v_mov_b32 {v(self.V_ONE)}, 1")
        lane0_off(A, self.V_FLAG0, "0")
        A(f"s_mov_b32 {s(self.S_FPREV)}, {OOR:#x}")
        A(f"s_mov_b32 {s(self.S_NX)}, {s(self.S_IT)}")
        self.blocking_fetch()
        self.finish_stage()
        if n in ("qk", "vv"):
            tstamp(A, 4, 200)
        A.label(f"L_{n}_top")
        for x in self.post_loads():
            x() if callable(x) else A(x)
        self.set_out_base()
        A(f"s_add_u32 {s(self.S_NX)}, {s(self.S_IT)}, {self.step}")
        A(f"s_cmp_ge_u32 {s(self.S_NX)}, {self.end}")
        A(f"s_cbranch_scc1 L_{n}_nopf")
        if self.sync:
            A(f"v_cmp_eq_u32 vcc, 0, {v(self.V_POLL)}")
            A(f"s_cbranch_vccnz L_{n}_nopf")
        self.set_load_base(self.S_NX)
        self.ld_bases()
        lds = self.loads()
        for x in lds:
            A(x)
        main, fill = self.compute()
        if self.sync:
            fill.setdefault(flag_at, []).extend([f"s_waitcnt vmcnt({len(lds)})", self.flag_store(self.S_FPREV)])
            fill[flag_at].extend(self.issue_poll())
        spread(fill, self.writes(), write_at, 2)
        weave(A, main, fill)
        for x in self.epilogue():
            A(x)
        A(f"s_mov_b32 {s(self.S_FPREV)}, {s(self.S_FLG)}")
        A(f"s_mov_b32 {s(self.S_IT)}, {s(self.S_NX)}")
        self.finish_stage()
        A(f"s_branch L_{n}_top")
        A.label(f"L_{n}_nopf")
        main, fill = self.compute()
        if self.sync:
            fill.setdefault(flag_at, []).extend(["s_waitcnt vmcnt(0)", self.flag_store(self.S_FPREV)])
        weave(A, main, fill)
        for x in self.epilogue():
            A(x)
        if self.sync:
            A("s_waitcnt vmcnt(0)")
            A(self.flag_store(self.S_FLG))
        A(f"s_mov_b32 {s(self.S_FPREV)}, {OOR:#x}")
        A(f"s_cmp_ge_u32 {s(self.S_NX)}, {self.end}")
        A(f"s_cbranch_scc1 L_{n}_done")
        self.blocking_fetch()
        A(f"s_mov_b32 {s(self.S_IT)}, {s(self.S_NX)}")
        self.finish_stage()
        A(f"s_branch L_{n}_top")
        A.label(f"L_{n}_done")


class QKV(Gemm):
    ACC, BF, STG, OUT, V_OUT = 12, 44, 76, 112, 9
    S_MAT, S_HP, S_OB = 50, 51, 52

    def __init__(self, A, name, sync, isv):
        super().__init__(A, name, sync, 4, int(os.environ.get('QEND', 64)), 9, self.STG)
        self.isv = isv

    def set_load_base(self, s_it):
        self.A(f"s_mul_i32 {s(self.S_LD)}, {s(s_it)}, 36864")
        self.A(f"s_add_u32 {s(self.S_LD)}, {s(self.S_LD)}, {XH:#x}")

    def set_poll_base(self, s_it):
        self.A(f"s_lshl_b32 {s(self.S_POLL)}, {s(s_it)}, 3")

    def set_out_base(self):
        A = self.A
        A(f"s_lshl_b32 {s(self.S_OUT)}, {s(self.S_IT)}, 18")
        A(f"s_add_u32 {s(self.S_OUT)}, {s(self.S_OUT)}, {s(self.S_OB)}")
        A(f"s_add_u32 {s(self.S_OUT + 1)}, {s(self.S_OUT)}, 4096")
        A(f"s_lshl_b32 {s(self.S_FLG)}, {s(self.S_IT)}, 13")
        A(f"s_add_u32 {s(self.S_FLG)}, {s(self.S_FLG)}, {s(self.S_OB + 1)}")

    def compute(self):
        main, fill = [], {}
        bf = lambda c, u: self.BF + ((c % 4) * 2 + u) * 4
        rd = lambda c, u: f"ds_read_b128 {v(bf(c, u), 4)}, {v(self.V_RD)} offset:{(u * 18 + c) * 1024}"
        pre = [rd(c, u) for c in range(3) for u in range(2)]
        for x in pre:
            self.A(x)
        for c in range(18):
            for u in range(2):
                for t in range(4):
                    acc = v(self.ACC + (u * 4 + t) * 4, 4)
                    w = r(WREG + (c * 4 + t) * 4, 4)
                    b = v(bf(c, u), 4)
                    ab = f"{b}, {w}" if self.isv else f"{w}, {b}"
                    main.append(f"{MF} {acc}, {ab}, {acc if c else 0}")
            if c + 3 < 18:
                fill.setdefault(8 * c, []).append(rd(c + 3, 0))
                fill.setdefault(8 * c + 1, []).append(rd(c + 3, 1))
        return main, fill

    def epilogue(self):
        o = []
        acc = lambda u, t, k: v(self.ACC + (u * 4 + t) * 4 + k)
        if self.isv:
            for t in range(4):
                d = self.OUT + 4 * t
                o += [f"v_cvt_pk_bf16_f32 {v(d)}, {acc(0, t, 0)}, {acc(0, t, 1)}",
                      f"v_cvt_pk_bf16_f32 {v(d + 1)}, {acc(1, t, 0)}, {acc(1, t, 1)}",
                      f"v_cvt_pk_bf16_f32 {v(d + 2)}, {acc(0, t, 2)}, {acc(0, t, 3)}",
                      f"v_cvt_pk_bf16_f32 {v(d + 3)}, {acc(1, t, 2)}, {acc(1, t, 3)}",
                      f"buffer_store_dwordx4 {v(d, 4)}, {v(self.V_OUT)}, {WS}, {s(self.S_OUT)} offen offset:{1024 * t} sc1"]
        else:
            for u in range(2):
                for cc in range(2):
                    d = self.OUT + 4 * (u * 2 + cc)
                    o += [f"v_cvt_pk_bf16_f32 {v(d)}, {acc(u, 2 * cc, 0)}, {acc(u, 2 * cc, 1)}",
                          f"v_cvt_pk_bf16_f32 {v(d + 1)}, {acc(u, 2 * cc, 2)}, {acc(u, 2 * cc, 3)}",
                          f"v_cvt_pk_bf16_f32 {v(d + 2)}, {acc(u, 2 * cc + 1, 0)}, {acc(u, 2 * cc + 1, 1)}",
                          f"v_cvt_pk_bf16_f32 {v(d + 3)}, {acc(u, 2 * cc + 1, 2)}, {acc(u, 2 * cc + 1, 3)}",
                          f"buffer_store_dwordx4 {v(d, 4)}, {v(self.V_OUT)}, {WS}, {s(self.S_OUT + u)} offen offset:{1024 * cc} sc1"]
        return o

    def body(self):
        A = self.A
        sb, st = S_T, S_T + 1
        A(f"s_lshl_b32 {s(st)}, {s(self.S_HP)}, 9")
        A(f"s_lshl_b32 {s(st + 1)}, {s(S_W)}, 7")
        A(f"s_add_u32 {s(st)}, {s(st)}, {s(st + 1)}")
        A(f"v_lshrrev_b32 v10, 3, {v(V_LANE)}")
        A(f"v_lshlrev_b32 v10, 13, v10")
        A(f"v_and_b32 v11, 7, {v(V_LANE)}")
        A(f"v_lshlrev_b32 v11, 4, v11")
        A(f"v_add3_u32 v10, v10, v11, {s(st)}")
        A(f"s_mul_i32 {s(sb)}, {s(S_W)}, 36864")
        tr_addr(A, 11, 12, 13, 8, 1, 128, 8 if self.isv else 16, sb)
        dmas = lambda c: [(SA, 10, (32 * c + 8 * i) * 8192, 1024 * i) for i in range(4)]

        def reads(c):
            o = []
            for t in range(4):
                col = 32 * t if self.isv else 64 * (t // 2) + 8 * (t % 2)
                for rd in range(2):
                    o.append((WREG + (c * 4 + t) * 4 + 2 * rd, 11, 512 * rd + col))
            return o
        load_weights(A, 18, dmas, reads, 4096, 9, sb, st)
        if self.sync:
            tstamp(A, 3)
            wait_registered(A)
        A("s_barrier")
        A(f"v_or_b32 {v(self.V_RD)}, 0x10000, {v(V_L16)}")
        A(f"s_mul_i32 {s(st)}, {s(S_W)}, 9216")
        A(f"v_add_u32 {v(self.V_WR)}, {s(st)}, {v(V_L16)}")
        A(f"v_mov_b32 {v(self.V_LDOFF)}, {v(self.V_WR)}")
        A(f"v_and_b32 {v(self.V_POLLOFF)}, 1, {v(V_LANE)}")
        A(f"v_lshlrev_b32 {v(self.V_POLLOFF)}, 2, {v(self.V_POLLOFF)}")
        A(f"s_lshr_b32 {s(st)}, {s(S_W)}, 1")
        A(f"s_lshl_b32 {s(st + 1)}, {s(self.S_HP)}, 1")
        A(f"s_add_u32 {s(st)}, {s(st)}, {s(st + 1)}")
        A(f"s_lshl_b32 {s(st)}, {s(st)}, 13")
        A(f"s_and_b32 {s(st + 1)}, {s(S_W)}, 1")
        A(f"s_lshl_b32 {s(st + 1)}, {s(st + 1)}, {12 if self.isv else 11}")
        A(f"s_add_u32 {s(st)}, {s(st)}, {s(st + 1)}")
        A(f"v_add_u32 {v(self.V_OUT)}, {s(st)}, {v(V_L16)}")
        A(f"s_add_u32 {s(self.S_OB)}, {s(self.S_MAT)}, 1")
        A(f"s_lshl_b32 {s(self.S_OB)}, {s(self.S_OB)}, 24")
        A(f"s_lshl_b32 {s(st)}, {s(self.S_HP)}, 9")
        A(f"s_lshl_b32 {s(st + 1)}, {s(self.S_MAT)}, 6")
        A(f"s_add_u32 {s(st)}, {s(st)}, {s(st + 1)}")
        A(f"s_lshl_b32 {s(st + 1)}, {s(S_W)}, 4")
        A(f"s_add_u32 {s(st)}, {s(st)}, {s(st + 1)}")
        A(f"s_add_u32 {s(self.S_OB + 1)}, {s(st)}, {F_A:#x}")
        self.emit(flag_at=40, write_at=100)


def role_qkv(A, sync):
    A(f"s_and_b32 {s(Gemm.S_IT)}, {s(S_IDX)}, 3")
    A(f"s_bfe_u32 {s(QKV.S_HP)}, {s(S_IDX)}, {2 | (4 << 16):#x}")
    A(f"s_lshr_b32 {s(QKV.S_MAT)}, {s(S_IDX)}, 6")
    A(f"s_cmp_eq_u32 {s(QKV.S_MAT)}, 2")
    A("s_cbranch_scc1 L_qkv_v")
    srd(A, S_A, KA_WQ, SZ_W)
    A(f"s_load_dwordx2 {s(S_T, 2)}, s[0:1], {KA_WK}")
    A("s_waitcnt lgkmcnt(0)")
    A(f"s_cmp_eq_u32 {s(QKV.S_MAT)}, 1")
    A(f"s_cselect_b32 {s(S_A)}, {s(S_T)}, {s(S_A)}")
    A(f"s_cselect_b32 {s(S_A + 1)}, {s(S_T + 1)}, {s(S_A + 1)}")
    QKV(A, "qk", sync, False).body()
    A("s_branch L_qkv_end")
    A.label("L_qkv_v")
    srd(A, S_A, KA_WV, SZ_W)
    A("s_waitcnt lgkmcnt(0)")
    QKV(A, "vv", sync, True).body()
    A.label("L_qkv_end")


def gemm_addr(A, g, per_wave):
    st = S_T + 1
    A(f"v_or_b32 {v(g.V_RD)}, 0x10000, {v(V_L16)}")
    A(f"s_mul_i32 {s(st)}, {s(S_W)}, {per_wave * 1024}")
    A(f"v_add_u32 {v(g.V_WR)}, {s(st)}, {v(V_L16)}")
    A(f"v_mov_b32 {v(g.V_LDOFF)}, {v(g.V_WR)}")


def cvt2(d, x):
    return f"v_cvt_pk_bf16_f32 {v(d)}, {v(x)}, {v(x + 1)}"


NWG_BC = 64
BC_REP = 4


class BC(Gemm):
    V_OUT, V_OUT2, V_KM, BIAS = 9, 10, 11, 12
    V_L8 = 4
    Q, K, KMR, V, VMR, ACC, OF = 20, 36, 68, 84, 116, 132, 204
    S_HP, S_HB, S_Q, S_K, S_V, S_KM, S_CS = 50, 51, 53, 54, 56, 58, 60

    def __init__(self, A, sync):
        super().__init__(A, "bc", sync, BC_REP, 64, 0, 0)

    def set_load_base(self, s_it):
        A = self.A
        A(f"s_lshl_b32 {s(self.S_KM)}, {s(s_it)}, 5")
        A(f"s_add_u32 {s(self.S_KM)}, {s(self.S_KM)}, {s(self.S_HB)}")
        A(f"s_lshl_b32 {s(self.S_V)}, {s(self.S_KM)}, 13")
        A(f"s_lshl_b32 {s(self.S_KM)}, {s(self.S_KM)}, 12")
        A(f"s_add_u32 {s(self.S_K)}, {s(self.S_V)}, {KB:#x}")
        A(f"s_add_u32 {s(self.S_K + 1)}, {s(self.S_V)}, {KB + 4096:#x}")
        A(f"s_add_u32 {s(self.S_Q)}, {s(self.S_V)}, {s(self.S_HB + 1)}")
        A(f"s_add_u32 {s(self.S_V + 1)}, {s(self.S_V)}, {VB + 4096:#x}")
        A(f"s_add_u32 {s(self.S_V)}, {s(self.S_V)}, {VB:#x}")
        A(f"s_add_u32 {s(self.S_KM + 1)}, {s(self.S_KM)}, {VM:#x}")
        A(f"s_add_u32 {s(self.S_KM)}, {s(self.S_KM)}, {KM:#x}")

    def ld_bases(self):
        pass

    def loads(self):
        ld = lambda d, vo, so, i: f"buffer_load_dwordx4 {v(d, 4)}, {v(vo)}, {WS}, {s(so)} offen offset:{1024 * i} sc1"
        o = []
        for c in range(4):
            o += [ld(self.Q + 4 * c, V_L16, self.S_Q, c), ld(self.K + 4 * c, V_L16, self.S_K, c),
                  ld(self.K + 16 + 4 * c, V_L16, self.S_K + 1, c), ld(self.KMR + 4 * c, self.V_KM, self.S_KM, c)]
        for t in range(8):
            o.append(ld(self.V + 4 * t, V_L16, self.S_V + t // 4, t % 4))
            if t % 2 == 0:
                o.append(f"buffer_load_dwordx2 {v(self.VMR + t, 2)}, {v(self.V_L8)}, {WS}, {s(self.S_KM + 1)} offen offset:{512 * t} sc1")
        return o

    def writes(self):
        return []

    def finish_stage(self):
        self.A(f"v_xor_b32 {v(self.V_RD)}, 0x10000, {v(self.V_RD)}")
        self.A(f"v_xor_b32 {v(self.V_WR)}, 0x10000, {v(self.V_WR)}")

    def set_poll_base(self, s_it):
        A = self.A
        A(f"s_lshl_b32 {s(self.S_POLL)}, {s(s_it)}, 13")
        A(f"s_lshl_b32 {s(S_T + 1)}, {s(self.S_HP)}, 9")
        A(f"s_add_u32 {s(self.S_POLL)}, {s(self.S_POLL)}, {s(S_T + 1)}")
        A(f"s_add_u32 {s(self.S_POLL)}, {s(self.S_POLL)}, {F_A:#x}")

    def set_out_base(self):
        A = self.A
        A(f"s_lshl_b32 {s(self.S_OUT)}, {s(self.S_IT)}, 5")
        A(f"s_add_u32 {s(self.S_OUT)}, {s(self.S_OUT)}, {s(self.S_HP)}")
        A(f"s_mul_i32 {s(self.S_OUT)}, {s(self.S_OUT)}, 18432")
        A(f"s_add_u32 {s(self.S_OUT)}, {s(self.S_OUT)}, {P1:#x}")
        A(f"s_add_u32 {s(self.S_OUT + 1)}, {s(self.S_OUT)}, {16 * 18432}")
        A(f"s_lshl_b32 {s(self.S_FLG)}, {s(self.S_IT)}, 4")
        A(f"s_add_u32 {s(self.S_FLG)}, {s(self.S_FLG)}, {s(self.S_HP)}")
        A(f"s_lshl_b32 {s(self.S_FLG)}, {s(self.S_FLG)}, 2")
        A(f"s_add_u32 {s(self.S_FLG)}, {s(self.S_FLG)}, {s(S_W)}")
        A(f"s_lshl_b32 {s(self.S_FLG)}, {s(self.S_FLG)}, 2")
        A(f"s_add_u32 {s(self.S_FLG)}, {s(self.S_FLG)}, {F_BC:#x}")

    def post_loads(self):
        a = self.ACC
        S, OT, L, PT, PM, ONE, T = a, a + 12, a + 44, a + 48, a + 52, a + 60, a + 68
        M16 = "v_mfma_f32_16x16x16_bf16"
        con = [f"v_mov_b32 {v(ONE + i)}, 0x3f803f80" for i in range(4)] + [f"v_mov_b32 {v(x)}, 0" for x in (PM + 1, PM + 2)]
        o = []
        for c in range(4):
            q = v(self.Q + 4 * c, 4)
            o += [f"{MF} {v(S, 4)}, {v(self.K + 4 * c, 4)}, {q}, {v(S, 4) if c else v(self.BIAS, 4)}", con.pop(),
                  f"{MF} {v(S + 4, 4)}, {v(self.K + 16 + 4 * c, 4)}, {q}, {v(S + 4, 4) if c else v(self.BIAS + 4, 4)}",
                  f"{MF} {v(S + 8, 4)}, {v(self.KMR + 4 * c, 4)}, {q}, {v(S + 8, 4) if c else 0}"]
        o += con
        o += [f"v_max3_f32 {v(T)}, {v(S)}, {v(S + 1)}, {v(S + 2)}",
              f"v_max3_f32 {v(T + 1)}, {v(S + 3)}, {v(S + 4)}, {v(S + 5)}",
              f"v_max3_f32 {v(T)}, {v(T)}, {v(S + 6)}, {v(S + 7)}",
              f"v_max3_f32 {v(T + 1)}, {v(T + 1)}, {v(S + 8)}, {v(S + 9)}",
              f"v_max_f32 {v(T)}, {v(T)}, {v(T + 1)}",
              lambda: xg_reduce(self.A, "v_max_f32", T, T + 1),
              f"v_mul_f32 {v(T)}, {s(self.S_CS)}, {v(T)}"]
        for k in range(0, 10, 2):
            o.append(f"v_pk_fma_f32 {v(S + k, 2)}, {v(S + k, 2)}, {s(self.S_CS, 2)}, {v(T, 2)} "
                     "op_sel_hi:[1,1,0] neg_lo:[0,0,1] neg_hi:[0,0,1]")
        o += [f"v_exp_f32 {v(S + k)}, {v(S + k)}" for k in range(10)]
        o += [cvt2(PT, S), cvt2(PT + 1, S + 4), cvt2(PT + 2, S + 2), cvt2(PM, S + 8), cvt2(PT + 3, S + 6), cvt2(PM + 3, S + 8)]
        o += [f"{MF} {v(L, 4)}, {v(ONE, 4)}, {v(PT, 4)}, 0"]
        o += [f"{MF} {v(OT + 4 * t, 4)}, {v(self.V + 4 * t, 4)}, {v(PT, 4)}, 0" for t in range(3)]
        o += [f"{M16} {v(L, 4)}, {v(ONE, 2)}, {v(PM, 2)}, {v(L, 4)}"]
        o += [f"{MF} {v(OT + 4 * t, 4)}, {v(self.V + 4 * t, 4)}, {v(PT, 4)}, 0" for t in range(3, 8)]
        o += [f"v_rcp_f32 {v(T)}, {v(L)}"]
        fin = []
        for t in range(8):
            d = OT + 4 * t
            o.append(f"{M16} {v(d, 4)}, {v(self.VMR + 2 * (t // 2), 2)}, {v(PM + 2 * (t % 2), 2)}, {v(d, 4)}")
            fin += [f"v_pk_mul_f32 {v(d, 2)}, {v(d, 2)}, {v(T, 2)} op_sel_hi:[1,0]",
                    f"v_pk_mul_f32 {v(d + 2, 2)}, {v(d + 2, 2)}, {v(T, 2)} op_sel_hi:[1,0]",
                    cvt2(OT + 2 * t, d), cvt2(OT + 2 * t + 1, d + 2)]
            if t % 2:
                fin.append(f"ds_write_b128 {v(self.V_WR)}, {v(OT + 2 * t - 2, 4)} offset:{1024 * (t // 2)}")
        return o + fin + ["s_waitcnt lgkmcnt(0)", "s_barrier"]

    def compute(self):
        main, fill = [], {}
        of = lambda i: self.OF + 4 * (i % 5)
        rd = lambda i: f"ds_read_b128 {v(of(i), 4)}, {v(self.V_RD)} offset:{((i % 2) * 8 + i // 2) * 1024}"
        for i in range(4):
            self.A(rd(i))
        for i in range(16):
            kc, u = i // 2, i % 2
            for t in range(9):
                acc = v(self.ACC + (u * 9 + t) * 4, 4)
                main.append(f"{MF} {acc}, {r(WREG + (kc * 9 + t) * 4, 4)}, {v(of(i), 4)}, {acc if kc else 0}")
            if i + 4 < 16:
                fill.setdefault(9 * i, []).append(rd(i + 4))
        return main, fill

    def epilogue(self):
        o = []
        for u in range(2):
            for p in range(4):
                d = self.ACC + (u * 9 + 2 * p) * 4
                o += [cvt2(d + k, d + 2 * k) for k in range(4)]
                o.append(f"buffer_store_dwordx4 {v(d, 4)}, {v(self.V_OUT)}, {WS}, {s(self.S_OUT + u)} offen offset:{1024 * p} sc1")
            d = self.ACC + (u * 9 + 8) * 4
            o += [cvt2(d, d), cvt2(d + 1, d + 2),
                  f"buffer_store_dwordx2 {v(d, 2)}, {v(self.V_OUT2)}, {WS}, {s(self.S_OUT + u)} offen sc1"]
        return o

    def body(self):
        A = self.A
        sb, st = S_T, S_T + 1
        L = v(V_LANE)
        pb, po = S_T + 3, S_T + 4
        A(f"s_mul_i32 {s(pb)}, {s(S_W)}, 9")
        A(f"s_add_u32 {s(pb)}, {s(pb)}, 1")
        A(f"s_lshr_b32 {s(pb)}, {s(pb)}, 1")
        A(f"s_lshr_b32 {s(po)}, {s(S_W)}, 1")
        A(f"s_mul_i32 {s(po)}, {s(po)}, 9")
        A(f"s_add_u32 {s(po)}, {s(po)}, 4")
        A(f"s_mul_i32 {s(st)}, {s(self.S_HP)}, {256 * 1152}")
        A(f"s_lshl_b32 {s(st + 1)}, {s(po)}, 6")
        A(f"s_add_u32 {s(st + 1)}, {s(st + 1)}, {s(st)}")
        A(f"v_lshrrev_b32 v21, 2, {L}")
        A(f"v_mul_u32_u24 v21, 1152, v21")
        A(f"v_and_b32 v22, 3, {L}")
        A(f"v_lshlrev_b32 v22, 4, v22")
        A(f"v_add3_u32 v21, v21, v22, {s(st + 1)}")
        A(f"s_lshl_b32 {s(st + 1)}, {s(pb)}, 6")
        A(f"s_add_u32 {s(st + 1)}, {s(st + 1)}, {s(st)}")
        A(f"v_lshrrev_b32 v20, 4, {L}")
        A(f"v_mul_u32_u24 v20, 1152, v20")
        A(f"v_and_b32 v22, 15, {L}")
        A(f"v_lshlrev_b32 v22, 4, v22")
        A(f"v_add3_u32 v20, v20, v22, {s(st + 1)}")
        A(f"s_mul_i32 {s(sb)}, {s(S_W)}, 40960")
        tr_addr(A, 22, 24, 25, 4, 1, 256, 16, sb)
        tr_addr(A, 23, 24, 25, 4, 1, 64, 16, sb)
        A(f"s_and_b32 {s(st)}, {s(S_W)}, 1")
        A(f"s_lshl_b32 {s(st)}, {s(st)}, 3")
        A(f"v_add_u32 v23, {s(st)}, v23")
        A(f"s_lshl_b32 {s(pb)}, {s(pb)}, 10")
        A(f"v_add_u32 {v(self.V_OUT)}, {s(pb)}, {v(V_L16)}")
        A(f"s_lshl_b32 {s(po)}, {s(po)}, 10")
        A(f"s_lshl_b32 {s(st)}, {s(st)}, 6")
        A(f"s_add_u32 {s(po)}, {s(po)}, {s(st)}")
        A(f"v_lshrrev_b32 {v(self.V_OUT2)}, 1, {v(V_L16)}")
        A(f"v_add_u32 {v(self.V_OUT2)}, {s(po)}, {v(self.V_OUT2)}")
        dmas = lambda c: [(SA, 20, (32 * c + 4 * i) * 1152, 1024 * i) for i in range(8)] + \
                         [(SA, 21, (32 * c + 16 * i) * 1152, 8192 + 1024 * i) for i in range(2)]

        def reads(c):
            o = []
            for t in range(9):
                for rd in range(2):
                    if t < 8:
                        o.append((WREG + (c * 9 + t) * 4 + 2 * rd, 22, 4096 * rd + 64 * (t // 2) + 8 * (t % 2)))
                    else:
                        o.append((WREG + (c * 9 + t) * 4 + 2 * rd, 23, 8192 + 1024 * rd))
            return o
        load_weights(A, 8, dmas, reads, 10240, 4, sb, st)
        A("s_barrier")
        A(f"s_lshr_b32 {s(st)}, {s(S_W)}, 1")
        A(f"s_and_b32 {s(st + 1)}, {s(S_W)}, 1")
        A(f"s_lshl_b32 {s(self.S_HB)}, {s(self.S_HP)}, 1")
        A(f"s_add_u32 {s(self.S_HB)}, {s(self.S_HB)}, {s(st)}")
        A(f"s_lshl_b32 {s(self.S_HB + 1)}, {s(st + 1)}, 12")
        A(f"s_add_u32 {s(self.S_HB + 1)}, {s(self.S_HB + 1)}, {QB:#x}")
        A(f"s_lshl_b32 {s(pb)}, {s(st + 1)}, 1")
        A(f"s_add_u32 {s(pb)}, {s(pb)}, {s(st)}")
        A(f"s_lshl_b32 {s(pb)}, {s(pb)}, 12")
        A(f"v_mov_b32 {v(self.V_RD)}, {v(V_L16)}")
        A(f"v_add_u32 {v(self.V_WR)}, {s(pb)}, {v(V_L16)}")
        A(f"v_and_b32 {v(self.V_KM)}, 0x3df, {v(V_L16)}")
        A(f"v_lshrrev_b32 {v(self.V_L8)}, 1, {v(V_L16)}")
        A(f"v_min_u32 {v(self.V_POLLOFF)}, {13 * 16}, {v(V_L16)}")
        import math
        cs = 128 ** -0.5 * math.log2(math.e)
        A(f"s_mov_b32 {s(self.S_CS)}, {f32(cs):#x}")
        A(f"s_mov_b32 {s(self.S_CS + 1)}, {f32(cs):#x}")
        A(f"v_and_b32 v20, 15, {L}")
        A(f"s_lshl_b32 {s(st + 1)}, {s(st + 1)}, 4")
        A(f"v_add_u32 v20, {s(st + 1)}, v20")
        A(f"v_lshrrev_b32 v21, 4, {L}")
        A(f"v_lshlrev_b32 v21, 2, v21")
        A(f"v_sub_u32 v20, v20, v21")
        A(f"v_mov_b32 v21, 0xf149f2ca")
        for k in range(8):
            A(f"v_cmp_gt_i32 vcc, {16 * (k // 4) + k % 4}, v20")
            A(f"v_cndmask_b32 {v(self.BIAS + k)}, 0, v21, vcc")
        self.emit(flag_at=4, write_at=0)


def role_bc(A, sync):
    A(f"s_and_b32 {s(Gemm.S_IT)}, {s(S_IDX)}, {BC_REP - 1}")
    A(f"s_lshr_b32 {s(BC.S_HP)}, {s(S_IDX)}, {BC_REP.bit_length() - 1}")
    srd(A, S_A, KA_WO, SZ_W)
    A("s_waitcnt lgkmcnt(0)")
    BC(A, sync).body()


NWG_R1 = 18
NWG_R2 = 18


def reducer(A, sync, first):
    n = "r1" if first else "r2"
    NP = 16 if first else 6
    S_U, S_P, S_X, S_PL, S_SP, S_O, S_SPL = 36, 37, 38, 39, 40, 41, 42
    VL8 = 30
    SEL, ONE, ACC, VX, VPO, VPL, VST, VF0, T, IN = 4, 10, 16, 2, 3, 14, 15, 24, 26, 40
    L = v(V_LANE)
    if first:
        srd(A, S_B, KA_X, SZ_X)
    else:
        srd(A, S_B, KA_OUT, SZ_X)
    A(f"v_and_b32 v20, 15, {L}")
    A(f"v_mul_u32_u24 {v(VX)}, 1152, v20")
    A(f"v_and_b32 v21, 48, {L}")
    A(f"s_lshl_b32 {s(S_T)}, {s(S_IDX)}, 6")
    A(f"v_add3_u32 {v(VX)}, {v(VX)}, v21, {s(S_T)}")
    A(f"v_lshrrev_b32 v21, 4, {L}")
    A(f"v_lshrrev_b32 v22, 2, v20")
    A(f"v_and_b32 v23, 3, {L}")
    A(f"v_cmp_eq_u32 vcc, v21, v22")
    A(f"v_cndmask_b32 v23, 7, v23, vcc")
    for k in (0, 1, 4, 5):
        A(f"v_mov_b32 {v(SEL + k)}, 0")
    for k in range(2):
        A(f"v_mov_b32 v22, 0x3f80")
        A(f"v_cmp_eq_u32 vcc, {2 * k}, v23")
        A(f"v_cndmask_b32 {v(SEL + 2 + k)}, 0, v22, vcc")
        A(f"v_mov_b32 v22, 0x3f800000")
        A(f"v_cmp_eq_u32 vcc, {2 * k + 1}, v23")
        A(f"v_cndmask_b32 {v(SEL + 2 + k)}, {v(SEL + 2 + k)}, v22, vcc")
    if first:
        for k in range(4):
            A(f"v_mov_b32 {v(ONE + k)}, 0x3f803f80")
        A(f"v_lshlrev_b32 v20, 3, v20")
        A(f"v_mov_b32 {v(VST)}, {OOR:#x}")
        A(f"v_cmp_eq_u32 vcc, 0, v21")
        A(f"v_cndmask_b32 {v(VST)}, {v(VST)}, v20, vcc")
        A(f"v_lshlrev_b32 {v(VPO)}, 2, {L}")
        lane0_off(A, VF0, "0")
        A(f"v_mov_b32 {v(VF0 + 1)}, 1")
    else:
        A(f"s_mul_i32 {s(S_T)}, {s(S_IDX)}, 43")
        A(f"s_lshr_b32 {s(S_T)}, {s(S_T)}, 8")
        A(f"s_lshl_b32 {s(S_T)}, {s(S_T)}, 7")
        A(f"v_min_u32 {v(VPO)}, 23, {L}")
        A(f"v_lshlrev_b32 {v(VPO)}, 2, {v(VPO)}")
        A(f"v_add_u32 {v(VPO)}, {s(S_T)}, {v(VPO)}")
    A(f"s_mov_b32 {s(S_U)}, {s(S_W)}")
    A(f"s_mov_b32 {s(S_SPL)}, {sum(1 << c for c in ((4, 13) if first else (1, 4, 7, 10, 13, 16))):#x}")
    A(f"v_lshrrev_b32 {v(VL8)}, 1, {v(V_L16)}")
    A("s_waitcnt lgkmcnt(0)")
    A.label(f"L_{n}_top")
    A(f"s_mul_i32 {s(S_X)}, {s(S_U)}, 18432")
    A(f"s_lshl_b32 {s(S_T)}, {s(S_IDX)}, 10")
    A(f"s_add_u32 {s(S_O)}, {s(S_X)}, {s(S_T)}")
    A(f"s_mul_i32 {s(S_P)}, {s(S_X)}, {NP}")
    A(f"s_add_u32 {s(S_P)}, {s(S_P)}, {s(S_T)}")
    A(f"s_add_u32 {s(S_P)}, {s(S_P)}, {P1 if first else P2:#x}")
    A(f"s_add_u32 {s(S_O)}, {s(S_O)}, {HH:#x}")
    if first:
        A(f"buffer_load_dwordx4 {v(IN, 4)}, {v(VX)}, {SB}, {s(S_X)} offen")
    if sync:
        if first:
            A(f"s_lshr_b32 {s(S_PL)}, {s(S_U)}, 1")
            A(f"s_lshl_b32 {s(S_PL)}, {s(S_PL)}, 8")
            A(f"s_add_u32 {s(S_PL)}, {s(S_PL)}, {F_BC:#x}")
        else:
            A(f"s_lshl_b32 {s(S_PL)}, {s(S_U)}, 9")
            A(f"s_add_u32 {s(S_PL)}, {s(S_PL)}, {F_E:#x}")
        poll_block(A, VPL, VPO, s(S_PL), True, S_SP)
    if not first:
        A(f"buffer_load_dwordx4 {v(IN, 4)}, {v(V_L16)}, {WS}, {s(S_O)} offen sc1")
    A(f"s_bitcmp1_b32 {s(S_SPL)}, {s(S_IDX)}")
    A(f"s_cbranch_scc1 L_{n}_split")
    for p in range(NP):
        A(f"buffer_load_dwordx4 {v(IN + 4 + 4 * p, 4)}, {v(V_L16)}, {WS}, {s(S_P)} offen sc1")
        if p + 1 < NP:
            A(f"s_add_u32 {s(S_P)}, {s(S_P)}, 18432")
    A.label(f"L_{n}_sum")
    for p in range(NP + 1):
        A(f"{MF} {v(ACC, 4)}, {v(SEL + 2, 4)}, {v(IN + 4 * p, 4)}, {v(ACC, 4) if p else 0}")
        A(f"{MF} {v(ACC + 4, 4)}, {v(SEL, 4)}, {v(IN + 4 * p, 4)}, {v(ACC + 4, 4) if p else 0}")
    for k in range(4):
        A(cvt2(IN + k, ACC + 2 * k))
    if not first:
        A(f"buffer_store_dwordx4 {v(IN, 4)}, {v(VX)}, {SB}, {s(S_X)} offen")
    else:
        A(f"buffer_store_dwordx4 {v(IN, 4)}, {v(V_L16)}, {WS}, {s(S_O)} offen sc1")
        A(f"{MF} {v(T, 4)}, {v(ONE, 4)}, {v(IN, 4)}, 0")
        for k in range(4):
            A(f"v_lshlrev_b32 {v(ACC + 2 * k)}, 16, {v(IN + k)}")
            A(f"v_and_b32 {v(ACC + 2 * k + 1)}, 0xffff0000, {v(IN + k)}")
        A(f"s_lshl_b32 {s(S_T)}, {s(S_U)}, 5")
        A(f"s_add_u32 {s(S_T)}, {s(S_T)}, {s(S_IDX)}")
        A(f"s_lshl_b32 {s(S_T + 1)}, {s(S_T)}, 7")
        A(f"s_add_u32 {s(S_T + 1)}, {s(S_T + 1)}, {ST:#x}")
        A(f"v_mul_f32 {v(T + 2)}, {f32(-1.0 / 32):#x}, {v(T)}")
        for k in range(0, 8, 2):
            A(f"v_pk_add_f32 {v(ACC + k, 2)}, {v(ACC + k, 2)}, {v(T + 2, 2)} op_sel_hi:[1,0]")
        A(f"v_pk_mul_f32 {v(ACC, 2)}, {v(ACC, 2)}, {v(ACC, 2)}")
        for k in range(2, 8, 2):
            A(f"v_pk_fma_f32 {v(ACC, 2)}, {v(ACC + k, 2)}, {v(ACC + k, 2)}, {v(ACC, 2)}")
        A(f"v_add_f32 {v(T + 1)}, {v(ACC)}, {v(ACC + 1)}")
        xg_reduce(A, "v_add_f32", T + 1, T + 2)
        A(f"buffer_store_dwordx2 {v(T, 2)}, {v(VST)}, {WS}, {s(S_T + 1)} offen sc1")
        if sync:
            A(f"s_lshl_b32 {s(S_T)}, {s(S_T)}, 2")
            A(f"s_add_u32 {s(S_T)}, {s(S_T)}, {F_R1:#x}")
            A("s_waitcnt vmcnt(0)")
            A(f"buffer_store_dword {v(VF0 + 1)}, {v(VF0)}, {WS}, {s(S_T)} offen sc1")
    A(f"s_add_u32 {s(S_U)}, {s(S_U)}, 4")
    A(f"s_cmp_lt_u32 {s(S_U)}, 128")
    A(f"s_cbranch_scc1 L_{n}_top")
    A(f"s_branch L_{n}_done")
    A.label(f"L_{n}_split")
    for p in range(NP):
        for k in range(2):
            A(f"buffer_load_dwordx2 {v(IN + 4 + 4 * p + 2 * k, 2)}, {v(VL8)}, {WS}, {s(S_P)} offen offset:{512 * k} sc1")
        if p + 1 < NP:
            A(f"s_add_u32 {s(S_P)}, {s(S_P)}, 18432")
    A(f"s_branch L_{n}_sum")
    A.label(f"L_{n}_done")


def role_r1(A, sync):
    reducer(A, sync, True)


def role_r2(A, sync):
    reducer(A, sync, False)


NWG_DD = 72


class DD(Gemm):
    ACC, BF, STG, CS, SN, SC_, T, V_ST, V_ST4, V_VAL = 12, 28, 44, 64, 80, 90, 100, 9, 10, 11
    S_SL, S_ST = 50, 51

    def __init__(self, A, sync):
        super().__init__(A, "dd", sync, 2, 128, 5, self.STG)

    def set_load_base(self, s_it):
        A = self.A
        A(f"s_mul_i32 {s(self.S_LD)}, {s(s_it)}, 18432")
        A(f"s_add_u32 {s(self.S_LD)}, {s(self.S_LD)}, {HH:#x}")
        A(f"s_lshl_b32 {s(self.S_ST)}, {s(s_it)}, 12")
        A(f"s_add_u32 {s(self.S_ST)}, {s(self.S_ST)}, {ST:#x}")

    def extra_loads(self):
        return [f"buffer_load_dwordx2 {v(self.SN + 2 * i, 2)}, {v(self.V_ST if i < 4 else self.V_ST4)}, {WS}, "
                f"{s(self.S_ST)} offen offset:{512 * i} sc1" for i in range(5)]

    def post_loads(self):
        return [f"v_mov_b64 {v(self.SC_ + 2 * i, 2)}, {v(self.SN + 2 * i, 2)}" for i in range(5)]

    def set_poll_base(self, s_it):
        self.A(f"s_lshl_b32 {s(self.S_POLL)}, {s(s_it)}, 7")
        self.A(f"s_add_u32 {s(self.S_POLL)}, {s(self.S_POLL)}, {F_R1:#x}")

    def set_out_base(self):
        A = self.A
        A(f"s_mul_i32 {s(self.S_OUT)}, {s(self.S_IT)}, 144")
        A(f"s_add_u32 {s(self.S_OUT)}, {s(self.S_OUT)}, {s(self.S_SL)}")
        A(f"s_lshl_b32 {s(self.S_OUT)}, {s(self.S_OUT)}, 10")
        A(f"s_add_u32 {s(self.S_OUT)}, {s(self.S_OUT)}, {ACT:#x}")
        A(f"s_lshl_b32 {s(self.S_FLG)}, {s(self.S_IT)}, 8")
        A(f"s_add_u32 {s(self.S_FLG)}, {s(self.S_FLG)}, {s(self.S_SL)}")
        A(f"s_lshl_b32 {s(self.S_FLG)}, {s(self.S_FLG)}, 2")
        A(f"s_add_u32 {s(self.S_FLG)}, {s(self.S_FLG)}, {F_D:#x}")

    def stats(self):
        S, T = self.SC_, self.T
        o = []
        xg = lambda op, x, t: [f"v_mov_b32 {v(t)}, {v(x)}", f"v_permlane32_swap_b32 {v(x)}, {v(t)}",
                               f"{op} {v(x)}, {v(x)}, {v(t)}", f"v_mov_b32 {v(t)}, {v(x)}",
                               f"v_permlane16_swap_b32 {v(x)}, {v(t)}", f"{op} {v(x)}, {v(x)}, {v(t)}"]
        rnd = lambda x: [f"v_cvt_pk_bf16_f32 {v(x)}, {v(x)}, {v(x)}", f"v_and_b32 {v(x)}, 0xffff0000, {v(x)}"]
        o += [f"v_add_f32 {v(T)}, {v(S)}, {v(S + 2)}", f"v_add_f32 {v(T + 1)}, {v(S + 4)}, {v(S + 6)}",
              f"v_add_f32 {v(T + 2)}, {v(S + 1)}, {v(S + 3)}", f"v_add_f32 {v(T + 3)}, {v(S + 5)}, {v(S + 7)}",
              f"v_add_f32 {v(T)}, {v(T)}, {v(S + 8)}", f"v_add_f32 {v(T + 2)}, {v(T + 2)}, {v(S + 9)}",
              f"v_add_f32 {v(T)}, {v(T)}, {v(T + 1)}", f"v_add_f32 {v(T + 2)}, {v(T + 2)}, {v(T + 3)}"]
        o += xg("v_add_f32", T, T + 1)
        o += [f"v_mul_f32 {v(T + 1)}, {f32(-1.0 / 18):#x}, {v(T)}"]
        o += [f"v_add_f32 {v(S + 2 * i)}, {v(S + 2 * i)}, {v(T + 1)}" for i in range(5)]
        o += [f"v_mul_f32 {v(S + 8)}, {v(S + 8)}, {v(self.V_VAL)}", f"v_mul_f32 {v(T + 3)}, {v(S)}, {v(S)}"]
        o += [f"v_fmac_f32 {v(T + 3)}, {v(S + 2 * i)}, {v(S + 2 * i)}" for i in range(1, 5)]
        o += [f"v_fmac_f32 {v(T + 2)}, {f32(1.0 / 32):#x}, {v(T + 3)}"]
        o += xg("v_add_f32", T + 2, T + 1)
        o += [f"v_mul_f32 {v(T)}, {f32(-1.0 / 576):#x}, {v(T)}"] + rnd(T)
        o += [f"v_mul_f32 {v(T + 2)}, {f32(1.0 / 576):#x}, {v(T + 2)}"] + rnd(T + 2)
        o += [f"v_add_f32 {v(T + 2)}, {f32(1e-5):#x}, {v(T + 2)}"] + rnd(T + 2)
        o += [f"v_sqrt_f32 {v(T + 2)}, {v(T + 2)}"] + rnd(T + 2)
        o += [f"v_rcp_f32 {v(T + 2)}, {v(T + 2)}", f"v_mul_f32 {v(T + 2)}, {v(T + 2)}, {v(T + 2)}"]
        return o

    def compute(self):
        main, fill = [], {}
        bf = lambda c: self.BF + (c % 4) * 4
        rd = lambda c: f"ds_read_b128 {v(bf(c), 4)}, {v(self.V_RD)} offset:{c * 1024}"
        for c in range(3):
            self.A(rd(c))
        for c in range(18):
            for t in range(4):
                acc = v(self.ACC + 4 * t, 4)
                main.append(f"{MF} {acc}, {r(WREG + (c * 4 + t) * 4, 4)}, {v(bf(c), 4)}, {acc if c else 0}")
            if c + 3 < 18:
                fill.setdefault(4 * c, []).append(rd(c + 3))
        spread(fill, self.stats(), 2, 1)
        return main, fill

    def epilogue(self):
        a, T = self.ACC, self.T
        o = [f"v_pk_fma_f32 {v(a + k, 2)}, {v(self.CS + k, 2)}, {v(T, 2)}, {v(a + k, 2)} op_sel_hi:[1,0,1]" for k in range(0, 16, 2)]
        o += [f"v_max_f32 {v(a + k)}, 0, {v(a + k)}" for k in range(8)]
        o += [f"v_pk_mul_f32 {v(a + 8 + k, 2)}, {v(a + 8 + k, 2)}, {v(T + 2, 2)} op_sel_hi:[1,0]" for k in range(0, 8, 2)]
        o += [f"v_pk_mul_f32 {v(a + k, 2)}, {v(a + k, 2)}, {v(a + 8 + k, 2)}" for k in range(0, 8, 2)]
        o += [cvt2(T + 4 + k, a + 2 * k) for k in range(4)]
        o += [f"buffer_store_dwordx4 {v(T + 4, 4)}, {v(V_L16)}, {WS}, {s(self.S_OUT)} offen sc1"]
        return o

    def body(self):
        A = self.A
        sb, st = S_T, S_T + 1
        L = v(V_LANE)
        A(f"s_lshl_b32 {s(self.S_SL)}, {s(self.S_SL)}, 2")
        A(f"s_add_u32 {s(self.S_SL)}, {s(self.S_SL)}, {s(S_W)}")
        A(f"s_lshl_b32 {s(st)}, {s(self.S_SL)}, 6")
        A(f"v_lshrrev_b32 v20, 2, {L}")
        A(f"v_mul_u32_u24 v20, 9216, v20")
        A(f"v_and_b32 v21, 3, {L}")
        A(f"v_lshlrev_b32 v21, 4, v21")
        A(f"v_add3_u32 v20, v20, v21, {s(st)}")
        A(f"s_mul_i32 {s(sb)}, {s(S_W)}, 36864")
        tr_addr(A, 21, 22, 23, 8, 1, 64, 16, sb)
        dmas = lambda c: [((SA, SB)[i // 2], 20, (32 * c + 16 * (i % 2)) * 9216, 1024 * i) for i in range(4)]
        reads = lambda c: [(WREG + (c * 4 + t) * 4 + 2 * rd, 21, 2048 * (t // 2) + 8 * (t % 2) + 256 * rd)
                           for t in range(4) for rd in range(2)]
        load_weights(A, 18, dmas, reads, 4096, 9, sb, st)
        A("s_barrier")
        for k in range(4):
            A(f"v_mov_b32 {v(self.BF + k)}, 0x3f803f80")
        for c in range(18):
            for t in range(4):
                cs = v(self.CS + 4 * t, 4)
                A(f"{MF} {cs}, {r(WREG + (c * 4 + t) * 4, 4)}, {v(self.BF, 4)}, {cs if c else 0}")
        gemm_addr(A, self, 4)
        A(f"s_min_u32 {s(st)}, {s(S_W)}, 1")
        A(f"s_lshl_b32 {s(st)}, {s(st)}, 10")
        A(f"v_add_u32 {v(self.V_WR)}, {s(st)}, {v(self.V_WR)}")
        A(f"v_mov_b32 {v(self.V_LDOFF)}, {v(self.V_WR)}")
        A(f"v_min_u32 {v(self.V_POLLOFF)}, 17, {L}")
        A(f"v_lshlrev_b32 {v(self.V_POLLOFF)}, 2, {v(self.V_POLLOFF)}")
        A(f"v_lshlrev_b32 {v(self.V_ST)}, 3, {L}")
        A(f"v_mov_b32 {v(self.V_ST4)}, {OOR:#x}")
        A(f"v_cmp_gt_u32 vcc, 32, {L}")
        A(f"v_cndmask_b32 {v(self.V_ST4)}, {v(self.V_ST4)}, {v(self.V_ST)}, vcc")
        A(f"v_cndmask_b32 {v(self.V_VAL)}, 0, 1.0, vcc")
        self.emit(flag_at=16, write_at=60)


def role_dd(A, sync):
    A(f"s_and_b32 {s(Gemm.S_IT)}, {s(S_IDX)}, 1")
    A(f"s_lshr_b32 {s(DD.S_SL)}, {s(S_IDX)}, 1")
    srd(A, S_A, KA_WG, SZ_WF)
    srd(A, S_B, KA_WU, SZ_WF)
    A("s_waitcnt lgkmcnt(0)")
    DD(A, sync).body()


NWG_EE = 36


class EE(Gemm):
    ACC, BF, STG, V_OUT, V_OUT2 = 12, 28, 44, 9, 10
    S_KS, S_NS = 50, 51

    def __init__(self, A, sync):
        super().__init__(A, "ee", sync, 2, 128, 6, self.STG)

    def set_load_base(self, s_it):
        A = self.A
        A(f"s_mul_i32 {s(self.S_LD)}, {s(s_it)}, 6")
        A(f"s_add_u32 {s(self.S_LD)}, {s(self.S_LD)}, {s(self.S_KS)}")
        A(f"s_mul_i32 {s(self.S_LD)}, {s(self.S_LD)}, 24576")
        A(f"s_add_u32 {s(self.S_LD)}, {s(self.S_LD)}, {ACT:#x}")

    def set_poll_base(self, s_it):
        self.A(f"s_lshl_b32 {s(self.S_POLL)}, {s(s_it)}, 10")
        self.A(f"s_add_u32 {s(self.S_POLL)}, {s(self.S_POLL)}, {F_D:#x}")

    def set_out_base(self):
        A = self.A
        A(f"s_mul_i32 {s(self.S_OUT)}, {s(self.S_IT)}, 6")
        A(f"s_add_u32 {s(self.S_OUT)}, {s(self.S_OUT)}, {s(self.S_KS)}")
        A(f"s_mul_i32 {s(self.S_OUT)}, {s(self.S_OUT)}, 18432")
        A(f"s_add_u32 {s(self.S_OUT)}, {s(self.S_OUT)}, {P2:#x}")
        A(f"s_lshl_b32 {s(self.S_FLG)}, {s(self.S_IT)}, 9")
        A(f"s_add_u32 {s(self.S_FLG)}, {s(self.S_FLG)}, {s(self.S_NS)}")

    def compute(self):
        main, fill = [], {}
        bf = lambda c: self.BF + (c % 4) * 4
        rd = lambda c: f"ds_read_b128 {v(bf(c), 4)}, {v(self.V_RD)} offset:{c * 1024}"
        for c in range(3):
            self.A(rd(c))
        for c in range(24):
            for t in range(3):
                acc = v(self.ACC + 4 * t, 4)
                main.append(f"{MF} {acc}, {r(WREG + (c * 3 + t) * 4, 4)}, {v(bf(c), 4)}, {acc if c else 0}")
            if c + 3 < 24:
                fill.setdefault(3 * c, []).append(rd(c + 3))
        return main, fill

    def epilogue(self):
        a = self.ACC
        return [cvt2(a + k, a + 2 * k) for k in range(4)] + \
            [f"buffer_store_dwordx4 {v(a, 4)}, {v(self.V_OUT)}, {WS}, {s(self.S_OUT)} offen sc1",
             cvt2(a + 8, a + 8), cvt2(a + 9, a + 10),
             f"buffer_store_dwordx2 {v(a + 8, 2)}, {v(self.V_OUT2)}, {WS}, {s(self.S_OUT)} offen sc1"]

    def body(self):
        A = self.A
        sb, st = S_T, S_T + 1
        pb, po = S_T + 3, S_T + 4
        L = v(V_LANE)
        A(f"s_mul_i32 {s(st)}, {s(self.S_NS)}, 6")
        A(f"s_mul_i32 {s(pb)}, {s(S_W)}, 3")
        A(f"s_add_u32 {s(pb)}, {s(pb)}, 1")
        A(f"s_lshr_b32 {s(pb)}, {s(pb)}, 1")
        A(f"s_add_u32 {s(pb)}, {s(pb)}, {s(st)}")
        A(f"s_lshr_b32 {s(po)}, {s(S_W)}, 1")
        A(f"s_mul_i32 {s(po)}, {s(po)}, 3")
        A(f"s_add_u32 {s(po)}, {s(po)}, 1")
        A(f"s_add_u32 {s(po)}, {s(po)}, {s(st)}")
        A(f"s_mul_i32 {s(st)}, {s(self.S_KS)}, {768 * 1152}")
        A(f"v_lshrrev_b32 v20, 2, {L}")
        A(f"v_mul_u32_u24 v20, 1152, v20")
        A(f"v_and_b32 v21, 3, {L}")
        A(f"v_lshlrev_b32 v21, 4, v21")
        A(f"v_add3_u32 v20, v20, v21, {s(st)}")
        A(f"s_lshl_b32 {s(st)}, {s(po)}, 6")
        A(f"v_add_u32 v21, {s(st)}, v20")
        A(f"s_lshl_b32 {s(st)}, {s(pb)}, 6")
        A(f"v_add_u32 v20, {s(st)}, v20")
        A(f"s_mul_i32 {s(sb)}, {s(S_W)}, 36864")
        tr_addr(A, 22, 24, 25, 8, 1, 64, 16, sb)
        A(f"s_and_b32 {s(st)}, {s(S_W)}, 1")
        A(f"s_lshl_b32 {s(st)}, {s(st)}, 3")
        A(f"v_add_u32 v23, {s(st)}, v22")
        A(f"s_lshl_b32 {s(pb)}, {s(pb)}, 10")
        A(f"v_add_u32 {v(self.V_OUT)}, {s(pb)}, {v(V_L16)}")
        A(f"s_lshl_b32 {s(po)}, {s(po)}, 10")
        A(f"s_lshl_b32 {s(st)}, {s(st)}, 6")
        A(f"s_add_u32 {s(po)}, {s(po)}, {s(st)}")
        A(f"v_lshrrev_b32 {v(self.V_OUT2)}, 1, {v(V_L16)}")
        A(f"v_add_u32 {v(self.V_OUT2)}, {s(po)}, {v(self.V_OUT2)}")
        dmas = lambda c: [(SA, 20 + i // 2, (32 * c + 16 * (i % 2)) * 1152, 1024 * i) for i in range(4)]
        reads = lambda c: [(WREG + (c * 3 + t) * 4 + 2 * rd, 22 + t // 2, 2048 * (t // 2) + 8 * (t % 2) + 256 * rd)
                           for t in range(3) for rd in range(2)]
        load_weights(A, 24, dmas, reads, 4096, 9, sb, st)
        A("s_barrier")
        gemm_addr(A, self, 6)
        A(f"s_mul_i32 {s(st)}, {s(self.S_KS)}, 96")
        A(f"v_min_u32 {v(self.V_POLLOFF)}, 23, {L}")
        A(f"v_lshlrev_b32 {v(self.V_POLLOFF)}, 2, {v(self.V_POLLOFF)}")
        A(f"v_add_u32 {v(self.V_POLLOFF)}, {s(st)}, {v(self.V_POLLOFF)}")
        A(f"s_lshl_b32 {s(self.S_NS)}, {s(self.S_NS)}, 5")
        A(f"s_lshl_b32 {s(st)}, {s(self.S_KS)}, 2")
        A(f"s_add_u32 {s(self.S_NS)}, {s(self.S_NS)}, {s(st)}")
        A(f"s_add_u32 {s(self.S_NS)}, {s(self.S_NS)}, {s(S_W)}")
        A(f"s_lshl_b32 {s(self.S_NS)}, {s(self.S_NS)}, 2")
        A(f"s_add_u32 {s(self.S_NS)}, {s(self.S_NS)}, {F_E:#x}")
        self.emit(flag_at=16, write_at=58)


def role_ee(A, sync):
    A(f"s_and_b32 {s(Gemm.S_IT)}, {s(S_IDX)}, 1")
    A(f"s_lshr_b32 {s(EE.S_KS)}, {s(S_IDX)}, 1")
    A(f"s_mul_i32 {s(EE.S_NS)}, {s(EE.S_KS)}, 43")
    A(f"s_lshr_b32 {s(EE.S_NS)}, {s(EE.S_NS)}, 8")
    A(f"s_mul_i32 {s(S_T)}, {s(EE.S_NS)}, 6")
    A(f"s_sub_u32 {s(EE.S_KS)}, {s(EE.S_KS)}, {s(S_T)}")
    srd(A, S_A, KA_WD, SZ_WF)
    A("s_waitcnt lgkmcnt(0)")
    EE(A, sync).body()
```

```python
from common import *
import re

TAIL = int(os.environ.get("TAIL", "56"))
WREG = 224
MF = "v_mfma_f32_16x16x32_bf16"


def load_weights(A, nchunk, dmas, reads, slot_bytes, nslots, s_base, s_tmp, pol="nt"):
    issued = []

    def issue(c):
        for (sr, vo, so, rel) in dmas(c):
            A(f"s_add_u32 m0, {s(s_base)}, {(c % nslots) * slot_bytes + rel:#x}")
            A(f"s_mov_b32 {s(s_tmp)}, {so:#x}")
            A(f"buffer_load_dwordx4 {v(vo)}, {sr}, {s(s_tmp)} offen {pol} lds")
            issued.append(c)

    for c in range(min(nslots, nchunk)):
        issue(c)
    for c in range(nchunk):
        after = sum(1 for x in issued if x > c)
        assert after <= 63
        A(f"s_waitcnt vmcnt({after})")
        for (dst, va, rel) in reads(c):
            A(f"ds_read_b64_tr_b16 {r(dst, 2)}, {v(va)} offset:{(c % nslots) * slot_bytes + rel}")
        if c + nslots < nchunk:
            A("s_waitcnt lgkmcnt(0)")
            issue(c + nslots)
    A("s_waitcnt lgkmcnt(0)")


def tr_addr(A, dst, t0, t1, row_g, row_r, rowbytes, colbytes, s_base):
    A(f"v_lshrrev_b32 {v(t0)}, 4, {v(V_LANE)}")
    A(f"v_mul_u32_u24 {v(t0)}, {row_g * rowbytes}, {v(t0)}")
    A(f"v_bfe_u32 {v(t1)}, {v(V_LANE)}, 2, 2")
    A(f"v_mul_u32_u24 {v(t1)}, {row_r * rowbytes}, {v(t1)}")
    A(f"v_add_u32 {v(t0)}, {v(t0)}, {v(t1)}")
    A(f"v_and_b32 {v(t1)}, 3, {v(V_LANE)}")
    A(f"v_mul_u32_u24 {v(t1)}, {colbytes}, {v(t1)}")
    A(f"v_add3_u32 {v(dst)}, {v(t0)}, {v(t1)}, {s(s_base)}")


def role_ln1(A, sync):
    X, D, ONES, ACC = 16, 96, 4, 8
    su = S_T
    srd(A, S_B, KA_X, SZ_X)
    A(f"s_lshl_b32 {s(su)}, {s(S_IDX)}, 2")
    A(f"s_add_u32 {s(su)}, {s(su)}, {s(S_W)}")
    A(f"s_mul_i32 {s(su + 1)}, {s(su)}, {16 * 1152}")
    A(f"v_and_b32 v2, 15, {v(V_LANE)}")
    A(f"v_mul_u32_u24 v2, 1152, v2")
    A(f"v_and_b32 v3, 48, {v(V_LANE)}")
    A(f"v_add_u32 v2, v2, v3")
    A("s_waitcnt lgkmcnt(0)")
    for c in range(18):
        A(f"buffer_load_dwordx4 {v(X + 4 * c, 4)}, v2, {SB}, {s(su + 1)} offen offset:{64 * c}")
    for i in range(4):
        A(f"v_mov_b32 {v(ONES + i)}, 0x3f803f80")
    for c in range(18):
        A(f"{MF} {v(ACC, 4)}, {v(ONES, 4)}, {v(X + 4 * c, 4)}, {v(ACC, 4) if c else 0}")
    MEAN, MB = 12, 13
    A(f"v_mul_f32 {v(MEAN)}, {1.0 / 576:.9e}, {v(ACC)}".replace(f"{1.0 / 576:.9e}", f"{f32(1.0 / 576):#x}"))
    A(f"v_mov_b32 {v(MB)}, {v(MEAN)}")
    bf16_round(A, MB)
    for i in range(4):
        A(f"v_mov_b32 {v(ONES + i)}, 0")
    for i in range(72):
        lo, hi = D + 2 * i, D + 2 * i + 1
        A(f"v_lshlrev_b32 {v(lo)}, 16, {v(X + i)}")
        A(f"v_and_b32 {v(hi)}, 0xffff0000, {v(X + i)}")
        A(f"v_sub_f32 v2, {v(lo)}, {v(MEAN)}")
        A(f"v_sub_f32 v3, {v(hi)}, {v(MEAN)}")
        A(f"v_sub_f32 {v(lo)}, {v(lo)}, {v(MB)}")
        A(f"v_sub_f32 {v(hi)}, {v(hi)}, {v(MB)}")
        A(f"v_fmac_f32 {v(ONES + (2 * i) % 4)}, v2, v2")
        A(f"v_fmac_f32 {v(ONES + (2 * i + 1) % 4)}, v3, v3")
    A(f"v_add_f32 {v(ONES)}, {v(ONES)}, {v(ONES + 1)}")
    A(f"v_add_f32 {v(ONES + 2)}, {v(ONES + 2)}, {v(ONES + 3)}")
    A(f"v_add_f32 {v(ONES)}, {v(ONES)}, {v(ONES + 2)}")
    xg_reduce(A, "v_add_f32", ONES, 2)
    A(f"v_mul_f32 {v(ONES)}, {f32(1.0 / 576):#x}, {v(ONES)}")
    bf16_round(A, ONES)
    A(f"v_add_f32 {v(ONES)}, {f32(1e-5):#x}, {v(ONES)}")
    bf16_round(A, ONES)
    A(f"v_sqrt_f32 {v(ONES)}, {v(ONES)}")
    bf16_round(A, ONES)
    A(f"v_rcp_f32 {v(ONES)}, {v(ONES)}")
    A(f"s_mul_i32 {s(su + 1)}, {s(su)}, {18 * 1024}")
    A(f"s_add_u32 {s(su + 1)}, {s(su + 1)}, {XH:#x}")
    for c in range(18):
        for j in range(4):
            i = 4 * c + j
            lo, hi = D + 2 * i, D + 2 * i + 1
            A(f"v_cvt_pk_bf16_f32 v2, {v(lo)}, {v(hi)}")
            A(f"v_lshlrev_b32 {v(lo)}, 16, v2")
            A(f"v_and_b32 {v(hi)}, 0xffff0000, v2")
            A(f"v_mul_f32 {v(lo)}, {v(lo)}, {v(ONES)}")
            A(f"v_mul_f32 {v(hi)}, {v(hi)}, {v(ONES)}")
            A(f"v_cvt_pk_bf16_f32 {v(X + i)}, {v(lo)}, {v(hi)}")
        if c and c % 4 == 0:
            A(f"s_add_u32 {s(su + 1)}, {s(su + 1)}, 4096")
        A(f"buffer_store_dwordx4 {v(X + 4 * c, 4)}, {v(V_L16)}, {WS}, {s(su + 1)} offen offset:{1024 * (c % 4)} sc1")
    if sync:
        wait_registered(A)
        A(f"s_lshl_b32 {s(su)}, {s(S_IDX)}, 2")
        A(f"s_add_u32 {s(su)}, {s(su)}, {s(S_W)}")
        lane0_off(A, 2, "0")
        A(f"v_mov_b32 v3, 1")
        A(f"s_lshl_b32 {s(su + 1)}, {s(su)}, 2")
        A(f"s_add_u32 {s(su + 1)}, {s(su + 1)}, {F_LN:#x}")
        A("s_waitcnt vmcnt(0)")
        A(f"buffer_store_dword v3, v2, {WS}, {s(su + 1)} offen sc1")


def f32(x):
    import struct
    return struct.unpack("<I", struct.pack("<f", x))[0]


class Gemm:
    S_IT, S_NX, S_LD, S_FLG, S_FPREV, S_POLL, S_OUT, S_SPIN = 36, 37, 38, 42, 43, 44, 45, 49
    V_RD, V_WR, V_LDOFF, V_FLAG0, V_ONE, V_POLLOFF, V_POLL = 2, 3, 4, 5, 6, 7, 8

    def __init__(self, A, name, sync, step, end, nload, stage_reg, tail=None):
        self.A, self.name, self.sync = A, name, sync
        self.total = end
        self.tail = tail if sync and tail is not None and tail < end else None
        self.step, self.end, self.nload, self.stage = step, self.tail or end, nload, stage_reg

    def arm(self):
        A = self.A
        if self.tail is None:
            return
        keep = S_T + 8
        A(f"s_mov_b32 {s(keep)}, {s(self.S_IT)}")
        A(f"s_add_u32 {s(self.S_IT)}, {s(self.S_IT)}, {self.tail}")
        for k in range(4):
            A(f"v_mov_b32 {v(self.ACC + k)}, -1")
        l = A.uid("L_arm")
        A.label(l)
        self.set_out_base()
        for x in self.epilogue():
            if x.startswith("buffer_store"):
                n = int(x.split()[0][-1])
                A(f"buffer_store_dwordx{n} {v(self.ACC, n)}," + x.split(",", 1)[1])
        A(f"s_add_u32 {s(self.S_IT)}, {s(self.S_IT)}, {self.step}")
        A(f"s_cmp_lt_u32 {s(self.S_IT)}, {self.total}")
        A(f"s_cbranch_scc1 {l}")
        A(f"s_mov_b32 {s(self.S_IT)}, {s(keep)}")

    def tail_first(self):
        return []

    def tail_loads(self):
        return self.loads()

    def emit_tail(self):
        A, n = self.A, self.name
        pf = bool(self.nload)

        def first(s_it):
            self.set_load_base(s_it)
            self.ld_bases()
            for x in self.tail_first():
                x() if callable(x) else A(x)
            for x in self.tail_loads() if pf else []:
                A(x)
        A(f"s_mov_b32 {s(self.S_IT)}, {s(self.S_NX)}")
        tstamp(A, 5)
        if pf:
            first(self.S_IT)
        A.label(f"L_{n}_tail")
        last = (self.S_IT, self.total - self.step)
        tstamp(A, 6, when=last)
        prev = (self.S_IT, self.total - 2 * self.step, self.total - self.step)
        tstamp(A, 10, when=prev)
        if not pf:
            first(self.S_IT)
        tl = self.tail_loads()
        spin_loads(A, tl, self.V_POLL, self.S_SPIN, pf, [x for x in tl if "x4" in x][0])
        tstamp(A, 7, when=last)
        tstamp(A, 11, when=prev)
        for x in self.writes():
            A(x)
        self.finish_stage()
        for x in self.post_loads():
            x() if callable(x) else A(x)
        self.set_out_base()
        A(f"s_add_u32 {s(self.S_IT)}, {s(self.S_IT)}, {self.step}")
        if pf:
            A(f"s_cmp_ge_u32 {s(self.S_IT)}, {self.total}")
            A(f"s_cbranch_scc1 L_{n}_tlast")
            first(self.S_IT)
            A.label(f"L_{n}_tlast")
        main, fill = self.compute()
        weave(A, main, fill)
        for x in self.epilogue():
            A(x)
        A(f"s_cmp_lt_u32 {s(self.S_IT)}, {self.total}")
        A(f"s_cbranch_scc1 L_{n}_tail")

    def set_load_base(self, s_it):
        raise NotImplementedError

    def set_poll_base(self, s_it):
        raise NotImplementedError

    def set_out_base(self):
        raise NotImplementedError

    def extra_loads(self):
        return []

    def loads(self):
        out = []
        for i in range(self.nload):
            out.append(f"buffer_load_dwordx4 {v(self.stage + 4 * i, 4)}, {v(self.V_LDOFF)}, {WS}, "
                       f"{s(self.S_LD + i // 4)} offen offset:{1024 * (i % 4)} sc1")
        return self.extra_loads() + out

    def writes(self):
        return [f"ds_write_b128 {v(self.V_WR)}, {v(self.stage + 4 * i, 4)} offset:{1024 * i}"
                for i in range(self.nload)]

    def post_loads(self):
        return []

    def ld_bases(self):
        A = self.A
        for k in range(1, (self.nload + 3) // 4):
            A(f"s_add_u32 {s(self.S_LD + k)}, {s(self.S_LD)}, {4096 * k}")

    def issue_poll(self):
        if not self.sync:
            return []
        A = self.A

        def f():
            A(f"s_add_u32 {s(S_T)}, {s(self.S_NX)}, {self.step}")
            A(f"s_min_u32 {s(S_T)}, {s(S_T)}, {self.end - 1}")
            self.set_poll_base(S_T)
            A(f"buffer_load_dword {v(self.V_POLL)}, {v(self.V_POLLOFF)}, {WS}, {s(self.S_POLL)} offen sc1")
        return [f]

    def flag_store(self, sreg):
        return f"buffer_store_dword {v(self.V_ONE)}, {v(self.V_FLAG0)}, {WS}, {s(sreg)} offen sc1"

    def finish_stage(self):
        A = self.A
        A("s_waitcnt lgkmcnt(0)")
        A("s_barrier")
        A(f"v_xor_b32 {v(self.V_RD)}, 0x10000, {v(self.V_RD)}")
        A(f"v_xor_b32 {v(self.V_WR)}, 0x10000, {v(self.V_WR)}")

    def blocking_fetch(self):
        A = self.A
        if self.sync:
            self.set_poll_base(self.S_NX)
            poll_block(A, self.V_POLL, self.V_POLLOFF, s(self.S_POLL), True, self.S_SPIN)
        self.set_load_base(self.S_NX)
        self.ld_bases()
        for x in self.loads():
            A(x)
        for f in self.issue_poll():
            f()
        for x in self.writes():
            A(x)

    def emit(self, flag_at, write_at):
        A, n = self.A, self.name
        A(f"v_mov_b32 {v(self.V_ONE)}, 1")
        lane0_off(A, self.V_FLAG0, "0")
        A(f"s_mov_b32 {s(self.S_FPREV)}, {OOR:#x}")
        self.arm()
        A(f"s_mov_b32 {s(self.S_NX)}, {s(self.S_IT)}")
        self.blocking_fetch()
        self.finish_stage()
        if n in ("qk", "vv"):
            tstamp(A, 4, 200)
        A.label(f"L_{n}_top")
        for x in self.post_loads():
            x() if callable(x) else A(x)
        self.set_out_base()
        A(f"s_add_u32 {s(self.S_NX)}, {s(self.S_IT)}, {self.step}")
        A(f"s_cmp_ge_u32 {s(self.S_NX)}, {self.end}")
        A(f"s_cbranch_scc1 L_{n}_nopf")
        if self.sync:
            A(f"v_cmp_eq_u32 vcc, 0, {v(self.V_POLL)}")
            A(f"s_cbranch_vccnz L_{n}_nopf")
        self.set_load_base(self.S_NX)
        self.ld_bases()
        lds = self.loads()
        for x in lds:
            A(x)
        main, fill = self.compute()
        if self.sync:
            fill.setdefault(flag_at, []).extend([f"s_waitcnt vmcnt({len(lds)})", self.flag_store(self.S_FPREV)])
            fill[flag_at].extend(self.issue_poll())
        spread(fill, self.writes(), write_at, 2)
        weave(A, main, fill)
        for x in self.epilogue():
            A(x)
        A(f"s_mov_b32 {s(self.S_FPREV)}, {s(self.S_FLG)}")
        A(f"s_mov_b32 {s(self.S_IT)}, {s(self.S_NX)}")
        self.finish_stage()
        A(f"s_branch L_{n}_top")
        A.label(f"L_{n}_nopf")
        main, fill = self.compute()
        if self.sync:
            fill.setdefault(flag_at, []).extend(["s_waitcnt vmcnt(0)", self.flag_store(self.S_FPREV)])
        weave(A, main, fill)
        for x in self.epilogue():
            A(x)
        if self.sync:
            A("s_waitcnt vmcnt(0)")
            A(self.flag_store(self.S_FLG))
        A(f"s_mov_b32 {s(self.S_FPREV)}, {OOR:#x}")
        A(f"s_cmp_ge_u32 {s(self.S_NX)}, {self.end}")
        A(f"s_cbranch_scc1 L_{n}_done")
        self.blocking_fetch()
        A(f"s_mov_b32 {s(self.S_IT)}, {s(self.S_NX)}")
        self.finish_stage()
        A(f"s_branch L_{n}_top")
        A.label(f"L_{n}_done")
        if self.tail is not None:
            self.emit_tail()


def spin_loads(A, loads, vt, stmp, issued=False, probe=None):
    l, c, d = A.uid("L_spin"), A.uid("L_spinc"), A.uid("L_spind")
    PRB = int(os.environ.get("PRB", "1"))

    def count():
        A(f"s_add_u32 {s(stmp)}, {s(stmp)}, 1")
        A(f"s_cmp_ge_u32 {s(stmp)}, {SPIN_MAX}")
        A("s_cbranch_scc1 L_fail")
    A(f"s_mov_b32 {s(stmp)}, 0")
    if issued:
        A(f"s_branch {c}")
    A.label(l)
    if probe and PRB:
        A("s_mov_b64 exec, 1")
        A.label(d)
        A(f"buffer_load_dword {v(vt)}," + probe.split(",", 1)[1])
        count()
        A(f"v_cmp_eq_u32 vcc, -1, {v(vt)}")
        A(f"s_cbranch_vccnz {d}")
        A("s_mov_b64 exec, -1")
    g = []
    for x in loads:
        A(x)
        if x.startswith("buffer_load"):
            g.append(int(re.search(r"v\[(\d+):", x).group(1)))
    count()
    A.label(c)
    if len(g) % 2 == 0:
        A(f"v_max_u32 {v(vt)}, {v(g[0])}, {v(g[1])}")
        g = g[2:]
    else:
        A(f"v_max3_u32 {v(vt)}, {v(g[0])}, {v(g[1])}, {v(g[2])}")
        g = g[3:]
    for i in range(0, len(g), 2):
        A(f"v_max3_u32 {v(vt)}, {v(vt)}, {v(g[i])}, {v(g[i + 1])}")
    A(f"v_cmp_eq_u32 vcc, -1, {v(vt)}")
    A(f"s_cbranch_vccnz {l}")


def unmark(x):
    return f"v_min_u32 {v(x)}, -2, {v(x)}"


class QKV(Gemm):
    ACC, BF, STG, OUT, V_OUT = 12, 44, 76, 112, 9
    S_MAT, S_HP, S_OB, S_ARM = 50, 51, 52, 54
    NEG = 128

    def __init__(self, A, name, sync, isv):
        super().__init__(A, name, sync, 4, int(os.environ.get('QEND', 64)), 9, self.STG)
        self.isv = isv

    def set_load_base(self, s_it):
        self.A(f"s_mul_i32 {s(self.S_LD)}, {s(s_it)}, 36864")
        self.A(f"s_add_u32 {s(self.S_LD)}, {s(self.S_LD)}, {XH:#x}")

    def set_poll_base(self, s_it):
        self.A(f"s_lshl_b32 {s(self.S_POLL)}, {s(s_it)}, 3")

    def set_out_base(self):
        A = self.A
        A(f"s_lshl_b32 {s(self.S_OUT)}, {s(self.S_IT)}, 18")
        A(f"s_add_u32 {s(self.S_OUT)}, {s(self.S_OUT)}, {s(self.S_OB)}")
        A(f"s_add_u32 {s(self.S_OUT + 1)}, {s(self.S_OUT)}, 4096")
        A(f"s_lshl_b32 {s(self.S_FLG)}, {s(self.S_IT)}, 13")
        A(f"s_add_u32 {s(self.S_FLG)}, {s(self.S_FLG)}, {s(self.S_OB + 1)}")
        if self.sync and TAIL < 64:
            A(f"s_lshl_b32 {s(self.S_ARM)}, {s(self.S_IT)}, 17")
            A(f"s_add_u32 {s(self.S_ARM)}, {s(self.S_ARM)}, {s(self.S_ARM + 1)}")
            A(f"s_cmp_ge_u32 {s(self.S_IT)}, {TAIL}")
            A(f"s_cselect_b32 {s(self.S_ARM)}, {s(self.S_ARM)}, {OOR:#x}")

    def compute(self):
        main, fill = [], {}
        bf = lambda c, u: self.BF + ((c % 4) * 2 + u) * 4
        rd = lambda c, u: f"ds_read_b128 {v(bf(c, u), 4)}, {v(self.V_RD)} offset:{(u * 18 + c) * 1024}"
        pre = [rd(c, u) for c in range(3) for u in range(2)]
        for x in pre:
            self.A(x)
        for c in range(18):
            for u in range(2):
                for t in range(4):
                    acc = v(self.ACC + (u * 4 + t) * 4, 4)
                    w = r(WREG + (c * 4 + t) * 4, 4)
                    b = v(bf(c, u), 4)
                    ab = f"{b}, {w}" if self.isv else f"{w}, {b}"
                    main.append(f"{MF} {acc}, {ab}, {acc if c else 0}")
            if c + 3 < 18:
                fill.setdefault(8 * c, []).append(rd(c + 3, 0))
                fill.setdefault(8 * c + 1, []).append(rd(c + 3, 1))
        return main, fill

    def epilogue(self):
        o = []
        acc = lambda u, t, k: v(self.ACC + (u * 4 + t) * 4 + k)
        if self.isv:
            for t in range(4):
                d = self.OUT + 4 * t
                o += [f"v_cvt_pk_bf16_f32 {v(d)}, {acc(0, t, 0)}, {acc(0, t, 1)}",
                      f"v_cvt_pk_bf16_f32 {v(d + 1)}, {acc(1, t, 0)}, {acc(1, t, 1)}",
                      f"v_cvt_pk_bf16_f32 {v(d + 2)}, {acc(0, t, 2)}, {acc(0, t, 3)}",
                      f"v_cvt_pk_bf16_f32 {v(d + 3)}, {acc(1, t, 2)}, {acc(1, t, 3)}",
                      f"buffer_store_dwordx4 {v(d, 4)}, {v(self.V_OUT)}, {WS}, {s(self.S_OUT)} offen offset:{1024 * t} sc1"]
        else:
            for u in range(2):
                for cc in range(2):
                    d = self.OUT + 4 * (u * 2 + cc)
                    o += [f"v_cvt_pk_bf16_f32 {v(d)}, {acc(u, 2 * cc, 0)}, {acc(u, 2 * cc, 1)}",
                          f"v_cvt_pk_bf16_f32 {v(d + 1)}, {acc(u, 2 * cc, 2)}, {acc(u, 2 * cc, 3)}",
                          f"v_cvt_pk_bf16_f32 {v(d + 2)}, {acc(u, 2 * cc + 1, 0)}, {acc(u, 2 * cc + 1, 1)}",
                          f"v_cvt_pk_bf16_f32 {v(d + 3)}, {acc(u, 2 * cc + 1, 2)}, {acc(u, 2 * cc + 1, 3)}",
                          f"buffer_store_dwordx4 {v(d, 4)}, {v(self.V_OUT)}, {WS}, {s(self.S_OUT + u)} offen offset:{1024 * cc} sc1"]
        if self.sync and TAIL < 64:
            o += [f"buffer_store_dwordx4 {v(self.NEG, 4)}, {v(V_L16)}, {WS}, {s(self.S_ARM)} offen offset:{1024 * k} sc1" for k in range(2)]
        return o

    def body(self):
        A = self.A
        sb, st = S_T, S_T + 1
        A(f"s_lshl_b32 {s(st)}, {s(self.S_HP)}, 9")
        A(f"s_lshl_b32 {s(st + 1)}, {s(S_W)}, 7")
        A(f"s_add_u32 {s(st)}, {s(st)}, {s(st + 1)}")
        A(f"v_lshrrev_b32 v10, 3, {v(V_LANE)}")
        A(f"v_lshlrev_b32 v10, 13, v10")
        A(f"v_and_b32 v11, 7, {v(V_LANE)}")
        A(f"v_lshlrev_b32 v11, 4, v11")
        A(f"v_add3_u32 v10, v10, v11, {s(st)}")
        A(f"s_mul_i32 {s(sb)}, {s(S_W)}, 36864")
        tr_addr(A, 11, 12, 13, 8, 1, 128, 8 if self.isv else 16, sb)
        dmas = lambda c: [(SA, 10, (32 * c + 8 * i) * 8192, 1024 * i) for i in range(4)]

        def reads(c):
            o = []
            for t in range(4):
                col = 32 * t if self.isv else 64 * (t // 2) + 8 * (t % 2)
                for rd in range(2):
                    o.append((WREG + (c * 4 + t) * 4 + 2 * rd, 11, 512 * rd + col))
            return o
        load_weights(A, 18, dmas, reads, 4096, 9, sb, st)
        if self.sync:
            tstamp(A, 3)
            wait_registered(A)
        A("s_barrier")
        A(f"v_or_b32 {v(self.V_RD)}, 0x10000, {v(V_L16)}")
        A(f"s_mul_i32 {s(st)}, {s(S_W)}, 9216")
        A(f"v_add_u32 {v(self.V_WR)}, {s(st)}, {v(V_L16)}")
        A(f"v_mov_b32 {v(self.V_LDOFF)}, {v(self.V_WR)}")
        A(f"v_and_b32 {v(self.V_POLLOFF)}, 1, {v(V_LANE)}")
        A(f"v_lshlrev_b32 {v(self.V_POLLOFF)}, 2, {v(self.V_POLLOFF)}")
        A(f"s_lshr_b32 {s(st)}, {s(S_W)}, 1")
        A(f"s_lshl_b32 {s(st + 1)}, {s(self.S_HP)}, 1")
        A(f"s_add_u32 {s(st)}, {s(st)}, {s(st + 1)}")
        A(f"s_lshl_b32 {s(st)}, {s(st)}, 13")
        A(f"s_and_b32 {s(st + 1)}, {s(S_W)}, 1")
        A(f"s_lshl_b32 {s(st + 1)}, {s(st + 1)}, {12 if self.isv else 11}")
        A(f"s_add_u32 {s(st)}, {s(st)}, {s(st + 1)}")
        A(f"v_add_u32 {v(self.V_OUT)}, {s(st)}, {v(V_L16)}")
        A(f"s_add_u32 {s(self.S_OB)}, {s(self.S_MAT)}, 1")
        A(f"s_lshl_b32 {s(self.S_OB)}, {s(self.S_OB)}, 24")
        A(f"s_lshl_b32 {s(st)}, {s(self.S_HP)}, 9")
        A(f"s_lshl_b32 {s(st + 1)}, {s(self.S_MAT)}, 6")
        A(f"s_add_u32 {s(st)}, {s(st)}, {s(st + 1)}")
        A(f"s_lshl_b32 {s(st + 1)}, {s(S_W)}, 4")
        A(f"s_add_u32 {s(st)}, {s(st)}, {s(st + 1)}")
        A(f"s_add_u32 {s(self.S_OB + 1)}, {s(st)}, {F_A:#x}")
        if self.sync and TAIL < 64:
            A(f"s_lshl_b32 {s(st)}, {s(self.S_HP)}, 2")
            A(f"s_add_u32 {s(st)}, {s(st)}, {s(S_W)}")
            A(f"s_lshl_b32 {s(st)}, {s(st)}, 11")
            A(f"s_add_u32 {s(self.S_ARM + 1)}, {s(st)}, {VM if self.isv else KM:#x}")
            if not self.isv:
                A(f"s_cmp_eq_u32 {s(self.S_MAT)}, 1")
                A(f"s_cselect_b32 {s(self.S_ARM + 1)}, {s(self.S_ARM + 1)}, {OOR:#x}")
            for k in range(4):
                A(f"v_mov_b32 {v(self.NEG + k)}, -1")
        self.emit(flag_at=40, write_at=100)


def role_qkv(A, sync):
    A(f"s_and_b32 {s(Gemm.S_IT)}, {s(S_IDX)}, 3")
    A(f"s_bfe_u32 {s(QKV.S_HP)}, {s(S_IDX)}, {2 | (4 << 16):#x}")
    A(f"s_lshr_b32 {s(QKV.S_MAT)}, {s(S_IDX)}, 6")
    A(f"s_cmp_eq_u32 {s(QKV.S_MAT)}, 2")
    A("s_cbranch_scc1 L_qkv_v")
    srd(A, S_A, KA_WQ, SZ_W)
    A(f"s_load_dwordx2 {s(S_T, 2)}, s[0:1], {KA_WK}")
    A("s_waitcnt lgkmcnt(0)")
    A(f"s_cmp_eq_u32 {s(QKV.S_MAT)}, 1")
    A(f"s_cselect_b32 {s(S_A)}, {s(S_T)}, {s(S_A)}")
    A(f"s_cselect_b32 {s(S_A + 1)}, {s(S_T + 1)}, {s(S_A + 1)}")
    QKV(A, "qk", sync, False).body()
    A("s_branch L_qkv_end")
    A.label("L_qkv_v")
    srd(A, S_A, KA_WV, SZ_W)
    A("s_waitcnt lgkmcnt(0)")
    QKV(A, "vv", sync, True).body()
    A.label("L_qkv_end")


def gemm_addr(A, g, per_wave):
    st = S_T + 1
    A(f"v_or_b32 {v(g.V_RD)}, 0x10000, {v(V_L16)}")
    A(f"s_mul_i32 {s(st)}, {s(S_W)}, {per_wave * 1024}")
    A(f"v_add_u32 {v(g.V_WR)}, {s(st)}, {v(V_L16)}")
    A(f"v_mov_b32 {v(g.V_LDOFF)}, {v(g.V_WR)}")


def cvt2(d, x):
    return f"v_cvt_pk_bf16_f32 {v(d)}, {v(x)}, {v(x + 1)}"


NWG_BC = 64
BC_REP = 4


class BC(Gemm):
    V_OUT, V_OUT2, V_KM, BIAS = 9, 10, 11, 12
    V_L8 = 4
    Q, K, KMR, V, VMR, ACC, OF = 20, 36, 68, 84, 116, 132, 204
    S_HP, S_HB, S_Q, S_K, S_V, S_KM, S_CS = 50, 51, 53, 54, 56, 58, 60

    def __init__(self, A, sync):
        super().__init__(A, "bc", sync, BC_REP, 64, 0, 0, TAIL)

    def tail_first(self):
        A = self.A

        def f():
            self.set_poll_base(self.S_IT)
            A(f"v_min_u32 {v(self.V_POLLOFF)}, {11 * 16}, {v(V_L16)}")
            poll_block(A, self.V_POLL, self.V_POLLOFF, s(self.S_POLL), True, self.S_SPIN)
        return [f] + [x for x in self.loads() if x not in self.tail_loads()]

    def tail_loads(self):
        return [x for x in self.loads() if f", {v(self.V_KM)}," in x or f", {v(self.V_L8)}," in x]

    def set_load_base(self, s_it):
        A = self.A
        A(f"s_lshl_b32 {s(self.S_KM)}, {s(s_it)}, 5")
        A(f"s_add_u32 {s(self.S_KM)}, {s(self.S_KM)}, {s(self.S_HB)}")
        A(f"s_lshl_b32 {s(self.S_V)}, {s(self.S_KM)}, 13")
        A(f"s_lshl_b32 {s(self.S_KM)}, {s(self.S_KM)}, 12")
        A(f"s_add_u32 {s(self.S_K)}, {s(self.S_V)}, {KB:#x}")
        A(f"s_add_u32 {s(self.S_K + 1)}, {s(self.S_V)}, {KB + 4096:#x}")
        A(f"s_add_u32 {s(self.S_Q)}, {s(self.S_V)}, {s(self.S_HB + 1)}")
        A(f"s_add_u32 {s(self.S_V + 1)}, {s(self.S_V)}, {VB + 4096:#x}")
        A(f"s_add_u32 {s(self.S_V)}, {s(self.S_V)}, {VB:#x}")
        A(f"s_add_u32 {s(self.S_KM + 1)}, {s(self.S_KM)}, {VM:#x}")
        A(f"s_add_u32 {s(self.S_KM)}, {s(self.S_KM)}, {KM:#x}")

    def ld_bases(self):
        pass

    def loads(self):
        ld = lambda d, vo, so, i: f"buffer_load_dwordx4 {v(d, 4)}, {v(vo)}, {WS}, {s(so)} offen offset:{1024 * i} sc1"
        o = []
        for c in range(4):
            o += [ld(self.Q + 4 * c, V_L16, self.S_Q, c), ld(self.K + 4 * c, V_L16, self.S_K, c),
                  ld(self.K + 16 + 4 * c, V_L16, self.S_K + 1, c), ld(self.KMR + 4 * c, self.V_KM, self.S_KM, c)]
        for t in range(8):
            o.append(ld(self.V + 4 * t, V_L16, self.S_V + t // 4, t % 4))
            if t % 2 == 0:
                o.append(f"buffer_load_dwordx2 {v(self.VMR + t, 2)}, {v(self.V_L8)}, {WS}, {s(self.S_KM + 1)} offen offset:{512 * t} sc1")
        return o

    def writes(self):
        return []

    def finish_stage(self):
        self.A(f"v_xor_b32 {v(self.V_RD)}, 0x10000, {v(self.V_RD)}")
        self.A(f"v_xor_b32 {v(self.V_WR)}, 0x10000, {v(self.V_WR)}")

    def set_poll_base(self, s_it):
        A = self.A
        A(f"s_lshl_b32 {s(self.S_POLL)}, {s(s_it)}, 13")
        A(f"s_lshl_b32 {s(S_T + 1)}, {s(self.S_HP)}, 9")
        A(f"s_add_u32 {s(self.S_POLL)}, {s(self.S_POLL)}, {s(S_T + 1)}")
        A(f"s_add_u32 {s(self.S_POLL)}, {s(self.S_POLL)}, {F_A:#x}")

    def set_out_base(self):
        A = self.A
        A(f"s_lshl_b32 {s(self.S_OUT)}, {s(self.S_IT)}, 5")
        A(f"s_add_u32 {s(self.S_OUT)}, {s(self.S_OUT)}, {s(self.S_HP)}")
        A(f"s_mul_i32 {s(self.S_OUT)}, {s(self.S_OUT)}, 18432")
        A(f"s_add_u32 {s(self.S_OUT)}, {s(self.S_OUT)}, {P1:#x}")
        A(f"s_add_u32 {s(self.S_OUT + 1)}, {s(self.S_OUT)}, {16 * 18432}")
        A(f"s_lshl_b32 {s(self.S_FLG)}, {s(self.S_IT)}, 4")
        A(f"s_add_u32 {s(self.S_FLG)}, {s(self.S_FLG)}, {s(self.S_HP)}")
        A(f"s_lshl_b32 {s(self.S_FLG)}, {s(self.S_FLG)}, 2")
        A(f"s_add_u32 {s(self.S_FLG)}, {s(self.S_FLG)}, {s(S_W)}")
        A(f"s_lshl_b32 {s(self.S_FLG)}, {s(self.S_FLG)}, 2")
        A(f"s_add_u32 {s(self.S_FLG)}, {s(self.S_FLG)}, {F_BC:#x}")

    def post_loads(self):
        a = self.ACC
        S, OT, L, PT, PM, ONE, T = a, a + 12, a + 44, a + 48, a + 52, a + 60, a + 68
        M16 = "v_mfma_f32_16x16x16_bf16"
        con = [f"v_mov_b32 {v(ONE + i)}, 0x3f803f80" for i in range(4)] + [f"v_mov_b32 {v(x)}, 0" for x in (PM + 1, PM + 2)]
        o = []
        for c in range(4):
            q = v(self.Q + 4 * c, 4)
            o += [f"{MF} {v(S, 4)}, {v(self.K + 4 * c, 4)}, {q}, {v(S, 4) if c else v(self.BIAS, 4)}", con.pop(),
                  f"{MF} {v(S + 4, 4)}, {v(self.K + 16 + 4 * c, 4)}, {q}, {v(S + 4, 4) if c else v(self.BIAS + 4, 4)}",
                  f"{MF} {v(S + 8, 4)}, {v(self.KMR + 4 * c, 4)}, {q}, {v(S + 8, 4) if c else 0}"]
        o += con
        o += [f"v_max3_f32 {v(T)}, {v(S)}, {v(S + 1)}, {v(S + 2)}",
              f"v_max3_f32 {v(T + 1)}, {v(S + 3)}, {v(S + 4)}, {v(S + 5)}",
              f"v_max3_f32 {v(T)}, {v(T)}, {v(S + 6)}, {v(S + 7)}",
              f"v_max3_f32 {v(T + 1)}, {v(T + 1)}, {v(S + 8)}, {v(S + 9)}",
              f"v_max_f32 {v(T)}, {v(T)}, {v(T + 1)}",
              lambda: xg_reduce(self.A, "v_max_f32", T, T + 1),
              f"v_mul_f32 {v(T)}, {s(self.S_CS)}, {v(T)}"]
        for k in range(0, 10, 2):
            o.append(f"v_pk_fma_f32 {v(S + k, 2)}, {v(S + k, 2)}, {s(self.S_CS, 2)}, {v(T, 2)} "
                     "op_sel_hi:[1,1,0] neg_lo:[0,0,1] neg_hi:[0,0,1]")
        o += [f"v_exp_f32 {v(S + k)}, {v(S + k)}" for k in range(10)]
        o += [cvt2(PT, S), cvt2(PT + 1, S + 4), cvt2(PT + 2, S + 2), cvt2(PM, S + 8), cvt2(PT + 3, S + 6), cvt2(PM + 3, S + 8)]
        o += [f"{MF} {v(L, 4)}, {v(ONE, 4)}, {v(PT, 4)}, 0"]
        o += [f"{MF} {v(OT + 4 * t, 4)}, {v(self.V + 4 * t, 4)}, {v(PT, 4)}, 0" for t in range(3)]
        o += [f"{M16} {v(L, 4)}, {v(ONE, 2)}, {v(PM, 2)}, {v(L, 4)}"]
        o += [f"{MF} {v(OT + 4 * t, 4)}, {v(self.V + 4 * t, 4)}, {v(PT, 4)}, 0" for t in range(3, 8)]
        o += [f"v_rcp_f32 {v(T)}, {v(L)}"]
        fin = []
        for t in range(8):
            d = OT + 4 * t
            o.append(f"{M16} {v(d, 4)}, {v(self.VMR + 2 * (t // 2), 2)}, {v(PM + 2 * (t % 2), 2)}, {v(d, 4)}")
            fin += [f"v_pk_mul_f32 {v(d, 2)}, {v(d, 2)}, {v(T, 2)} op_sel_hi:[1,0]",
                    f"v_pk_mul_f32 {v(d + 2, 2)}, {v(d + 2, 2)}, {v(T, 2)} op_sel_hi:[1,0]",
                    cvt2(OT + 2 * t, d), cvt2(OT + 2 * t + 1, d + 2)]
            if t % 2:
                fin.append(f"ds_write_b128 {v(self.V_WR)}, {v(OT + 2 * t - 2, 4)} offset:{1024 * (t // 2)}")
        return o + fin + ["s_waitcnt lgkmcnt(0)", "s_barrier"]

    def compute(self):
        main, fill = [], {}
        of = lambda i: self.OF + 4 * (i % 5)
        rd = lambda i: f"ds_read_b128 {v(of(i), 4)}, {v(self.V_RD)} offset:{((i % 2) * 8 + i // 2) * 1024}"
        for i in range(4):
            self.A(rd(i))
        for i in range(16):
            kc, u = i // 2, i % 2
            for t in range(9):
                acc = v(self.ACC + (u * 9 + t) * 4, 4)
                main.append(f"{MF} {acc}, {r(WREG + (kc * 9 + t) * 4, 4)}, {v(of(i), 4)}, {acc if kc else 0}")
            if i + 4 < 16:
                fill.setdefault(9 * i, []).append(rd(i + 4))
        return main, fill

    def epilogue(self):
        o = []
        for u in range(2):
            for p in range(4):
                d = self.ACC + (u * 9 + 2 * p) * 4
                o += [cvt2(d, d), cvt2(d + 1, d + 2), unmark(d), cvt2(d + 2, d + 4), cvt2(d + 3, d + 6)]
                o.append(f"buffer_store_dwordx4 {v(d, 4)}, {v(self.V_OUT)}, {WS}, {s(self.S_OUT + u)} offen offset:{1024 * p} sc1")
            d = self.ACC + (u * 9 + 8) * 4
            o += [cvt2(d, d), cvt2(d + 1, d + 2), unmark(d),
                  f"buffer_store_dwordx2 {v(d, 2)}, {v(self.V_OUT2)}, {WS}, {s(self.S_OUT + u)} offen sc1"]
        return o

    def body(self):
        A = self.A
        sb, st = S_T, S_T + 1
        L = v(V_LANE)
        pb, po = S_T + 3, S_T + 4
        A(f"s_mul_i32 {s(pb)}, {s(S_W)}, 9")
        A(f"s_add_u32 {s(pb)}, {s(pb)}, 1")
        A(f"s_lshr_b32 {s(pb)}, {s(pb)}, 1")
        A(f"s_lshr_b32 {s(po)}, {s(S_W)}, 1")
        A(f"s_mul_i32 {s(po)}, {s(po)}, 9")
        A(f"s_add_u32 {s(po)}, {s(po)}, 4")
        A(f"s_mul_i32 {s(st)}, {s(self.S_HP)}, {256 * 1152}")
        A(f"s_lshl_b32 {s(st + 1)}, {s(po)}, 6")
        A(f"s_add_u32 {s(st + 1)}, {s(st + 1)}, {s(st)}")
        A(f"v_lshrrev_b32 v21, 2, {L}")
        A(f"v_mul_u32_u24 v21, 1152, v21")
        A(f"v_and_b32 v22, 3, {L}")
        A(f"v_lshlrev_b32 v22, 4, v22")
        A(f"v_add3_u32 v21, v21, v22, {s(st + 1)}")
        A(f"s_lshl_b32 {s(st + 1)}, {s(pb)}, 6")
        A(f"s_add_u32 {s(st + 1)}, {s(st + 1)}, {s(st)}")
        A(f"v_lshrrev_b32 v20, 4, {L}")
        A(f"v_mul_u32_u24 v20, 1152, v20")
        A(f"v_and_b32 v22, 15, {L}")
        A(f"v_lshlrev_b32 v22, 4, v22")
        A(f"v_add3_u32 v20, v20, v22, {s(st + 1)}")
        A(f"s_mul_i32 {s(sb)}, {s(S_W)}, 40960")
        tr_addr(A, 22, 24, 25, 4, 1, 256, 16, sb)
        tr_addr(A, 23, 24, 25, 4, 1, 64, 16, sb)
        A(f"s_and_b32 {s(st)}, {s(S_W)}, 1")
        A(f"s_lshl_b32 {s(st)}, {s(st)}, 3")
        A(f"v_add_u32 v23, {s(st)}, v23")
        A(f"s_lshl_b32 {s(pb)}, {s(pb)}, 10")
        A(f"v_add_u32 {v(self.V_OUT)}, {s(pb)}, {v(V_L16)}")
        A(f"s_lshl_b32 {s(po)}, {s(po)}, 10")
        A(f"s_lshl_b32 {s(st)}, {s(st)}, 6")
        A(f"s_add_u32 {s(po)}, {s(po)}, {s(st)}")
        A(f"v_lshrrev_b32 {v(self.V_OUT2)}, 1, {v(V_L16)}")
        A(f"v_add_u32 {v(self.V_OUT2)}, {s(po)}, {v(self.V_OUT2)}")
        dmas = lambda c: [(SA, 20, (32 * c + 4 * i) * 1152, 1024 * i) for i in range(8)] + \
                         [(SA, 21, (32 * c + 16 * i) * 1152, 8192 + 1024 * i) for i in range(2)]

        def reads(c):
            o = []
            for t in range(9):
                for rd in range(2):
                    if t < 8:
                        o.append((WREG + (c * 9 + t) * 4 + 2 * rd, 22, 4096 * rd + 64 * (t // 2) + 8 * (t % 2)))
                    else:
                        o.append((WREG + (c * 9 + t) * 4 + 2 * rd, 23, 8192 + 1024 * rd))
            return o
        load_weights(A, 8, dmas, reads, 10240, 4, sb, st)
        A("s_barrier")
        A(f"s_lshr_b32 {s(st)}, {s(S_W)}, 1")
        A(f"s_and_b32 {s(st + 1)}, {s(S_W)}, 1")
        A(f"s_lshl_b32 {s(self.S_HB)}, {s(self.S_HP)}, 1")
        A(f"s_add_u32 {s(self.S_HB)}, {s(self.S_HB)}, {s(st)}")
        A(f"s_lshl_b32 {s(self.S_HB + 1)}, {s(st + 1)}, 12")
        A(f"s_add_u32 {s(self.S_HB + 1)}, {s(self.S_HB + 1)}, {QB:#x}")
        A(f"s_lshl_b32 {s(pb)}, {s(st + 1)}, 1")
        A(f"s_add_u32 {s(pb)}, {s(pb)}, {s(st)}")
        A(f"s_lshl_b32 {s(pb)}, {s(pb)}, 12")
        A(f"v_mov_b32 {v(self.V_RD)}, {v(V_L16)}")
        A(f"v_add_u32 {v(self.V_WR)}, {s(pb)}, {v(V_L16)}")
        A(f"v_and_b32 {v(self.V_KM)}, 0x3df, {v(V_L16)}")
        A(f"v_lshrrev_b32 {v(self.V_L8)}, 1, {v(V_L16)}")
        A(f"v_min_u32 {v(self.V_POLLOFF)}, {13 * 16}, {v(V_L16)}")
        import math
        cs = 128 ** -0.5 * math.log2(math.e)
        A(f"s_mov_b32 {s(self.S_CS)}, {f32(cs):#x}")
        A(f"s_mov_b32 {s(self.S_CS + 1)}, {f32(cs):#x}")
        A(f"v_and_b32 v20, 15, {L}")
        A(f"s_lshl_b32 {s(st + 1)}, {s(st + 1)}, 4")
        A(f"v_add_u32 v20, {s(st + 1)}, v20")
        A(f"v_lshrrev_b32 v21, 4, {L}")
        A(f"v_lshlrev_b32 v21, 2, v21")
        A(f"v_sub_u32 v20, v20, v21")
        A(f"v_mov_b32 v21, 0xf149f2ca")
        for k in range(8):
            A(f"v_cmp_gt_i32 vcc, {16 * (k // 4) + k % 4}, v20")
            A(f"v_cndmask_b32 {v(self.BIAS + k)}, 0, v21, vcc")
        self.emit(flag_at=4, write_at=0)


def role_bc(A, sync):
    A(f"s_and_b32 {s(Gemm.S_IT)}, {s(S_IDX)}, {BC_REP - 1}")
    A(f"s_lshr_b32 {s(BC.S_HP)}, {s(S_IDX)}, {BC_REP.bit_length() - 1}")
    srd(A, S_A, KA_WO, SZ_W)
    A("s_waitcnt lgkmcnt(0)")
    BC(A, sync).body()


NWG_R1 = 18
NWG_R2 = 18


def reducer(A, sync, first):
    n = "r1" if first else "r2"
    NP = 16 if first else 6
    S_U, S_P, S_X, S_PL, S_SP, S_O, S_SPL = 36, 37, 38, 39, 40, 41, 42
    VL8 = 30
    SEL, ONE, ACC, VX, VPO, VPL, VST, VF0, T, IN = 4, 10, 16, 2, 3, 14, 15, 24, 26, 40
    L = v(V_LANE)
    if first:
        srd(A, S_B, KA_X, SZ_X)
    else:
        srd(A, S_B, KA_OUT, SZ_X)
    A(f"v_and_b32 v20, 15, {L}")
    A(f"v_mul_u32_u24 {v(VX)}, 1152, v20")
    A(f"v_and_b32 v21, 48, {L}")
    A(f"s_lshl_b32 {s(S_T)}, {s(S_IDX)}, 6")
    A(f"v_add3_u32 {v(VX)}, {v(VX)}, v21, {s(S_T)}")
    A(f"v_lshrrev_b32 v21, 4, {L}")
    A(f"v_lshrrev_b32 v22, 2, v20")
    A(f"v_and_b32 v23, 3, {L}")
    A(f"v_cmp_eq_u32 vcc, v21, v22")
    A(f"v_cndmask_b32 v23, 7, v23, vcc")
    for k in (0, 1, 4, 5):
        A(f"v_mov_b32 {v(SEL + k)}, 0")
    for k in range(2):
        A(f"v_mov_b32 v22, 0x3f80")
        A(f"v_cmp_eq_u32 vcc, {2 * k}, v23")
        A(f"v_cndmask_b32 {v(SEL + 2 + k)}, 0, v22, vcc")
        A(f"v_mov_b32 v22, 0x3f800000")
        A(f"v_cmp_eq_u32 vcc, {2 * k + 1}, v23")
        A(f"v_cndmask_b32 {v(SEL + 2 + k)}, {v(SEL + 2 + k)}, v22, vcc")
    if first:
        for k in range(4):
            A(f"v_mov_b32 {v(ONE + k)}, 0x3f803f80")
        A(f"v_lshlrev_b32 v20, 3, v20")
        A(f"v_mov_b32 {v(VST)}, {OOR:#x}")
        A(f"v_cmp_eq_u32 vcc, 0, v21")
        A(f"v_cndmask_b32 {v(VST)}, {v(VST)}, v20, vcc")
        A(f"v_lshlrev_b32 {v(VPO)}, 2, {L}")
        lane0_off(A, VF0, "0")
        A(f"v_mov_b32 {v(VF0 + 1)}, 1")
    else:
        A(f"s_mul_i32 {s(S_T)}, {s(S_IDX)}, 43")
        A(f"s_lshr_b32 {s(S_T)}, {s(S_T)}, 8")
        A(f"s_lshl_b32 {s(S_T)}, {s(S_T)}, 7")
        A(f"v_min_u32 {v(VPO)}, 23, {L}")
        A(f"v_lshlrev_b32 {v(VPO)}, 2, {v(VPO)}")
        A(f"v_add_u32 {v(VPO)}, {s(S_T)}, {v(VPO)}")
    A(f"s_mov_b32 {s(S_U)}, {s(S_W)}")
    A(f"s_mov_b32 {s(S_SPL)}, {sum(1 << c for c in ((4, 13) if first else (1, 4, 7, 10, 13, 16))):#x}")
    A(f"v_lshrrev_b32 {v(VL8)}, 1, {v(V_L16)}")
    A("s_waitcnt lgkmcnt(0)")
    end = 2 * TAIL if sync else 128

    def bases():
        A(f"s_mul_i32 {s(S_X)}, {s(S_U)}, 18432")
        A(f"s_lshl_b32 {s(S_T)}, {s(S_IDX)}, 10")
        A(f"s_add_u32 {s(S_O)}, {s(S_X)}, {s(S_T)}")
        A(f"s_mul_i32 {s(S_P)}, {s(S_X)}, {NP}")
        A(f"s_add_u32 {s(S_P)}, {s(S_P)}, {s(S_T)}")
        A(f"s_add_u32 {s(S_P)}, {s(S_P)}, {P1 if first else P2:#x}")
        A(f"s_add_u32 {s(S_O)}, {s(S_O)}, {HH:#x}")

    def stat_base():
        A(f"s_lshl_b32 {s(S_T)}, {s(S_U)}, 5")
        A(f"s_add_u32 {s(S_T)}, {s(S_T)}, {s(S_IDX)}")
        A(f"s_lshl_b32 {s(S_T + 1)}, {s(S_T)}, 7")
        A(f"s_add_u32 {s(S_T + 1)}, {s(S_T + 1)}, {ST:#x}")
    if first and end < 128:
        for k in range(4):
            A(f"v_mov_b32 {v(IN + k)}, -1")
        A(f"s_add_u32 {s(S_U)}, {s(S_U)}, {end}")
        A.label("L_r1_arm")
        bases()
        stat_base()
        A(f"buffer_store_dwordx4 {v(IN, 4)}, {v(V_L16)}, {WS}, {s(S_O)} offen sc1")
        A(f"buffer_store_dwordx2 {v(IN, 2)}, {v(VST)}, {WS}, {s(S_T + 1)} offen sc1")
        A(f"s_add_u32 {s(S_U)}, {s(S_U)}, 4")
        A(f"s_cmp_lt_u32 {s(S_U)}, 128")
        A("s_cbranch_scc1 L_r1_arm")
        A(f"s_mov_b32 {s(S_U)}, {s(S_W)}")

    def body(n, tail):
        A.label(f"L_{n}_top")
        bases()
        if first:
            A(f"buffer_load_dwordx4 {v(IN, 4)}, {v(VX)}, {SB}, {s(S_X)} offen")
        if sync and not tail:
            if first:
                A(f"s_lshr_b32 {s(S_PL)}, {s(S_U)}, 1")
                A(f"s_lshl_b32 {s(S_PL)}, {s(S_PL)}, 8")
                A(f"s_add_u32 {s(S_PL)}, {s(S_PL)}, {F_BC:#x}")
            else:
                A(f"s_lshl_b32 {s(S_PL)}, {s(S_U)}, 9")
                A(f"s_add_u32 {s(S_PL)}, {s(S_PL)}, {F_E:#x}")
            poll_block(A, VPL, VPO, s(S_PL), True, S_SP)

        def fetch(split):
            o = [] if first else [f"buffer_load_dwordx4 {v(IN, 4)}, {v(V_L16)}, {WS}, {s(S_O)} offen sc1"]
            o += [f"s_mov_b32 {s(S_PL)}, {s(S_P)}"]
            for p in range(NP):
                if split:
                    o += [f"buffer_load_dwordx2 {v(IN + 4 + 4 * p + 2 * k, 2)}, {v(VL8)}, {WS}, {s(S_PL)} offen offset:{512 * k} sc1" for k in range(2)]
                else:
                    o += [f"buffer_load_dwordx4 {v(IN + 4 + 4 * p, 4)}, {v(V_L16)}, {WS}, {s(S_PL)} offen sc1"]
                if p + 1 < NP:
                    o += [f"s_add_u32 {s(S_PL)}, {s(S_PL)}, 18432"]
            if tail:
                tstamp(A, 6, VPL, when=(S_U, 124))
                spin_loads(A, o, VPL, S_SP, probe=f"x, {v(V_L16)}, {WS}, {s(S_P)} offen sc1")
                tstamp(A, 7, VPL, when=(S_U, 124))

            else:
                for x in o:
                    A(x)
        A(f"s_bitcmp1_b32 {s(S_SPL)}, {s(S_IDX)}")
        A(f"s_cbranch_scc1 L_{n}_split")
        fetch(False)
        A.label(f"L_{n}_sum")
        for p in range(NP + 1):
            A(f"{MF} {v(ACC, 4)}, {v(SEL + 2, 4)}, {v(IN + 4 * p, 4)}, {v(ACC, 4) if p else 0}")
            A(f"{MF} {v(ACC + 4, 4)}, {v(SEL, 4)}, {v(IN + 4 * p, 4)}, {v(ACC + 4, 4) if p else 0}")
        for k in range(4):
            A(cvt2(IN + k, ACC + 2 * k))
        if not first:
            A(f"buffer_store_dwordx4 {v(IN, 4)}, {v(VX)}, {SB}, {s(S_X)} offen{os.environ.get('OSC', '')}")
        else:
            A(unmark(IN))
            A(f"buffer_store_dwordx4 {v(IN, 4)}, {v(V_L16)}, {WS}, {s(S_O)} offen sc1")
            A(f"{MF} {v(T, 4)}, {v(ONE, 4)}, {v(IN, 4)}, 0")
            for k in range(4):
                A(f"v_lshlrev_b32 {v(ACC + 2 * k)}, 16, {v(IN + k)}")
                A(f"v_and_b32 {v(ACC + 2 * k + 1)}, 0xffff0000, {v(IN + k)}")
            stat_base()
            A(f"v_mul_f32 {v(T + 2)}, {f32(-1.0 / 32):#x}, {v(T)}")
            for k in range(0, 8, 2):
                A(f"v_pk_add_f32 {v(ACC + k, 2)}, {v(ACC + k, 2)}, {v(T + 2, 2)} op_sel_hi:[1,0]")
            A(f"v_pk_mul_f32 {v(ACC, 2)}, {v(ACC, 2)}, {v(ACC, 2)}")
            for k in range(2, 8, 2):
                A(f"v_pk_fma_f32 {v(ACC, 2)}, {v(ACC + k, 2)}, {v(ACC + k, 2)}, {v(ACC, 2)}")
            A(f"v_add_f32 {v(T + 1)}, {v(ACC)}, {v(ACC + 1)}")
            A(unmark(T))
            xg_reduce(A, "v_add_f32", T + 1, T + 2)
            A(f"buffer_store_dwordx2 {v(T, 2)}, {v(VST)}, {WS}, {s(S_T + 1)} offen sc1")
            if sync and not tail:
                A(f"s_lshl_b32 {s(S_T)}, {s(S_T)}, 2")
                A(f"s_add_u32 {s(S_T)}, {s(S_T)}, {F_R1:#x}")
                A("s_waitcnt vmcnt(0)")
                A(f"buffer_store_dword {v(VF0 + 1)}, {v(VF0)}, {WS}, {s(S_T)} offen sc1")
        A(f"s_add_u32 {s(S_U)}, {s(S_U)}, 4")
        A(f"s_cmp_lt_u32 {s(S_U)}, {128 if tail else end}")
        A(f"s_cbranch_scc1 L_{n}_top")
        A(f"s_branch L_{n}_done")
        A.label(f"L_{n}_split")
        fetch(True)
        A(f"s_branch L_{n}_sum")
        A.label(f"L_{n}_done")
    body(n, False)
    if end < 128:
        body(n + "t", True)


def role_r1(A, sync):
    reducer(A, sync, True)


def role_r2(A, sync):
    reducer(A, sync, False)


NWG_DD = 72


class DD(Gemm):
    ACC, BF, STG, CS, SN, SC_, T, V_ST, V_ST4, V_VAL = 12, 28, 44, 64, 80, 90, 100, 9, 10, 11
    S_SL, S_ST = 50, 51

    def __init__(self, A, sync):
        super().__init__(A, "dd", sync, 2, 128, 5, self.STG, 2 * TAIL)

    def set_load_base(self, s_it):
        A = self.A
        A(f"s_mul_i32 {s(self.S_LD)}, {s(s_it)}, 18432")
        A(f"s_add_u32 {s(self.S_LD)}, {s(self.S_LD)}, {HH:#x}")
        A(f"s_lshl_b32 {s(self.S_ST)}, {s(s_it)}, 12")
        A(f"s_add_u32 {s(self.S_ST)}, {s(self.S_ST)}, {ST:#x}")

    def extra_loads(self):
        return [f"buffer_load_dwordx2 {v(self.SN + 2 * i, 2)}, {v(self.V_ST if i < 4 else self.V_ST4)}, {WS}, "
                f"{s(self.S_ST)} offen offset:{512 * i} sc1" for i in range(5)]

    def post_loads(self):
        return [f"v_mov_b64 {v(self.SC_ + 2 * i, 2)}, {v(self.SN + 2 * i, 2)}" for i in range(5)]

    def set_poll_base(self, s_it):
        self.A(f"s_lshl_b32 {s(self.S_POLL)}, {s(s_it)}, 7")
        self.A(f"s_add_u32 {s(self.S_POLL)}, {s(self.S_POLL)}, {F_R1:#x}")

    def set_out_base(self):
        A = self.A
        A(f"s_mul_i32 {s(self.S_OUT)}, {s(self.S_IT)}, 144")
        A(f"s_add_u32 {s(self.S_OUT)}, {s(self.S_OUT)}, {s(self.S_SL)}")
        A(f"s_lshl_b32 {s(self.S_OUT)}, {s(self.S_OUT)}, 10")
        A(f"s_add_u32 {s(self.S_OUT)}, {s(self.S_OUT)}, {ACT:#x}")
        A(f"s_lshl_b32 {s(self.S_FLG)}, {s(self.S_IT)}, 8")
        A(f"s_add_u32 {s(self.S_FLG)}, {s(self.S_FLG)}, {s(self.S_SL)}")
        A(f"s_lshl_b32 {s(self.S_FLG)}, {s(self.S_FLG)}, 2")
        A(f"s_add_u32 {s(self.S_FLG)}, {s(self.S_FLG)}, {F_D:#x}")

    def stats(self):
        S, T = self.SC_, self.T
        o = []
        xg = lambda op, x, t: [f"v_mov_b32 {v(t)}, {v(x)}", f"v_permlane32_swap_b32 {v(x)}, {v(t)}",
                               f"{op} {v(x)}, {v(x)}, {v(t)}", f"v_mov_b32 {v(t)}, {v(x)}",
                               f"v_permlane16_swap_b32 {v(x)}, {v(t)}", f"{op} {v(x)}, {v(x)}, {v(t)}"]
        rnd = lambda x: [f"v_cvt_pk_bf16_f32 {v(x)}, {v(x)}, {v(x)}", f"v_and_b32 {v(x)}, 0xffff0000, {v(x)}"]
        o += [f"v_add_f32 {v(T)}, {v(S)}, {v(S + 2)}", f"v_add_f32 {v(T + 1)}, {v(S + 4)}, {v(S + 6)}",
              f"v_add_f32 {v(T + 2)}, {v(S + 1)}, {v(S + 3)}", f"v_add_f32 {v(T + 3)}, {v(S + 5)}, {v(S + 7)}",
              f"v_add_f32 {v(T)}, {v(T)}, {v(S + 8)}", f"v_add_f32 {v(T + 2)}, {v(T + 2)}, {v(S + 9)}",
              f"v_add_f32 {v(T)}, {v(T)}, {v(T + 1)}", f"v_add_f32 {v(T + 2)}, {v(T + 2)}, {v(T + 3)}"]
        o += xg("v_add_f32", T, T + 1)
        o += [f"v_mul_f32 {v(T + 1)}, {f32(-1.0 / 18):#x}, {v(T)}"]
        o += [f"v_add_f32 {v(S + 2 * i)}, {v(S + 2 * i)}, {v(T + 1)}" for i in range(5)]
        o += [f"v_mul_f32 {v(S + 8)}, {v(S + 8)}, {v(self.V_VAL)}", f"v_mul_f32 {v(T + 3)}, {v(S)}, {v(S)}"]
        o += [f"v_fmac_f32 {v(T + 3)}, {v(S + 2 * i)}, {v(S + 2 * i)}" for i in range(1, 5)]
        o += [f"v_fmac_f32 {v(T + 2)}, {f32(1.0 / 32):#x}, {v(T + 3)}"]
        o += xg("v_add_f32", T + 2, T + 1)
        o += [f"v_mul_f32 {v(T)}, {f32(-1.0 / 576):#x}, {v(T)}"] + rnd(T)
        o += [f"v_mul_f32 {v(T + 2)}, {f32(1.0 / 576):#x}, {v(T + 2)}"] + rnd(T + 2)
        o += [f"v_add_f32 {v(T + 2)}, {f32(1e-5):#x}, {v(T + 2)}"] + rnd(T + 2)
        o += [f"v_sqrt_f32 {v(T + 2)}, {v(T + 2)}"] + rnd(T + 2)
        o += [f"v_rcp_f32 {v(T + 2)}, {v(T + 2)}", f"v_mul_f32 {v(T + 2)}, {v(T + 2)}, {v(T + 2)}"]
        return o

    def compute(self):
        main, fill = [], {}
        bf = lambda c: self.BF + (c % 4) * 4
        rd = lambda c: f"ds_read_b128 {v(bf(c), 4)}, {v(self.V_RD)} offset:{c * 1024}"
        for c in range(3):
            self.A(rd(c))
        for c in range(18):
            for t in range(4):
                acc = v(self.ACC + 4 * t, 4)
                main.append(f"{MF} {acc}, {r(WREG + (c * 4 + t) * 4, 4)}, {v(bf(c), 4)}, {acc if c else 0}")
            if c + 3 < 18:
                fill.setdefault(4 * c, []).append(rd(c + 3))
        spread(fill, self.stats(), 2, 1)
        return main, fill

    def epilogue(self):
        a, T = self.ACC, self.T
        o = [f"v_pk_fma_f32 {v(a + k, 2)}, {v(self.CS + k, 2)}, {v(T, 2)}, {v(a + k, 2)} op_sel_hi:[1,0,1]" for k in range(0, 16, 2)]
        o += [f"v_max_f32 {v(a + k)}, 0, {v(a + k)}" for k in range(8)]
        o += [f"v_pk_mul_f32 {v(a + 8 + k, 2)}, {v(a + 8 + k, 2)}, {v(T + 2, 2)} op_sel_hi:[1,0]" for k in range(0, 8, 2)]
        o += [f"v_pk_mul_f32 {v(a + k, 2)}, {v(a + k, 2)}, {v(a + 8 + k, 2)}" for k in range(0, 8, 2)]
        o += [cvt2(T + 4 + k, a + 2 * k) for k in range(4)] + [unmark(T + 4)]
        o += [f"buffer_store_dwordx4 {v(T + 4, 4)}, {v(V_L16)}, {WS}, {s(self.S_OUT)} offen sc1"]
        return o

    def body(self):
        A = self.A
        sb, st = S_T, S_T + 1
        L = v(V_LANE)
        A(f"s_lshl_b32 {s(self.S_SL)}, {s(self.S_SL)}, 2")
        A(f"s_add_u32 {s(self.S_SL)}, {s(self.S_SL)}, {s(S_W)}")
        A(f"s_lshl_b32 {s(st)}, {s(self.S_SL)}, 6")
        A(f"v_lshrrev_b32 v20, 2, {L}")
        A(f"v_mul_u32_u24 v20, 9216, v20")
        A(f"v_and_b32 v21, 3, {L}")
        A(f"v_lshlrev_b32 v21, 4, v21")
        A(f"v_add3_u32 v20, v20, v21, {s(st)}")
        A(f"s_mul_i32 {s(sb)}, {s(S_W)}, 36864")
        tr_addr(A, 21, 22, 23, 8, 1, 64, 16, sb)
        dmas = lambda c: [((SA, SB)[i // 2], 20, (32 * c + 16 * (i % 2)) * 9216, 1024 * i) for i in range(4)]
        reads = lambda c: [(WREG + (c * 4 + t) * 4 + 2 * rd, 21, 2048 * (t // 2) + 8 * (t % 2) + 256 * rd)
                           for t in range(4) for rd in range(2)]
        load_weights(A, 18, dmas, reads, 4096, 9, sb, st)
        A("s_barrier")
        for k in range(4):
            A(f"v_mov_b32 {v(self.BF + k)}, 0x3f803f80")
        for c in range(18):
            for t in range(4):
                cs = v(self.CS + 4 * t, 4)
                A(f"{MF} {cs}, {r(WREG + (c * 4 + t) * 4, 4)}, {v(self.BF, 4)}, {cs if c else 0}")
        gemm_addr(A, self, 4)
        A(f"s_min_u32 {s(st)}, {s(S_W)}, 1")
        A(f"s_lshl_b32 {s(st)}, {s(st)}, 10")
        A(f"v_add_u32 {v(self.V_WR)}, {s(st)}, {v(self.V_WR)}")
        A(f"v_mov_b32 {v(self.V_LDOFF)}, {v(self.V_WR)}")
        A(f"v_min_u32 {v(self.V_POLLOFF)}, 17, {L}")
        A(f"v_lshlrev_b32 {v(self.V_POLLOFF)}, 2, {v(self.V_POLLOFF)}")
        A(f"v_lshlrev_b32 {v(self.V_ST)}, 3, {L}")
        A(f"v_mov_b32 {v(self.V_ST4)}, {OOR:#x}")
        A(f"v_cmp_gt_u32 vcc, 32, {L}")
        A(f"v_cndmask_b32 {v(self.V_ST4)}, {v(self.V_ST4)}, {v(self.V_ST)}, vcc")
        A(f"v_cndmask_b32 {v(self.V_VAL)}, 0, 1.0, vcc")
        self.emit(flag_at=16, write_at=60)


def role_dd(A, sync):
    A(f"s_and_b32 {s(Gemm.S_IT)}, {s(S_IDX)}, 1")
    A(f"s_lshr_b32 {s(DD.S_SL)}, {s(S_IDX)}, 1")
    srd(A, S_A, KA_WG, SZ_WF)
    srd(A, S_B, KA_WU, SZ_WF)
    A("s_waitcnt lgkmcnt(0)")
    DD(A, sync).body()


NWG_EE = 36


class EE(Gemm):
    ACC, BF, STG, V_OUT, V_OUT2 = 12, 28, 44, 9, 10
    S_KS, S_NS = 50, 51

    def __init__(self, A, sync):
        super().__init__(A, "ee", sync, 2, 128, 6, self.STG, 2 * TAIL)

    def set_load_base(self, s_it):
        A = self.A
        A(f"s_mul_i32 {s(self.S_LD)}, {s(s_it)}, 6")
        A(f"s_add_u32 {s(self.S_LD)}, {s(self.S_LD)}, {s(self.S_KS)}")
        A(f"s_mul_i32 {s(self.S_LD)}, {s(self.S_LD)}, 24576")
        A(f"s_add_u32 {s(self.S_LD)}, {s(self.S_LD)}, {ACT:#x}")

    def set_poll_base(self, s_it):
        self.A(f"s_lshl_b32 {s(self.S_POLL)}, {s(s_it)}, 10")
        self.A(f"s_add_u32 {s(self.S_POLL)}, {s(self.S_POLL)}, {F_D:#x}")

    def set_out_base(self):
        A = self.A
        A(f"s_mul_i32 {s(self.S_OUT)}, {s(self.S_IT)}, 6")
        A(f"s_add_u32 {s(self.S_OUT)}, {s(self.S_OUT)}, {s(self.S_KS)}")
        A(f"s_mul_i32 {s(self.S_OUT)}, {s(self.S_OUT)}, 18432")
        A(f"s_add_u32 {s(self.S_OUT)}, {s(self.S_OUT)}, {P2:#x}")
        A(f"s_lshl_b32 {s(self.S_FLG)}, {s(self.S_IT)}, 9")
        A(f"s_add_u32 {s(self.S_FLG)}, {s(self.S_FLG)}, {s(self.S_NS)}")

    def compute(self):
        main, fill = [], {}
        bf = lambda c: self.BF + (c % 4) * 4
        rd = lambda c: f"ds_read_b128 {v(bf(c), 4)}, {v(self.V_RD)} offset:{c * 1024}"
        for c in range(3):
            self.A(rd(c))
        for c in range(24):
            for t in range(3):
                acc = v(self.ACC + 4 * t, 4)
                main.append(f"{MF} {acc}, {r(WREG + (c * 3 + t) * 4, 4)}, {v(bf(c), 4)}, {acc if c else 0}")
            if c + 3 < 24:
                fill.setdefault(3 * c, []).append(rd(c + 3))
        return main, fill

    def epilogue(self):
        a = self.ACC
        return [cvt2(a + k, a + 2 * k) for k in range(4)] + \
            [unmark(a), f"buffer_store_dwordx4 {v(a, 4)}, {v(self.V_OUT)}, {WS}, {s(self.S_OUT)} offen sc1",
             cvt2(a + 8, a + 8), cvt2(a + 9, a + 10), unmark(a + 8),
             f"buffer_store_dwordx2 {v(a + 8, 2)}, {v(self.V_OUT2)}, {WS}, {s(self.S_OUT)} offen sc1"]

    def body(self):
        A = self.A
        sb, st = S_T, S_T + 1
        pb, po = S_T + 3, S_T + 4
        L = v(V_LANE)
        A(f"s_mul_i32 {s(st)}, {s(self.S_NS)}, 6")
        A(f"s_mul_i32 {s(pb)}, {s(S_W)}, 3")
        A(f"s_add_u32 {s(pb)}, {s(pb)}, 1")
        A(f"s_lshr_b32 {s(pb)}, {s(pb)}, 1")
        A(f"s_add_u32 {s(pb)}, {s(pb)}, {s(st)}")
        A(f"s_lshr_b32 {s(po)}, {s(S_W)}, 1")
        A(f"s_mul_i32 {s(po)}, {s(po)}, 3")
        A(f"s_add_u32 {s(po)}, {s(po)}, 1")
        A(f"s_add_u32 {s(po)}, {s(po)}, {s(st)}")
        A(f"s_mul_i32 {s(st)}, {s(self.S_KS)}, {768 * 1152}")
        A(f"v_lshrrev_b32 v20, 2, {L}")
        A(f"v_mul_u32_u24 v20, 1152, v20")
        A(f"v_and_b32 v21, 3, {L}")
        A(f"v_lshlrev_b32 v21, 4, v21")
        A(f"v_add3_u32 v20, v20, v21, {s(st)}")
        A(f"s_lshl_b32 {s(st)}, {s(po)}, 6")
        A(f"v_add_u32 v21, {s(st)}, v20")
        A(f"s_lshl_b32 {s(st)}, {s(pb)}, 6")
        A(f"v_add_u32 v20, {s(st)}, v20")
        A(f"s_mul_i32 {s(sb)}, {s(S_W)}, 36864")
        tr_addr(A, 22, 24, 25, 8, 1, 64, 16, sb)
        A(f"s_and_b32 {s(st)}, {s(S_W)}, 1")
        A(f"s_lshl_b32 {s(st)}, {s(st)}, 3")
        A(f"v_add_u32 v23, {s(st)}, v22")
        A(f"s_lshl_b32 {s(pb)}, {s(pb)}, 10")
        A(f"v_add_u32 {v(self.V_OUT)}, {s(pb)}, {v(V_L16)}")
        A(f"s_lshl_b32 {s(po)}, {s(po)}, 10")
        A(f"s_lshl_b32 {s(st)}, {s(st)}, 6")
        A(f"s_add_u32 {s(po)}, {s(po)}, {s(st)}")
        A(f"v_lshrrev_b32 {v(self.V_OUT2)}, 1, {v(V_L16)}")
        A(f"v_add_u32 {v(self.V_OUT2)}, {s(po)}, {v(self.V_OUT2)}")
        dmas = lambda c: [(SA, 20 + i // 2, (32 * c + 16 * (i % 2)) * 1152, 1024 * i) for i in range(4)]
        reads = lambda c: [(WREG + (c * 3 + t) * 4 + 2 * rd, 22 + t // 2, 2048 * (t // 2) + 8 * (t % 2) + 256 * rd)
                           for t in range(3) for rd in range(2)]
        load_weights(A, 24, dmas, reads, 4096, 9, sb, st)
        A("s_barrier")
        gemm_addr(A, self, 6)
        A(f"s_mul_i32 {s(st)}, {s(self.S_KS)}, 96")
        A(f"v_min_u32 {v(self.V_POLLOFF)}, 23, {L}")
        A(f"v_lshlrev_b32 {v(self.V_POLLOFF)}, 2, {v(self.V_POLLOFF)}")
        A(f"v_add_u32 {v(self.V_POLLOFF)}, {s(st)}, {v(self.V_POLLOFF)}")
        A(f"s_lshl_b32 {s(self.S_NS)}, {s(self.S_NS)}, 5")
        A(f"s_lshl_b32 {s(st)}, {s(self.S_KS)}, 2")
        A(f"s_add_u32 {s(self.S_NS)}, {s(self.S_NS)}, {s(st)}")
        A(f"s_add_u32 {s(self.S_NS)}, {s(self.S_NS)}, {s(S_W)}")
        A(f"s_lshl_b32 {s(self.S_NS)}, {s(self.S_NS)}, 2")
        A(f"s_add_u32 {s(self.S_NS)}, {s(self.S_NS)}, {F_E:#x}")
        self.emit(flag_at=16, write_at=58)


def role_ee(A, sync):
    A(f"s_and_b32 {s(Gemm.S_IT)}, {s(S_IDX)}, 1")
    A(f"s_lshr_b32 {s(EE.S_KS)}, {s(S_IDX)}, 1")
    A(f"s_mul_i32 {s(EE.S_NS)}, {s(EE.S_KS)}, 43")
    A(f"s_lshr_b32 {s(EE.S_NS)}, {s(EE.S_NS)}, 8")
    A(f"s_mul_i32 {s(S_T)}, {s(EE.S_NS)}, 6")
    A(f"s_sub_u32 {s(EE.S_KS)}, {s(EE.S_KS)}, {s(S_T)}")
    srd(A, S_A, KA_WD, SZ_WF)
    A("s_waitcnt lgkmcnt(0)")
    EE(A, sync).body()
```

```python
from asm import *
import os
REC_LIMIT = int(os.environ.get("REC_LIMIT", "32"))
V_T0, V_T1, V_JUNK = 8, 9, 10
S_MODE = 67

NAME = "sequential_preLN__memory_aug_recurrent_mem_tr__glu_gated_reglu__prompt"

F_LN = 0x00000
F_A = 0x80000
F_BC = 0x30000
F_R1 = 0x34000
F_E = 0x38000
F_D = 0x50000
FLAGS_END = 0x100000
MR = 0x100000
MR_STRIDE = 0x4000
PR = 0x110000
PR_STRIDE = 0x48000
SENT_END = 0x200000
XH = 0x200000
HH = 0x480000
ST = 0x700000
QB = 0x1000000
KB = 0x2000000
VB = 0x3000000
KM = 0x4000000
VM = 0x4800000
ACT = 0x5000000
P1 = 0x6400000
P2 = 0x9000000
WS_BYTES = 0x10000000
OOR = 0x40000000

KA_X, KA_MEM0, KA_WQ, KA_WK, KA_WV, KA_WO = 0, 8, 16, 24, 32, 40
KA_WG, KA_WU, KA_WD, KA_OUT, KA_DBG, KA_WS = 64, 72, 80, 88, 96, 104
SZ_X = 2048 * 576 * 2
SZ_MEM0 = 8 * 576 * 2
SZ_W = 576 * 4096 * 2
SZ_WF = 576 * 4608 * 2

S_WS = 4
S_A = 8
S_B = 12
S_C = 16
S_DBG = 20
S_IDX = 24
S_W = 25
S_T = 26
WS = s(S_WS, 4)
SA = s(S_A, 4)
SB = s(S_B, 4)
SC = s(S_C, 4)
SDBG = s(S_DBG, 4)

V_L16 = 0
V_LANE = 1


def srd(A, base, ka, size):
    A(f"s_load_dwordx2 {s(base, 2)}, s[0:1], {ka}")
    A(f"s_mov_b32 {s(base + 2)}, {size:#x}")
    A(f"s_mov_b32 {s(base + 3)}, 0x20000")


def entry(A):
    srd(A, S_WS, KA_WS, WS_BYTES)
    srd(A, S_DBG, KA_DBG, 256)
    A(f"v_lshrrev_b32 v2, 6, v0")
    A(f"v_readfirstlane_b32 {s(S_W)}, v2")
    A(f"v_and_b32 {v(V_LANE)}, 63, v0")
    A(f"v_lshlrev_b32 {v(V_L16)}, 4, {v(V_LANE)}")
    A("s_waitcnt lgkmcnt(0)")


class NW(str):
    pass


def weave(A, main, fill):
    for i, m in enumerate(main):
        A(m)
        for f in fill.get(i, []):
            if callable(f):
                f()
            elif isinstance(f, NW):
                A.nw(f)
            else:
                A(f)


def spread(fill, items, start, step=1, per=1):
    k = start
    for i in range(0, len(items), per):
        fill.setdefault(k, []).extend(items[i:i + per])
        k += step
    return k


def xg_reduce(A, op, x, t):
    A(f"v_mov_b32 {v(t)}, {v(x)}")
    A(f"v_permlane32_swap_b32 {v(x)}, {v(t)}")
    A(f"{op} {v(x)}, {v(x)}, {v(t)}")
    A(f"v_mov_b32 {v(t)}, {v(x)}")
    A(f"v_permlane16_swap_b32 {v(x)}, {v(t)}")
    A(f"{op} {v(x)}, {v(x)}, {v(t)}")


def bf16_round(A, x):
    A(f"v_cvt_pk_bf16_f32 {v(x)}, {v(x)}, {v(x)}")
    A(f"v_and_b32 {v(x)}, 0xffff0000, {v(x)}")


SPIN_MAX = 1 << 20


def poll_block(A, vdst, voff, soff, sync, stmp, fail="L_fail"):
    if not sync:
        return
    l = A.uid("L_poll")
    d = A.uid("L_polld")
    A(f"s_mov_b32 {s(stmp)}, 0")
    A.label(l)
    A(f"buffer_load_dword {v(vdst)}, {v(voff)}, {WS}, {soff} offen sc1")
    A(f"v_cmp_eq_u32 vcc, 0, {v(vdst)}")
    A(f"s_cbranch_vccz {d}")
    A(f"s_add_u32 {s(stmp)}, {s(stmp)}, 1")
    A(f"s_cmp_lt_u32 {s(stmp)}, {SPIN_MAX}")
    A(f"s_cbranch_scc1 {l}")
    A(f"s_branch {fail}")
    A.label(d)


def poll_mask(A, vdst, soff, mask, stmp, fail="L_fail"):
    l = A.uid("L_poll")
    d = A.uid("L_polld")
    A(f"s_mov_b32 {s(stmp)}, 0")
    A.label(l)
    A(f"buffer_load_dword {v(vdst)}, {v(V_L16)}, {WS}, {soff} offen sc1")
    A(f"v_cmp_eq_u32 vcc, 0, {v(vdst)}")
    A(f"s_and_b64 vcc, vcc, {mask}")
    A(f"s_cbranch_vccz {d}")
    A(f"s_add_u32 {s(stmp)}, {s(stmp)}, 1")
    A(f"s_cmp_lt_u32 {s(stmp)}, {SPIN_MAX}")
    A(f"s_cbranch_scc1 {l}")
    A(f"s_branch {fail}")
    A.label(d)


def wait_registered(A):
    l = A.uid("L_reg")
    A(f"v_mov_b32 {v(V_T0)}, 0")
    A(f"s_mov_b32 {s(S_T + 2)}, 0")
    A.label(l)
    A(f"buffer_load_dword {v(V_T1)}, {v(V_T0)}, {SDBG}, 0 offen sc1")
    A(f"buffer_load_dword {v(V_JUNK)}, {v(V_T0)}, {SDBG}, 0 offen offset:128 sc1")
    A(f"s_add_u32 {s(S_T + 2)}, {s(S_T + 2)}, 1")
    A(f"s_cmp_gt_u32 {s(S_T + 2)}, {SPIN_MAX}")
    A("s_cbranch_scc1 L_fail")
    A(f"v_readfirstlane_b32 {s(S_MODE)}, {v(V_T1)}")
    A(f"v_readfirstlane_b32 {s(S_T + 1)}, {v(V_JUNK)}")
    A(f"s_min_u32 {s(S_T)}, {s(S_MODE)}, {REC_LIMIT}")
    A(f"s_add_u32 {s(S_T)}, {s(S_T)}, {s(S_T + 1)}")
    A(f"s_cmp_lt_u32 {s(S_T)}, 256")
    A(f"s_cbranch_scc1 {l}")


TB = 0xD000000


def tstamp(A, k, vr=8, src=96, when=None):
    if not os.environ.get("TS"):
        return
    if when:
        l = A.uid("L_ts")
        A(f"s_cmp_lt_u32 {s(when[0])}, {when[1]}")
        A(f"s_cbranch_scc1 {l}")
        if len(when) > 2:
            A(f"s_cmp_ge_u32 {s(when[0])}, {when[2]}")
            A(f"s_cbranch_scc1 {l}")
        tstamp(A, k, vr, src)
        A.label(l)
        return
    A(f"s_memrealtime s[96:97]")
    A(f"s_lshl_b32 s98, s99, 2")
    A(f"s_add_u32 s98, s98, {s(S_W)}")
    A(f"s_lshl_b32 s98, s98, 6")
    A(f"s_add_u32 s98, s98, {TB + 4 * k:#x}")
    A("s_waitcnt lgkmcnt(0)")
    A(f"v_mov_b32 v{vr}, s{src}")
    A("s_mov_b64 exec, 1")
    A(f"buffer_store_dword v{vr}, {v(V_L16)}, {WS}, s98 offen")
    A("s_mov_b64 exec, -1")


def lane0_off(A, vdst, vsrc_or_const):
    A(f"v_mov_b32 {v(vdst)}, {OOR:#x}")
    A(f"v_cmp_eq_u32 vcc, 0, {v(V_L16)}")
    A(f"v_cndmask_b32 {v(vdst)}, {v(vdst)}, {vsrc_or_const}, vcc")


def descriptor(kname):
    return f""".amdhsa_kernel {kname}
  .amdhsa_next_free_vgpr 512
  .amdhsa_next_free_sgpr 102
  .amdhsa_accum_offset 256
  .amdhsa_group_segment_fixed_size 0
  .amdhsa_kernarg_size 112
  .amdhsa_user_sgpr_count 2
  .amdhsa_user_sgpr_kernarg_segment_ptr 1
  .amdhsa_system_sgpr_workgroup_id_x 1
.end_amdhsa_kernel
"""
```

```python
import sys, re
from common import *
import bulk, importlib, os
rec = importlib.import_module(os.environ.get('REC', 'rec'))

HEADER = open("cdna_kernels/" + NAME + ".s.ref").read().split("; @launch")[0]
DIAG = rec.DIAG
def build():
    A = Asm()
    A("s_cmp_ge_u32 s2, 256")
    A("s_cbranch_scc1 L_exit")
    entry(A)
    if DIAG == 2:
        A(f"s_memtime {s(rec.S_TM, 2)}")
        A(f"s_memrealtime {s(rec.S_TM + 10, 2)}")
    rec.init_ws(A)
    rec.register(A)
    A(f"s_mov_b32 s99, {s(rec.S_H)}")
    tstamp(A, 0)
    A(f"s_cmp_lt_u32 {s(S_IDX)}, 192")
    A("s_cbranch_scc1 L_p1_qkv")
    A(f"s_sub_u32 {s(S_IDX)}, {s(S_IDX)}, 192")
    bulk.role_ln1(A, True)
    A(f"s_add_u32 {s(S_IDX)}, {s(S_IDX)}, 192")
    A("s_branch L_p2")
    A.label("L_p1_qkv")
    bulk.role_qkv(A, True)
    A.label("L_p2")
    tstamp(A, 1)
    A(f"v_lshrrev_b32 {v(V_LANE)}, 4, {v(V_L16)}")
    A("s_barrier")
    if os.environ.get("EXP"):
        A("s_branch L_exit")
    lo = 0
    roles = [("bc", bulk.NWG_BC), ("dd", bulk.NWG_DD), ("ee", bulk.NWG_EE), ("r1", bulk.NWG_R1), ("r2", bulk.NWG_R2)]
    for n, k in roles:
        A(f"s_cmp_lt_u32 {s(S_IDX)}, {k}")
        A(f"s_cbranch_scc1 L_role_{n}")
        A(f"s_sub_u32 {s(S_IDX)}, {s(S_IDX)}, {k}")
    A("s_branch L_exit")
    for n, k in roles:
        A.label(f"L_role_{n}")
        getattr(bulk, "role_" + n)(A, True)
        if os.environ.get("TS"):
            A("s_memrealtime s[94:95]")
            A("s_waitcnt vmcnt(0)")
        tstamp(A, 9)
        tstamp(A, 2, src=94)
        A("s_branch L_exit")
    A.label("L_fail")
    A.label("L_exit")
    A("s_endpgm")
    A.label("L_rec")
    rec.role_rec(A, os.environ.get('EXP') != '1')
    body = A.finish()
    k = NAME + "_kernel"
    o = HEADER + "; @launch grid=(256,1,1) block=(256,1,1) lds=163840\n"
    o += '.amdgcn_target "amdgcn-amd-amdhsa--gfx950"\n.text\n'
    o += f".globl {k}\n.p2align 8\n.type {k},@function\n{k}:\n{body}"
    o += '.section .rodata,"a"\n.p2align 6\n' + descriptor(k)
    return o


if __name__ == "__main__":
    open(sys.argv[1], "w").write(build())
```

```python
from common import *
import re

TAIL = int(os.environ.get("TAIL", "48"))
WREG = 224
MF = "v_mfma_f32_16x16x32_bf16"


def load_weights(A, nchunk, dmas, reads, slot_bytes, nslots, s_base, s_tmp, pol=os.environ.get("WPOL", "nt")):
    issued = []

    def issue(c):
        for (sr, vo, so, rel) in dmas(c):
            A(f"s_add_u32 m0, {s(s_base)}, {(c % nslots) * slot_bytes + rel:#x}")
            A(f"s_mov_b32 {s(s_tmp)}, {so:#x}")
            A(f"buffer_load_dwordx4 {v(vo)}, {sr}, {s(s_tmp)} offen {pol} lds")
            issued.append(c)

    for c in range(min(nslots, nchunk)):
        issue(c)
    for c in range(nchunk):
        after = sum(1 for x in issued if x > c)
        assert after <= 63
        A(f"s_waitcnt vmcnt({after})")
        for (dst, va, rel) in reads(c):
            A(f"ds_read_b64_tr_b16 {r(dst, 2)}, {v(va)} offset:{(c % nslots) * slot_bytes + rel}")
        if c + nslots < nchunk:
            A("s_waitcnt lgkmcnt(0)")
            issue(c + nslots)
    A("s_waitcnt lgkmcnt(0)")


def tr_addr(A, dst, t0, t1, row_g, row_r, rowbytes, colbytes, s_base):
    A(f"v_lshrrev_b32 {v(t0)}, 4, {v(V_LANE)}")
    A(f"v_mul_u32_u24 {v(t0)}, {row_g * rowbytes}, {v(t0)}")
    A(f"v_bfe_u32 {v(t1)}, {v(V_LANE)}, 2, 2")
    A(f"v_mul_u32_u24 {v(t1)}, {row_r * rowbytes}, {v(t1)}")
    A(f"v_add_u32 {v(t0)}, {v(t0)}, {v(t1)}")
    A(f"v_and_b32 {v(t1)}, 3, {v(V_LANE)}")
    A(f"v_mul_u32_u24 {v(t1)}, {colbytes}, {v(t1)}")
    A(f"v_add3_u32 {v(dst)}, {v(t0)}, {v(t1)}, {s(s_base)}")


def role_ln1(A, sync):
    X, D, ONES, ACC = 16, 96, 4, 8
    su = S_T
    srd(A, S_B, KA_X, SZ_X)
    A(f"s_lshl_b32 {s(su)}, {s(S_IDX)}, 2")
    A(f"s_add_u32 {s(su)}, {s(su)}, {s(S_W)}")
    A(f"s_mul_i32 {s(su + 1)}, {s(su)}, {16 * 1152}")
    A(f"v_and_b32 v2, 15, {v(V_LANE)}")
    A(f"v_mul_u32_u24 v2, 1152, v2")
    A(f"v_and_b32 v3, 48, {v(V_LANE)}")
    A(f"v_add_u32 v2, v2, v3")
    A("s_waitcnt lgkmcnt(0)")
    for c in range(18):
        A(f"buffer_load_dwordx4 {v(X + 4 * c, 4)}, v2, {SB}, {s(su + 1)} offen offset:{64 * c}")
    for i in range(4):
        A(f"v_mov_b32 {v(ONES + i)}, 0x3f803f80")
    for c in range(18):
        A(f"{MF} {v(ACC, 4)}, {v(ONES, 4)}, {v(X + 4 * c, 4)}, {v(ACC, 4) if c else 0}")
    MEAN, MB = 12, 13
    A(f"v_mul_f32 {v(MEAN)}, {1.0 / 576:.9e}, {v(ACC)}".replace(f"{1.0 / 576:.9e}", f"{f32(1.0 / 576):#x}"))
    A(f"v_mov_b32 {v(MB)}, {v(MEAN)}")
    bf16_round(A, MB)
    for i in range(4):
        A(f"v_mov_b32 {v(ONES + i)}, 0")
    for i in range(72):
        lo, hi = D + 2 * i, D + 2 * i + 1
        A(f"v_lshlrev_b32 {v(lo)}, 16, {v(X + i)}")
        A(f"v_and_b32 {v(hi)}, 0xffff0000, {v(X + i)}")
        A(f"v_sub_f32 v2, {v(lo)}, {v(MEAN)}")
        A(f"v_sub_f32 v3, {v(hi)}, {v(MEAN)}")
        A(f"v_sub_f32 {v(lo)}, {v(lo)}, {v(MB)}")
        A(f"v_sub_f32 {v(hi)}, {v(hi)}, {v(MB)}")
        A(f"v_fmac_f32 {v(ONES + (2 * i) % 4)}, v2, v2")
        A(f"v_fmac_f32 {v(ONES + (2 * i + 1) % 4)}, v3, v3")
    A(f"v_add_f32 {v(ONES)}, {v(ONES)}, {v(ONES + 1)}")
    A(f"v_add_f32 {v(ONES + 2)}, {v(ONES + 2)}, {v(ONES + 3)}")
    A(f"v_add_f32 {v(ONES)}, {v(ONES)}, {v(ONES + 2)}")
    xg_reduce(A, "v_add_f32", ONES, 2)
    A(f"v_mul_f32 {v(ONES)}, {f32(1.0 / 576):#x}, {v(ONES)}")
    bf16_round(A, ONES)
    A(f"v_add_f32 {v(ONES)}, {f32(1e-5):#x}, {v(ONES)}")
    bf16_round(A, ONES)
    A(f"v_sqrt_f32 {v(ONES)}, {v(ONES)}")
    bf16_round(A, ONES)
    A(f"v_rcp_f32 {v(ONES)}, {v(ONES)}")
    A(f"s_mul_i32 {s(su + 1)}, {s(su)}, {18 * 1024}")
    A(f"s_add_u32 {s(su + 1)}, {s(su + 1)}, {XH:#x}")
    for c in range(18):
        for j in range(4):
            i = 4 * c + j
            lo, hi = D + 2 * i, D + 2 * i + 1
            A(f"v_cvt_pk_bf16_f32 v2, {v(lo)}, {v(hi)}")
            A(f"v_lshlrev_b32 {v(lo)}, 16, v2")
            A(f"v_and_b32 {v(hi)}, 0xffff0000, v2")
            A(f"v_mul_f32 {v(lo)}, {v(lo)}, {v(ONES)}")
            A(f"v_mul_f32 {v(hi)}, {v(hi)}, {v(ONES)}")
            A(f"v_cvt_pk_bf16_f32 {v(X + i)}, {v(lo)}, {v(hi)}")
        if c and c % 4 == 0:
            A(f"s_add_u32 {s(su + 1)}, {s(su + 1)}, 4096")
        A(f"buffer_store_dwordx4 {v(X + 4 * c, 4)}, {v(V_L16)}, {WS}, {s(su + 1)} offen offset:{1024 * (c % 4)} sc1")
    if sync:
        wait_registered(A)
        A(f"s_lshl_b32 {s(su)}, {s(S_IDX)}, 2")
        A(f"s_add_u32 {s(su)}, {s(su)}, {s(S_W)}")
        lane0_off(A, 2, "0")
        A(f"v_mov_b32 v3, 1")
        A(f"s_lshl_b32 {s(su + 1)}, {s(su)}, 2")
        A(f"s_add_u32 {s(su + 1)}, {s(su + 1)}, {F_LN:#x}")
        A("s_waitcnt vmcnt(0)")
        A(f"buffer_store_dword v3, v2, {WS}, {s(su + 1)} offen sc1")


def f32(x):
    import struct
    return struct.unpack("<I", struct.pack("<f", x))[0]


class Gemm:
    S_IT, S_NX, S_LD, S_FLG, S_FPREV, S_POLL, S_OUT, S_SPIN = 36, 37, 38, 42, 43, 44, 45, 49
    V_RD, V_WR, V_LDOFF, V_FLAG0, V_ONE, V_POLLOFF, V_POLL = 2, 3, 4, 5, 6, 7, 8

    def __init__(self, A, name, sync, step, end, nload, stage_reg, tail=None):
        self.A, self.name, self.sync = A, name, sync
        self.total = end
        self.tail = tail if sync and tail is not None and tail < end else None
        self.step, self.end, self.nload, self.stage = step, self.tail or end, nload, stage_reg

    def arm(self):
        A = self.A
        if self.tail is None:
            return
        keep = S_T + 8
        A(f"s_mov_b32 {s(keep)}, {s(self.S_IT)}")
        A(f"s_add_u32 {s(self.S_IT)}, {s(self.S_IT)}, {self.tail}")
        for k in range(4):
            A(f"v_mov_b32 {v(self.ACC + k)}, -1")
        l = A.uid("L_arm")
        A.label(l)
        self.set_out_base()
        for x in self.epilogue():
            if x.startswith("buffer_store"):
                n = int(x.split()[0][-1])
                A(f"buffer_store_dwordx{n} {v(self.ACC, n)}," + x.split(",", 1)[1])
        A(f"s_add_u32 {s(self.S_IT)}, {s(self.S_IT)}, {self.step}")
        A(f"s_cmp_lt_u32 {s(self.S_IT)}, {self.total}")
        A(f"s_cbranch_scc1 {l}")
        A(f"s_mov_b32 {s(self.S_IT)}, {s(keep)}")

    def tail_first(self):
        return []

    def tail_loads(self):
        return self.loads()

    def emit_tail(self):
        A, n = self.A, self.name
        pf = bool(self.nload)

        def first(s_it):
            self.set_load_base(s_it)
            self.ld_bases()
            for x in self.tail_first():
                x() if callable(x) else A(x)
            for x in self.tail_loads() if pf else []:
                A(x)
        A(f"s_mov_b32 {s(self.S_IT)}, {s(self.S_NX)}")
        tstamp(A, 5)
        if pf:
            first(self.S_IT)
        A.label(f"L_{n}_tail")
        last = (self.S_IT, self.total - self.step)
        tstamp(A, 6, when=last)
        prev = (self.S_IT, self.total - 2 * self.step, self.total - self.step)
        tstamp(A, 10, when=prev)
        if not pf:
            first(self.S_IT)
        tl = self.tail_loads()
        spin_loads(A, tl, self.V_POLL, self.S_SPIN, pf, [x for x in tl if "x4" in x][0] if n in PRB else None)
        tstamp(A, 7, when=last)
        tstamp(A, 11, when=prev)
        for x in self.writes():
            A(x)
        self.finish_stage()
        for x in self.post_loads():
            x() if callable(x) else A(x)
        self.set_out_base()
        A(f"s_add_u32 {s(self.S_IT)}, {s(self.S_IT)}, {self.step}")
        if pf:
            A(f"s_cmp_ge_u32 {s(self.S_IT)}, {self.total}")
            A(f"s_cbranch_scc1 L_{n}_tlast")
            first(self.S_IT)
            A.label(f"L_{n}_tlast")
        main, fill = self.compute()
        weave(A, main, fill)
        for x in self.epilogue():
            A(x)
        A(f"s_cmp_lt_u32 {s(self.S_IT)}, {self.total}")
        A(f"s_cbranch_scc1 L_{n}_tail")

    def set_load_base(self, s_it):
        raise NotImplementedError

    def set_poll_base(self, s_it):
        raise NotImplementedError

    def set_out_base(self):
        raise NotImplementedError

    def extra_loads(self):
        return []

    def loads(self):
        out = []
        for i in range(self.nload):
            out.append(f"buffer_load_dwordx4 {v(self.stage + 4 * i, 4)}, {v(self.V_LDOFF)}, {WS}, "
                       f"{s(self.S_LD + i // 4)} offen offset:{1024 * (i % 4)} sc1")
        return self.extra_loads() + out

    def writes(self):
        return [f"ds_write_b128 {v(self.V_WR)}, {v(self.stage + 4 * i, 4)} offset:{1024 * i}"
                for i in range(self.nload)]

    def post_loads(self):
        return []

    def ld_bases(self):
        A = self.A
        for k in range(1, (self.nload + 3) // 4):
            A(f"s_add_u32 {s(self.S_LD + k)}, {s(self.S_LD)}, {4096 * k}")

    def issue_poll(self):
        if not self.sync:
            return []
        A = self.A

        def f():
            A(f"s_add_u32 {s(S_T)}, {s(self.S_NX)}, {self.step}")
            A(f"s_min_u32 {s(S_T)}, {s(S_T)}, {self.end - 1}")
            self.set_poll_base(S_T)
            A(f"buffer_load_dword {v(self.V_POLL)}, {v(self.V_POLLOFF)}, {WS}, {s(self.S_POLL)} offen sc1")
        return [f]

    def flag_store(self, sreg):
        return f"buffer_store_dword {v(self.V_ONE)}, {v(self.V_FLAG0)}, {WS}, {s(sreg)} offen sc1"

    def finish_stage(self):
        A = self.A
        A("s_waitcnt lgkmcnt(0)")
        A("s_barrier")
        A(f"v_xor_b32 {v(self.V_RD)}, 0x10000, {v(self.V_RD)}")
        A(f"v_xor_b32 {v(self.V_WR)}, 0x10000, {v(self.V_WR)}")

    def blocking_fetch(self):
        A = self.A
        if self.sync:
            self.set_poll_base(self.S_NX)
            poll_block(A, self.V_POLL, self.V_POLLOFF, s(self.S_POLL), True, self.S_SPIN)
        self.set_load_base(self.S_NX)
        self.ld_bases()
        for x in self.loads():
            A(x)
        for f in self.issue_poll():
            f()
        for x in self.writes():
            A(x)

    def emit(self, flag_at, write_at):
        A, n = self.A, self.name
        A(f"v_mov_b32 {v(self.V_ONE)}, 1")
        lane0_off(A, self.V_FLAG0, "0")
        A(f"s_mov_b32 {s(self.S_FPREV)}, {OOR:#x}")
        self.arm()
        A(f"s_mov_b32 {s(self.S_NX)}, {s(self.S_IT)}")
        self.blocking_fetch()
        self.finish_stage()
        if n in ("qk", "vv"):
            tstamp(A, 4, 200)
        A.label(f"L_{n}_top")
        for x in self.post_loads():
            x() if callable(x) else A(x)
        self.set_out_base()
        A(f"s_add_u32 {s(self.S_NX)}, {s(self.S_IT)}, {self.step}")
        A(f"s_cmp_ge_u32 {s(self.S_NX)}, {self.end}")
        A(f"s_cbranch_scc1 L_{n}_nopf")
        if self.sync:
            A(f"v_cmp_eq_u32 vcc, 0, {v(self.V_POLL)}")
            A(f"s_cbranch_vccnz L_{n}_nopf")
        self.set_load_base(self.S_NX)
        self.ld_bases()
        lds = self.loads()
        for x in lds:
            A(x)
        main, fill = self.compute()
        if self.sync:
            fill.setdefault(flag_at, []).extend([f"s_waitcnt vmcnt({len(lds)})", self.flag_store(self.S_FPREV)])
            fill[flag_at].extend(self.issue_poll())
        spread(fill, self.writes(), write_at, 2)
        weave(A, main, fill)
        for x in self.epilogue():
            A(x)
        A(f"s_mov_b32 {s(self.S_FPREV)}, {s(self.S_FLG)}")
        A(f"s_mov_b32 {s(self.S_IT)}, {s(self.S_NX)}")
        self.finish_stage()
        A(f"s_branch L_{n}_top")
        A.label(f"L_{n}_nopf")
        main, fill = self.compute()
        if self.sync:
            fill.setdefault(flag_at, []).extend(["s_waitcnt vmcnt(0)", self.flag_store(self.S_FPREV)])
        weave(A, main, fill)
        for x in self.epilogue():
            A(x)
        if self.sync:
            A("s_waitcnt vmcnt(0)")
            A(self.flag_store(self.S_FLG))
        A(f"s_mov_b32 {s(self.S_FPREV)}, {OOR:#x}")
        A(f"s_cmp_ge_u32 {s(self.S_NX)}, {self.end}")
        A(f"s_cbranch_scc1 L_{n}_done")
        self.blocking_fetch()
        A(f"s_mov_b32 {s(self.S_IT)}, {s(self.S_NX)}")
        self.finish_stage()
        A(f"s_branch L_{n}_top")
        A.label(f"L_{n}_done")
        if self.tail is not None:
            self.emit_tail()


def spin_loads(A, loads, vt, stmp, issued=False, probe=None):
    l, c, d = A.uid("L_spin"), A.uid("L_spinc"), A.uid("L_spind")

    def count():
        A(f"s_add_u32 {s(stmp)}, {s(stmp)}, 1")
        A(f"s_cmp_ge_u32 {s(stmp)}, {SPIN_MAX}")
        A("s_cbranch_scc1 L_fail")

    def check():
        g = [int(re.search(r"v\[(\d+):", x).group(1)) for x in loads if x.startswith("buffer_load")]
        if len(g) % 2 == 0:
            A(f"v_max_u32 {v(vt)}, {v(g[0])}, {v(g[1])}")
            g = g[2:]
        else:
            A(f"v_max3_u32 {v(vt)}, {v(g[0])}, {v(g[1])}, {v(g[2])}")
            g = g[3:]
        for i in range(0, len(g), 2):
            A(f"v_max3_u32 {v(vt)}, {v(vt)}, {v(g[i])}, {v(g[i + 1])}")
        A(f"v_cmp_eq_u32 vcc, -1, {v(vt)}")
    A(f"s_mov_b32 {s(stmp)}, 0")
    if issued:
        check()
        A(f"s_cbranch_vccz {c}")
    A.label(l)
    if probe:
        A("s_mov_b64 exec, 1")
        A.label(d)
        A(f"buffer_load_dword {v(vt)}," + probe.split(",", 1)[1])
        count()
        A(f"v_cmp_eq_u32 vcc, -1, {v(vt)}")
        A(f"s_cbranch_vccnz {d}")
        A("s_mov_b64 exec, -1")
    for x in loads:
        A(x)
    count()
    check()
    A(f"s_cbranch_vccnz {l}")
    A.label(c)


PRB = os.environ.get("PRB", "bc,r1,dd,ee,r2").split(",")


def unmark(x):
    return f"v_min_u32 {v(x)}, -2, {v(x)}"


class QKV(Gemm):
    ACC, BF, STG, OUT, V_OUT = 12, 44, 76, 112, 9
    S_MAT, S_HP, S_OB, S_ARM = 50, 51, 52, 54
    NEG = 128

    def __init__(self, A, name, sync, isv):
        super().__init__(A, name, sync, 4, int(os.environ.get('QEND', 64)), 9, self.STG)
        self.isv = isv

    def set_load_base(self, s_it):
        self.A(f"s_mul_i32 {s(self.S_LD)}, {s(s_it)}, 36864")
        self.A(f"s_add_u32 {s(self.S_LD)}, {s(self.S_LD)}, {XH:#x}")

    def set_poll_base(self, s_it):
        self.A(f"s_lshl_b32 {s(self.S_POLL)}, {s(s_it)}, 3")

    def set_out_base(self):
        A = self.A
        A(f"s_lshl_b32 {s(self.S_OUT)}, {s(self.S_IT)}, 18")
        A(f"s_add_u32 {s(self.S_OUT)}, {s(self.S_OUT)}, {s(self.S_OB)}")
        A(f"s_add_u32 {s(self.S_OUT + 1)}, {s(self.S_OUT)}, 4096")
        A(f"s_lshl_b32 {s(self.S_FLG)}, {s(self.S_IT)}, 13")
        A(f"s_add_u32 {s(self.S_FLG)}, {s(self.S_FLG)}, {s(self.S_OB + 1)}")
        if self.sync and TAIL < 64:
            A(f"s_lshl_b32 {s(self.S_ARM)}, {s(self.S_IT)}, 17")
            A(f"s_add_u32 {s(self.S_ARM)}, {s(self.S_ARM)}, {s(self.S_ARM + 1)}")
            A(f"s_cmp_ge_u32 {s(self.S_IT)}, {TAIL}")
            A(f"s_cselect_b32 {s(self.S_ARM)}, {s(self.S_ARM)}, {OOR:#x}")

    def compute(self):
        main, fill = [], {}
        bf = lambda c, u: self.BF + ((c % 4) * 2 + u) * 4
        rd = lambda c, u: f"ds_read_b128 {v(bf(c, u), 4)}, {v(self.V_RD)} offset:{(u * 18 + c) * 1024}"
        pre = [rd(c, u) for c in range(3) for u in range(2)]
        for x in pre:
            self.A(x)
        for c in range(18):
            for u in range(2):
                for t in range(4):
                    acc = v(self.ACC + (u * 4 + t) * 4, 4)
                    w = r(WREG + (c * 4 + t) * 4, 4)
                    b = v(bf(c, u), 4)
                    ab = f"{b}, {w}" if self.isv else f"{w}, {b}"
                    main.append(f"{MF} {acc}, {ab}, {acc if c else 0}")
            if c + 3 < 18:
                fill.setdefault(8 * c, []).append(rd(c + 3, 0))
                fill.setdefault(8 * c + 1, []).append(rd(c + 3, 1))
        return main, fill

    def epilogue(self):
        o = []
        acc = lambda u, t, k: v(self.ACC + (u * 4 + t) * 4 + k)
        if self.isv:
            for t in range(4):
                d = self.OUT + 4 * t
                o += [f"v_cvt_pk_bf16_f32 {v(d)}, {acc(0, t, 0)}, {acc(0, t, 1)}",
                      f"v_cvt_pk_bf16_f32 {v(d + 1)}, {acc(1, t, 0)}, {acc(1, t, 1)}",
                      f"v_cvt_pk_bf16_f32 {v(d + 2)}, {acc(0, t, 2)}, {acc(0, t, 3)}",
                      f"v_cvt_pk_bf16_f32 {v(d + 3)}, {acc(1, t, 2)}, {acc(1, t, 3)}",
                      f"buffer_store_dwordx4 {v(d, 4)}, {v(self.V_OUT)}, {WS}, {s(self.S_OUT)} offen offset:{1024 * t} sc1"]
        else:
            for u in range(2):
                for cc in range(2):
                    d = self.OUT + 4 * (u * 2 + cc)
                    o += [f"v_cvt_pk_bf16_f32 {v(d)}, {acc(u, 2 * cc, 0)}, {acc(u, 2 * cc, 1)}",
                          f"v_cvt_pk_bf16_f32 {v(d + 1)}, {acc(u, 2 * cc, 2)}, {acc(u, 2 * cc, 3)}",
                          f"v_cvt_pk_bf16_f32 {v(d + 2)}, {acc(u, 2 * cc + 1, 0)}, {acc(u, 2 * cc + 1, 1)}",
                          f"v_cvt_pk_bf16_f32 {v(d + 3)}, {acc(u, 2 * cc + 1, 2)}, {acc(u, 2 * cc + 1, 3)}",
                          f"buffer_store_dwordx4 {v(d, 4)}, {v(self.V_OUT)}, {WS}, {s(self.S_OUT + u)} offen offset:{1024 * cc} sc1"]
        if self.sync and TAIL < 64:
            o += [f"buffer_store_dwordx4 {v(self.NEG, 4)}, {v(V_L16)}, {WS}, {s(self.S_ARM)} offen offset:{1024 * k} sc1" for k in range(2)]
        return o

    def body(self):
        A = self.A
        sb, st = S_T, S_T + 1
        A(f"s_lshl_b32 {s(st)}, {s(self.S_HP)}, 9")
        A(f"s_lshl_b32 {s(st + 1)}, {s(S_W)}, 7")
        A(f"s_add_u32 {s(st)}, {s(st)}, {s(st + 1)}")
        A(f"v_lshrrev_b32 v10, 3, {v(V_LANE)}")
        A(f"v_lshlrev_b32 v10, 13, v10")
        A(f"v_and_b32 v11, 7, {v(V_LANE)}")
        A(f"v_lshlrev_b32 v11, 4, v11")
        A(f"v_add3_u32 v10, v10, v11, {s(st)}")
        A(f"s_mul_i32 {s(sb)}, {s(S_W)}, 36864")
        tr_addr(A, 11, 12, 13, 8, 1, 128, 8 if self.isv else 16, sb)
        dmas = lambda c: [(SA, 10, (32 * c + 8 * i) * 8192, 1024 * i) for i in range(4)]

        def reads(c):
            o = []
            for t in range(4):
                col = 32 * t if self.isv else 64 * (t // 2) + 8 * (t % 2)
                for rd in range(2):
                    o.append((WREG + (c * 4 + t) * 4 + 2 * rd, 11, 512 * rd + col))
            return o
        load_weights(A, 18, dmas, reads, 4096, 9, sb, st, os.environ.get("QPOL", "nt"))
        if self.sync:
            tstamp(A, 3)
            wait_registered(A)
        A("s_barrier")
        A(f"v_or_b32 {v(self.V_RD)}, 0x10000, {v(V_L16)}")
        A(f"s_mul_i32 {s(st)}, {s(S_W)}, 9216")
        A(f"v_add_u32 {v(self.V_WR)}, {s(st)}, {v(V_L16)}")
        A(f"v_mov_b32 {v(self.V_LDOFF)}, {v(self.V_WR)}")
        A(f"v_and_b32 {v(self.V_POLLOFF)}, 1, {v(V_LANE)}")
        A(f"v_lshlrev_b32 {v(self.V_POLLOFF)}, 2, {v(self.V_POLLOFF)}")
        A(f"s_lshr_b32 {s(st)}, {s(S_W)}, 1")
        A(f"s_lshl_b32 {s(st + 1)}, {s(self.S_HP)}, 1")
        A(f"s_add_u32 {s(st)}, {s(st)}, {s(st + 1)}")
        A(f"s_lshl_b32 {s(st)}, {s(st)}, 13")
        A(f"s_and_b32 {s(st + 1)}, {s(S_W)}, 1")
        A(f"s_lshl_b32 {s(st + 1)}, {s(st + 1)}, {12 if self.isv else 11}")
        A(f"s_add_u32 {s(st)}, {s(st)}, {s(st + 1)}")
        A(f"v_add_u32 {v(self.V_OUT)}, {s(st)}, {v(V_L16)}")
        A(f"s_add_u32 {s(self.S_OB)}, {s(self.S_MAT)}, 1")
        A(f"s_lshl_b32 {s(self.S_OB)}, {s(self.S_OB)}, 24")
        A(f"s_lshl_b32 {s(st)}, {s(self.S_HP)}, 9")
        A(f"s_lshl_b32 {s(st + 1)}, {s(self.S_MAT)}, 6")
        A(f"s_add_u32 {s(st)}, {s(st)}, {s(st + 1)}")
        A(f"s_lshl_b32 {s(st + 1)}, {s(S_W)}, 4")
        A(f"s_add_u32 {s(st)}, {s(st)}, {s(st + 1)}")
        A(f"s_add_u32 {s(self.S_OB + 1)}, {s(st)}, {F_A:#x}")
        if self.sync and TAIL < 64:
            A(f"s_lshl_b32 {s(st)}, {s(self.S_HP)}, 2")
            A(f"s_add_u32 {s(st)}, {s(st)}, {s(S_W)}")
            A(f"s_lshl_b32 {s(st)}, {s(st)}, 11")
            A(f"s_add_u32 {s(self.S_ARM + 1)}, {s(st)}, {VM if self.isv else KM:#x}")
            if not self.isv:
                A(f"s_cmp_eq_u32 {s(self.S_MAT)}, 1")
                A(f"s_cselect_b32 {s(self.S_ARM + 1)}, {s(self.S_ARM + 1)}, {OOR:#x}")
            for k in range(4):
                A(f"v_mov_b32 {v(self.NEG + k)}, -1")
        self.emit(flag_at=40, write_at=100)


def role_qkv(A, sync):
    A(f"s_and_b32 {s(Gemm.S_IT)}, {s(S_IDX)}, 3")
    A(f"s_bfe_u32 {s(QKV.S_HP)}, {s(S_IDX)}, {2 | (4 << 16):#x}")
    A(f"s_lshr_b32 {s(QKV.S_MAT)}, {s(S_IDX)}, 6")
    A(f"s_cmp_eq_u32 {s(QKV.S_MAT)}, 2")
    A("s_cbranch_scc1 L_qkv_v")
    srd(A, S_A, KA_WQ, SZ_W)
    A(f"s_load_dwordx2 {s(S_T, 2)}, s[0:1], {KA_WK}")
    A("s_waitcnt lgkmcnt(0)")
    A(f"s_cmp_eq_u32 {s(QKV.S_MAT)}, 1")
    A(f"s_cselect_b32 {s(S_A)}, {s(S_T)}, {s(S_A)}")
    A(f"s_cselect_b32 {s(S_A + 1)}, {s(S_T + 1)}, {s(S_A + 1)}")
    QKV(A, "qk", sync, False).body()
    A("s_branch L_qkv_end")
    A.label("L_qkv_v")
    srd(A, S_A, KA_WV, SZ_W)
    A("s_waitcnt lgkmcnt(0)")
    QKV(A, "vv", sync, True).body()
    A.label("L_qkv_end")


def gemm_addr(A, g, per_wave):
    st = S_T + 1
    A(f"v_or_b32 {v(g.V_RD)}, 0x10000, {v(V_L16)}")
    A(f"s_mul_i32 {s(st)}, {s(S_W)}, {per_wave * 1024}")
    A(f"v_add_u32 {v(g.V_WR)}, {s(st)}, {v(V_L16)}")
    A(f"v_mov_b32 {v(g.V_LDOFF)}, {v(g.V_WR)}")


def cvt2(d, x):
    return f"v_cvt_pk_bf16_f32 {v(d)}, {v(x)}, {v(x + 1)}"


NWG_BC = 64
BC_REP = 4


class BC(Gemm):
    V_OUT, V_OUT2, V_KM, BIAS = 9, 10, 11, 12
    V_L8 = 4
    Q, K, KMR, V, VMR, ACC, OF = 20, 36, 68, 84, 116, 132, 204
    S_HP, S_HB, S_Q, S_K, S_V, S_KM, S_CS = 50, 51, 53, 54, 56, 58, 60

    def __init__(self, A, sync):
        super().__init__(A, "bc", sync, BC_REP, 64, 0, 0, TAIL)

    def tail_first(self):
        A = self.A

        def f():
            self.set_poll_base(self.S_IT)
            A(f"v_min_u32 {v(self.V_POLLOFF)}, {11 * 16}, {v(V_L16)}")
            poll_block(A, self.V_POLL, self.V_POLLOFF, s(self.S_POLL), True, self.S_SPIN)
        return [f] + [x for x in self.loads() if x not in self.tail_loads()]

    def tail_loads(self):
        return [x for x in self.loads() if f", {v(self.V_KM)}," in x or f", {v(self.V_L8)}," in x]

    def set_load_base(self, s_it):
        A = self.A
        A(f"s_lshl_b32 {s(self.S_KM)}, {s(s_it)}, 5")
        A(f"s_add_u32 {s(self.S_KM)}, {s(self.S_KM)}, {s(self.S_HB)}")
        A(f"s_lshl_b32 {s(self.S_V)}, {s(self.S_KM)}, 13")
        A(f"s_lshl_b32 {s(self.S_KM)}, {s(self.S_KM)}, 12")
        A(f"s_add_u32 {s(self.S_K)}, {s(self.S_V)}, {KB:#x}")
        A(f"s_add_u32 {s(self.S_K + 1)}, {s(self.S_V)}, {KB + 4096:#x}")
        A(f"s_add_u32 {s(self.S_Q)}, {s(self.S_V)}, {s(self.S_HB + 1)}")
        A(f"s_add_u32 {s(self.S_V + 1)}, {s(self.S_V)}, {VB + 4096:#x}")
        A(f"s_add_u32 {s(self.S_V)}, {s(self.S_V)}, {VB:#x}")
        A(f"s_add_u32 {s(self.S_KM + 1)}, {s(self.S_KM)}, {VM:#x}")
        A(f"s_add_u32 {s(self.S_KM)}, {s(self.S_KM)}, {KM:#x}")

    def ld_bases(self):
        pass

    def loads(self):
        ld = lambda d, vo, so, i: f"buffer_load_dwordx4 {v(d, 4)}, {v(vo)}, {WS}, {s(so)} offen offset:{1024 * i} sc1"
        o = []
        for c in range(4):
            o += [ld(self.Q + 4 * c, V_L16, self.S_Q, c), ld(self.K + 4 * c, V_L16, self.S_K, c),
                  ld(self.K + 16 + 4 * c, V_L16, self.S_K + 1, c), ld(self.KMR + 4 * c, self.V_KM, self.S_KM, c)]
        for t in range(8):
            o.append(ld(self.V + 4 * t, V_L16, self.S_V + t // 4, t % 4))
            if t % 2 == 0:
                o.append(f"buffer_load_dwordx2 {v(self.VMR + t, 2)}, {v(self.V_L8)}, {WS}, {s(self.S_KM + 1)} offen offset:{512 * t} sc1")
        return o

    def writes(self):
        return []

    def finish_stage(self):
        self.A(f"v_xor_b32 {v(self.V_RD)}, 0x10000, {v(self.V_RD)}")
        self.A(f"v_xor_b32 {v(self.V_WR)}, 0x10000, {v(self.V_WR)}")

    def set_poll_base(self, s_it):
        A = self.A
        A(f"s_lshl_b32 {s(self.S_POLL)}, {s(s_it)}, 13")
        A(f"s_lshl_b32 {s(S_T + 1)}, {s(self.S_HP)}, 9")
        A(f"s_add_u32 {s(self.S_POLL)}, {s(self.S_POLL)}, {s(S_T + 1)}")
        A(f"s_add_u32 {s(self.S_POLL)}, {s(self.S_POLL)}, {F_A:#x}")

    def set_out_base(self):
        A = self.A
        A(f"s_lshl_b32 {s(self.S_OUT)}, {s(self.S_IT)}, 5")
        A(f"s_add_u32 {s(self.S_OUT)}, {s(self.S_OUT)}, {s(self.S_HP)}")
        A(f"s_mul_i32 {s(self.S_OUT)}, {s(self.S_OUT)}, 18432")
        A(f"s_add_u32 {s(self.S_OUT)}, {s(self.S_OUT)}, {P1:#x}")
        A(f"s_add_u32 {s(self.S_OUT + 1)}, {s(self.S_OUT)}, {16 * 18432}")
        A(f"s_lshl_b32 {s(self.S_FLG)}, {s(self.S_IT)}, 4")
        A(f"s_add_u32 {s(self.S_FLG)}, {s(self.S_FLG)}, {s(self.S_HP)}")
        A(f"s_lshl_b32 {s(self.S_FLG)}, {s(self.S_FLG)}, 2")
        A(f"s_add_u32 {s(self.S_FLG)}, {s(self.S_FLG)}, {s(S_W)}")
        A(f"s_lshl_b32 {s(self.S_FLG)}, {s(self.S_FLG)}, 2")
        A(f"s_add_u32 {s(self.S_FLG)}, {s(self.S_FLG)}, {F_BC:#x}")

    def post_loads(self):
        a = self.ACC
        S, OT, L, PT, PM, ONE, T = a, a + 12, a + 44, a + 48, a + 52, a + 60, a + 68
        M16 = "v_mfma_f32_16x16x16_bf16"
        con = [f"v_mov_b32 {v(ONE + i)}, 0x3f803f80" for i in range(4)] + [f"v_mov_b32 {v(x)}, 0" for x in (PM + 1, PM + 2)]
        o = []
        for c in range(4):
            q = v(self.Q + 4 * c, 4)
            o += [f"{MF} {v(S, 4)}, {v(self.K + 4 * c, 4)}, {q}, {v(S, 4) if c else v(self.BIAS, 4)}", con.pop(),
                  f"{MF} {v(S + 4, 4)}, {v(self.K + 16 + 4 * c, 4)}, {q}, {v(S + 4, 4) if c else v(self.BIAS + 4, 4)}",
                  f"{MF} {v(S + 8, 4)}, {v(self.KMR + 4 * c, 4)}, {q}, {v(S + 8, 4) if c else 0}"]
        o += con
        o += [f"v_max3_f32 {v(T)}, {v(S)}, {v(S + 1)}, {v(S + 2)}",
              f"v_max3_f32 {v(T + 1)}, {v(S + 3)}, {v(S + 4)}, {v(S + 5)}",
              f"v_max3_f32 {v(T)}, {v(T)}, {v(S + 6)}, {v(S + 7)}",
              f"v_max3_f32 {v(T + 1)}, {v(T + 1)}, {v(S + 8)}, {v(S + 9)}",
              f"v_max_f32 {v(T)}, {v(T)}, {v(T + 1)}",
              lambda: xg_reduce(self.A, "v_max_f32", T, T + 1),
              f"v_mul_f32 {v(T)}, {s(self.S_CS)}, {v(T)}"]
        for k in range(0, 10, 2):
            o.append(f"v_pk_fma_f32 {v(S + k, 2)}, {v(S + k, 2)}, {s(self.S_CS, 2)}, {v(T, 2)} "
                     "op_sel_hi:[1,1,0] neg_lo:[0,0,1] neg_hi:[0,0,1]")
        o += [f"v_exp_f32 {v(S + k)}, {v(S + k)}" for k in range(10)]
        o += [cvt2(PT, S), cvt2(PT + 1, S + 4), cvt2(PT + 2, S + 2), cvt2(PM, S + 8), cvt2(PT + 3, S + 6), cvt2(PM + 3, S + 8)]
        o += [f"{MF} {v(L, 4)}, {v(ONE, 4)}, {v(PT, 4)}, 0"]
        o += [f"{MF} {v(OT + 4 * t, 4)}, {v(self.V + 4 * t, 4)}, {v(PT, 4)}, 0" for t in range(3)]
        o += [f"{M16} {v(L, 4)}, {v(ONE, 2)}, {v(PM, 2)}, {v(L, 4)}"]
        o += [f"{MF} {v(OT + 4 * t, 4)}, {v(self.V + 4 * t, 4)}, {v(PT, 4)}, 0" for t in range(3, 8)]
        o += [f"v_rcp_f32 {v(T)}, {v(L)}"]
        fin = []
        for t in range(8):
            d = OT + 4 * t
            o.append(f"{M16} {v(d, 4)}, {v(self.VMR + 2 * (t // 2), 2)}, {v(PM + 2 * (t % 2), 2)}, {v(d, 4)}")
            fin += [f"v_pk_mul_f32 {v(d, 2)}, {v(d, 2)}, {v(T, 2)} op_sel_hi:[1,0]",
                    f"v_pk_mul_f32 {v(d + 2, 2)}, {v(d + 2, 2)}, {v(T, 2)} op_sel_hi:[1,0]",
                    cvt2(OT + 2 * t, d), cvt2(OT + 2 * t + 1, d + 2)]
            if t % 2:
                fin.append(f"ds_write_b128 {v(self.V_WR)}, {v(OT + 2 * t - 2, 4)} offset:{1024 * (t // 2)}")
        return o + fin + ["s_waitcnt lgkmcnt(0)", "s_barrier"]

    def compute(self):
        main, fill = [], {}
        of = lambda i: self.OF + 4 * (i % 5)
        rd = lambda i: f"ds_read_b128 {v(of(i), 4)}, {v(self.V_RD)} offset:{((i % 2) * 8 + i // 2) * 1024}"
        for i in range(4):
            self.A(rd(i))
        for i in range(16):
            kc, u = i // 2, i % 2
            for t in range(9):
                acc = v(self.ACC + (u * 9 + t) * 4, 4)
                main.append(f"{MF} {acc}, {r(WREG + (kc * 9 + t) * 4, 4)}, {v(of(i), 4)}, {acc if kc else 0}")
            if i + 4 < 16:
                fill.setdefault(9 * i, []).append(rd(i + 4))
        return main, fill

    def epilogue(self):
        o = []
        for u in range(2):
            for p in range(4):
                d = self.ACC + (u * 9 + 2 * p) * 4
                o += [cvt2(d, d), cvt2(d + 1, d + 2), unmark(d), cvt2(d + 2, d + 4), cvt2(d + 3, d + 6)]
                o.append(f"buffer_store_dwordx4 {v(d, 4)}, {v(self.V_OUT)}, {WS}, {s(self.S_OUT + u)} offen offset:{1024 * p} sc1")
            d = self.ACC + (u * 9 + 8) * 4
            o += [cvt2(d, d), cvt2(d + 1, d + 2), unmark(d),
                  f"buffer_store_dwordx2 {v(d, 2)}, {v(self.V_OUT2)}, {WS}, {s(self.S_OUT + u)} offen sc1"]
        return o

    def body(self):
        A = self.A
        sb, st = S_T, S_T + 1
        L = v(V_LANE)
        pb, po = S_T + 3, S_T + 4
        A(f"s_mul_i32 {s(pb)}, {s(S_W)}, 9")
        A(f"s_add_u32 {s(pb)}, {s(pb)}, 1")
        A(f"s_lshr_b32 {s(pb)}, {s(pb)}, 1")
        A(f"s_lshr_b32 {s(po)}, {s(S_W)}, 1")
        A(f"s_mul_i32 {s(po)}, {s(po)}, 9")
        A(f"s_add_u32 {s(po)}, {s(po)}, 4")
        A(f"s_mul_i32 {s(st)}, {s(self.S_HP)}, {256 * 1152}")
        A(f"s_lshl_b32 {s(st + 1)}, {s(po)}, 6")
        A(f"s_add_u32 {s(st + 1)}, {s(st + 1)}, {s(st)}")
        A(f"v_lshrrev_b32 v21, 2, {L}")
        A(f"v_mul_u32_u24 v21, 1152, v21")
        A(f"v_and_b32 v22, 3, {L}")
        A(f"v_lshlrev_b32 v22, 4, v22")
        A(f"v_add3_u32 v21, v21, v22, {s(st + 1)}")
        A(f"s_lshl_b32 {s(st + 1)}, {s(pb)}, 6")
        A(f"s_add_u32 {s(st + 1)}, {s(st + 1)}, {s(st)}")
        A(f"v_lshrrev_b32 v20, 4, {L}")
        A(f"v_mul_u32_u24 v20, 1152, v20")
        A(f"v_and_b32 v22, 15, {L}")
        A(f"v_lshlrev_b32 v22, 4, v22")
        A(f"v_add3_u32 v20, v20, v22, {s(st + 1)}")
        A(f"s_mul_i32 {s(sb)}, {s(S_W)}, 40960")
        tr_addr(A, 22, 24, 25, 4, 1, 256, 16, sb)
        tr_addr(A, 23, 24, 25, 4, 1, 64, 16, sb)
        A(f"s_and_b32 {s(st)}, {s(S_W)}, 1")
        A(f"s_lshl_b32 {s(st)}, {s(st)}, 3")
        A(f"v_add_u32 v23, {s(st)}, v23")
        A(f"s_lshl_b32 {s(pb)}, {s(pb)}, 10")
        A(f"v_add_u32 {v(self.V_OUT)}, {s(pb)}, {v(V_L16)}")
        A(f"s_lshl_b32 {s(po)}, {s(po)}, 10")
        A(f"s_lshl_b32 {s(st)}, {s(st)}, 6")
        A(f"s_add_u32 {s(po)}, {s(po)}, {s(st)}")
        A(f"v_lshrrev_b32 {v(self.V_OUT2)}, 1, {v(V_L16)}")
        A(f"v_add_u32 {v(self.V_OUT2)}, {s(po)}, {v(self.V_OUT2)}")
        dmas = lambda c: [(SA, 20, (32 * c + 4 * i) * 1152, 1024 * i) for i in range(8)] + \
                         [(SA, 21, (32 * c + 16 * i) * 1152, 8192 + 1024 * i) for i in range(2)]

        def reads(c):
            o = []
            for t in range(9):
                for rd in range(2):
                    if t < 8:
                        o.append((WREG + (c * 9 + t) * 4 + 2 * rd, 22, 4096 * rd + 64 * (t // 2) + 8 * (t % 2)))
                    else:
                        o.append((WREG + (c * 9 + t) * 4 + 2 * rd, 23, 8192 + 1024 * rd))
            return o
        load_weights(A, 8, dmas, reads, 10240, 4, sb, st)
        A("s_barrier")
        A(f"s_lshr_b32 {s(st)}, {s(S_W)}, 1")
        A(f"s_and_b32 {s(st + 1)}, {s(S_W)}, 1")
        A(f"s_lshl_b32 {s(self.S_HB)}, {s(self.S_HP)}, 1")
        A(f"s_add_u32 {s(self.S_HB)}, {s(self.S_HB)}, {s(st)}")
        A(f"s_lshl_b32 {s(self.S_HB + 1)}, {s(st + 1)}, 12")
        A(f"s_add_u32 {s(self.S_HB + 1)}, {s(self.S_HB + 1)}, {QB:#x}")
        A(f"s_lshl_b32 {s(pb)}, {s(st + 1)}, 1")
        A(f"s_add_u32 {s(pb)}, {s(pb)}, {s(st)}")
        A(f"s_lshl_b32 {s(pb)}, {s(pb)}, 12")
        A(f"v_mov_b32 {v(self.V_RD)}, {v(V_L16)}")
        A(f"v_add_u32 {v(self.V_WR)}, {s(pb)}, {v(V_L16)}")
        A(f"v_and_b32 {v(self.V_KM)}, 0x3df, {v(V_L16)}")
        A(f"v_lshrrev_b32 {v(self.V_L8)}, 1, {v(V_L16)}")
        A(f"v_min_u32 {v(self.V_POLLOFF)}, {13 * 16}, {v(V_L16)}")
        import math
        cs = 128 ** -0.5 * math.log2(math.e)
        A(f"s_mov_b32 {s(self.S_CS)}, {f32(cs):#x}")
        A(f"s_mov_b32 {s(self.S_CS + 1)}, {f32(cs):#x}")
        A(f"v_and_b32 v20, 15, {L}")
        A(f"s_lshl_b32 {s(st + 1)}, {s(st + 1)}, 4")
        A(f"v_add_u32 v20, {s(st + 1)}, v20")
        A(f"v_lshrrev_b32 v21, 4, {L}")
        A(f"v_lshlrev_b32 v21, 2, v21")
        A(f"v_sub_u32 v20, v20, v21")
        A(f"v_mov_b32 v21, 0xf149f2ca")
        for k in range(8):
            A(f"v_cmp_gt_i32 vcc, {16 * (k // 4) + k % 4}, v20")
            A(f"v_cndmask_b32 {v(self.BIAS + k)}, 0, v21, vcc")
        self.emit(flag_at=4, write_at=0)


def role_bc(A, sync):
    A(f"s_and_b32 {s(Gemm.S_IT)}, {s(S_IDX)}, {BC_REP - 1}")
    A(f"s_lshr_b32 {s(BC.S_HP)}, {s(S_IDX)}, {BC_REP.bit_length() - 1}")
    srd(A, S_A, KA_WO, SZ_W)
    A("s_waitcnt lgkmcnt(0)")
    BC(A, sync).body()


NWG_R1 = 18
NWG_R2 = 18


def reducer(A, sync, first):
    n = "r1" if first else "r2"
    NP = 16 if first else 6
    S_U, S_P, S_X, S_PL, S_SP, S_O, S_SPL = 36, 37, 38, 39, 40, 41, 42
    VL8 = 30
    SEL, ONE, ACC, VX, VPO, VPL, VST, VF0, T, IN = 4, 10, 16, 2, 3, 14, 15, 24, 26, 40
    L = v(V_LANE)
    if first:
        srd(A, S_B, KA_X, SZ_X)
    else:
        srd(A, S_B, KA_OUT, SZ_X)
    A(f"v_and_b32 v20, 15, {L}")
    A(f"v_mul_u32_u24 {v(VX)}, 1152, v20")
    A(f"v_and_b32 v21, 48, {L}")
    A(f"s_lshl_b32 {s(S_T)}, {s(S_IDX)}, 6")
    A(f"v_add3_u32 {v(VX)}, {v(VX)}, v21, {s(S_T)}")
    A(f"v_lshrrev_b32 v21, 4, {L}")
    A(f"v_lshrrev_b32 v22, 2, v20")
    A(f"v_and_b32 v23, 3, {L}")
    A(f"v_cmp_eq_u32 vcc, v21, v22")
    A(f"v_cndmask_b32 v23, 7, v23, vcc")
    for k in (0, 1, 4, 5):
        A(f"v_mov_b32 {v(SEL + k)}, 0")
    for k in range(2):
        A(f"v_mov_b32 v22, 0x3f80")
        A(f"v_cmp_eq_u32 vcc, {2 * k}, v23")
        A(f"v_cndmask_b32 {v(SEL + 2 + k)}, 0, v22, vcc")
        A(f"v_mov_b32 v22, 0x3f800000")
        A(f"v_cmp_eq_u32 vcc, {2 * k + 1}, v23")
        A(f"v_cndmask_b32 {v(SEL + 2 + k)}, {v(SEL + 2 + k)}, v22, vcc")
    if first:
        for k in range(4):
            A(f"v_mov_b32 {v(ONE + k)}, 0x3f803f80")
        A(f"v_lshlrev_b32 v20, 3, v20")
        A(f"v_mov_b32 {v(VST)}, {OOR:#x}")
        A(f"v_cmp_eq_u32 vcc, 0, v21")
        A(f"v_cndmask_b32 {v(VST)}, {v(VST)}, v20, vcc")
        A(f"v_lshlrev_b32 {v(VPO)}, 2, {L}")
        lane0_off(A, VF0, "0")
        A(f"v_mov_b32 {v(VF0 + 1)}, 1")
    else:
        A(f"s_mul_i32 {s(S_T)}, {s(S_IDX)}, 43")
        A(f"s_lshr_b32 {s(S_T)}, {s(S_T)}, 8")
        A(f"s_lshl_b32 {s(S_T)}, {s(S_T)}, 7")
        A(f"v_min_u32 {v(VPO)}, 23, {L}")
        A(f"v_lshlrev_b32 {v(VPO)}, 2, {v(VPO)}")
        A(f"v_add_u32 {v(VPO)}, {s(S_T)}, {v(VPO)}")
    A(f"s_mov_b32 {s(S_U)}, {s(S_W)}")
    A(f"s_mov_b32 {s(S_SPL)}, {sum(1 << c for c in ((4, 13) if first else (1, 4, 7, 10, 13, 16))):#x}")
    A(f"v_lshrrev_b32 {v(VL8)}, 1, {v(V_L16)}")
    A("s_waitcnt lgkmcnt(0)")
    end = 2 * TAIL if sync else 128

    def bases():
        A(f"s_mul_i32 {s(S_X)}, {s(S_U)}, 18432")
        A(f"s_lshl_b32 {s(S_T)}, {s(S_IDX)}, 10")
        A(f"s_add_u32 {s(S_O)}, {s(S_X)}, {s(S_T)}")
        A(f"s_mul_i32 {s(S_P)}, {s(S_X)}, {NP}")
        A(f"s_add_u32 {s(S_P)}, {s(S_P)}, {s(S_T)}")
        A(f"s_add_u32 {s(S_P)}, {s(S_P)}, {P1 if first else P2:#x}")
        A(f"s_add_u32 {s(S_O)}, {s(S_O)}, {HH:#x}")

    def stat_base():
        A(f"s_lshl_b32 {s(S_T)}, {s(S_U)}, 5")
        A(f"s_add_u32 {s(S_T)}, {s(S_T)}, {s(S_IDX)}")
        A(f"s_lshl_b32 {s(S_T + 1)}, {s(S_T)}, 7")
        A(f"s_add_u32 {s(S_T + 1)}, {s(S_T + 1)}, {ST:#x}")
    if first and end < 128:
        for k in range(4):
            A(f"v_mov_b32 {v(IN + k)}, -1")
        A(f"s_add_u32 {s(S_U)}, {s(S_U)}, {end}")
        A.label("L_r1_arm")
        bases()
        stat_base()
        A(f"buffer_store_dwordx4 {v(IN, 4)}, {v(V_L16)}, {WS}, {s(S_O)} offen sc1")
        A(f"buffer_store_dwordx2 {v(IN, 2)}, {v(VST)}, {WS}, {s(S_T + 1)} offen sc1")
        A(f"s_add_u32 {s(S_U)}, {s(S_U)}, 4")
        A(f"s_cmp_lt_u32 {s(S_U)}, 128")
        A("s_cbranch_scc1 L_r1_arm")
        A(f"s_mov_b32 {s(S_U)}, {s(S_W)}")

    def body(n, tail):
        A.label(f"L_{n}_top")
        bases()
        if first:
            A(f"buffer_load_dwordx4 {v(IN, 4)}, {v(VX)}, {SB}, {s(S_X)} offen")
        if sync and not tail:
            if first:
                A(f"s_lshr_b32 {s(S_PL)}, {s(S_U)}, 1")
                A(f"s_lshl_b32 {s(S_PL)}, {s(S_PL)}, 8")
                A(f"s_add_u32 {s(S_PL)}, {s(S_PL)}, {F_BC:#x}")
            else:
                A(f"s_lshl_b32 {s(S_PL)}, {s(S_U)}, 9")
                A(f"s_add_u32 {s(S_PL)}, {s(S_PL)}, {F_E:#x}")
            poll_block(A, VPL, VPO, s(S_PL), True, S_SP)

        def fetch(split):
            o = [] if first else [f"buffer_load_dwordx4 {v(IN, 4)}, {v(V_L16)}, {WS}, {s(S_O)} offen sc1"]
            o += [f"s_mov_b32 {s(S_PL)}, {s(S_P)}"]
            for p in range(NP):
                if split:
                    o += [f"buffer_load_dwordx2 {v(IN + 4 + 4 * p + 2 * k, 2)}, {v(VL8)}, {WS}, {s(S_PL)} offen offset:{512 * k} sc1" for k in range(2)]
                else:
                    o += [f"buffer_load_dwordx4 {v(IN + 4 + 4 * p, 4)}, {v(V_L16)}, {WS}, {s(S_PL)} offen sc1"]
                if p + 1 < NP:
                    o += [f"s_add_u32 {s(S_PL)}, {s(S_PL)}, 18432"]
            if tail:
                tstamp(A, 6, VPL, when=(S_U, 124))
                spin_loads(A, o, VPL, S_SP, probe=f"x, {v(V_L16)}, {WS}, {s(S_P)} offen sc1" if n[:2] in PRB else None)
                tstamp(A, 7, VPL, when=(S_U, 124))

            else:
                for x in o:
                    A(x)
        A(f"s_bitcmp1_b32 {s(S_SPL)}, {s(S_IDX)}")
        A(f"s_cbranch_scc1 L_{n}_split")
        fetch(False)
        A.label(f"L_{n}_sum")
        for p in range(NP + 1):
            A(f"{MF} {v(ACC, 4)}, {v(SEL + 2, 4)}, {v(IN + 4 * p, 4)}, {v(ACC, 4) if p else 0}")
            A(f"{MF} {v(ACC + 4, 4)}, {v(SEL, 4)}, {v(IN + 4 * p, 4)}, {v(ACC + 4, 4) if p else 0}")
        for k in range(4):
            A(cvt2(IN + k, ACC + 2 * k))
        if not first:
            A(f"buffer_store_dwordx4 {v(IN, 4)}, {v(VX)}, {SB}, {s(S_X)} offen{os.environ.get('OSC', '')}")
        else:
            A(unmark(IN))
            A(f"buffer_store_dwordx4 {v(IN, 4)}, {v(V_L16)}, {WS}, {s(S_O)} offen sc1")
            A(f"{MF} {v(T, 4)}, {v(ONE, 4)}, {v(IN, 4)}, 0")
            for k in range(4):
                A(f"v_lshlrev_b32 {v(ACC + 2 * k)}, 16, {v(IN + k)}")
                A(f"v_and_b32 {v(ACC + 2 * k + 1)}, 0xffff0000, {v(IN + k)}")
            stat_base()
            A(f"v_mul_f32 {v(T + 2)}, {f32(-1.0 / 32):#x}, {v(T)}")
            for k in range(0, 8, 2):
                A(f"v_pk_add_f32 {v(ACC + k, 2)}, {v(ACC + k, 2)}, {v(T + 2, 2)} op_sel_hi:[1,0]")
            A(f"v_pk_mul_f32 {v(ACC, 2)}, {v(ACC, 2)}, {v(ACC, 2)}")
            for k in range(2, 8, 2):
                A(f"v_pk_fma_f32 {v(ACC, 2)}, {v(ACC + k, 2)}, {v(ACC + k, 2)}, {v(ACC, 2)}")
            A(f"v_add_f32 {v(T + 1)}, {v(ACC)}, {v(ACC + 1)}")
            A(unmark(T))
            xg_reduce(A, "v_add_f32", T + 1, T + 2)
            A(f"buffer_store_dwordx2 {v(T, 2)}, {v(VST)}, {WS}, {s(S_T + 1)} offen sc1")
            if sync and not tail:
                A(f"s_lshl_b32 {s(S_T)}, {s(S_T)}, 2")
                A(f"s_add_u32 {s(S_T)}, {s(S_T)}, {F_R1:#x}")
                A("s_waitcnt vmcnt(0)")
                A(f"buffer_store_dword {v(VF0 + 1)}, {v(VF0)}, {WS}, {s(S_T)} offen sc1")
        A(f"s_add_u32 {s(S_U)}, {s(S_U)}, 4")
        A(f"s_cmp_lt_u32 {s(S_U)}, {128 if tail else end}")
        A(f"s_cbranch_scc1 L_{n}_top")
        A(f"s_branch L_{n}_done")
        A.label(f"L_{n}_split")
        fetch(True)
        A(f"s_branch L_{n}_sum")
        A.label(f"L_{n}_done")
    body(n, False)
    if end < 128:
        body(n + "t", True)


def role_r1(A, sync):
    reducer(A, sync, True)


def role_r2(A, sync):
    reducer(A, sync, False)


NWG_DD = 72


class DD(Gemm):
    ACC, BF, STG, CS, SN, SC_, T, V_ST, V_ST4, V_VAL = 12, 28, 44, 64, 80, 90, 100, 9, 10, 11
    S_SL, S_ST = 50, 51

    def __init__(self, A, sync):
        super().__init__(A, "dd", sync, 2, 128, 5, self.STG, 2 * TAIL)

    def set_load_base(self, s_it):
        A = self.A
        A(f"s_mul_i32 {s(self.S_LD)}, {s(s_it)}, 18432")
        A(f"s_add_u32 {s(self.S_LD)}, {s(self.S_LD)}, {HH:#x}")
        A(f"s_lshl_b32 {s(self.S_ST)}, {s(s_it)}, 12")
        A(f"s_add_u32 {s(self.S_ST)}, {s(self.S_ST)}, {ST:#x}")

    def extra_loads(self):
        return [f"buffer_load_dwordx2 {v(self.SN + 2 * i, 2)}, {v(self.V_ST if i < 4 else self.V_ST4)}, {WS}, "
                f"{s(self.S_ST)} offen offset:{512 * i} sc1" for i in range(5)]

    def post_loads(self):
        return [f"v_mov_b64 {v(self.SC_ + 2 * i, 2)}, {v(self.SN + 2 * i, 2)}" for i in range(5)]

    def set_poll_base(self, s_it):
        self.A(f"s_lshl_b32 {s(self.S_POLL)}, {s(s_it)}, 7")
        self.A(f"s_add_u32 {s(self.S_POLL)}, {s(self.S_POLL)}, {F_R1:#x}")

    def set_out_base(self):
        A = self.A
        A(f"s_mul_i32 {s(self.S_OUT)}, {s(self.S_IT)}, 144")
        A(f"s_add_u32 {s(self.S_OUT)}, {s(self.S_OUT)}, {s(self.S_SL)}")
        A(f"s_lshl_b32 {s(self.S_OUT)}, {s(self.S_OUT)}, 10")
        A(f"s_add_u32 {s(self.S_OUT)}, {s(self.S_OUT)}, {ACT:#x}")
        A(f"s_lshl_b32 {s(self.S_FLG)}, {s(self.S_IT)}, 8")
        A(f"s_add_u32 {s(self.S_FLG)}, {s(self.S_FLG)}, {s(self.S_SL)}")
        A(f"s_lshl_b32 {s(self.S_FLG)}, {s(self.S_FLG)}, 2")
        A(f"s_add_u32 {s(self.S_FLG)}, {s(self.S_FLG)}, {F_D:#x}")

    def stats(self):
        S, T = self.SC_, self.T
        o = []
        xg = lambda op, x, t: [f"v_mov_b32 {v(t)}, {v(x)}", f"v_permlane32_swap_b32 {v(x)}, {v(t)}",
                               f"{op} {v(x)}, {v(x)}, {v(t)}", f"v_mov_b32 {v(t)}, {v(x)}",
                               f"v_permlane16_swap_b32 {v(x)}, {v(t)}", f"{op} {v(x)}, {v(x)}, {v(t)}"]
        rnd = lambda x: [f"v_cvt_pk_bf16_f32 {v(x)}, {v(x)}, {v(x)}", f"v_and_b32 {v(x)}, 0xffff0000, {v(x)}"]
        o += [f"v_add_f32 {v(T)}, {v(S)}, {v(S + 2)}", f"v_add_f32 {v(T + 1)}, {v(S + 4)}, {v(S + 6)}",
              f"v_add_f32 {v(T + 2)}, {v(S + 1)}, {v(S + 3)}", f"v_add_f32 {v(T + 3)}, {v(S + 5)}, {v(S + 7)}",
              f"v_add_f32 {v(T)}, {v(T)}, {v(S + 8)}", f"v_add_f32 {v(T + 2)}, {v(T + 2)}, {v(S + 9)}",
              f"v_add_f32 {v(T)}, {v(T)}, {v(T + 1)}", f"v_add_f32 {v(T + 2)}, {v(T + 2)}, {v(T + 3)}"]
        o += xg("v_add_f32", T, T + 1)
        o += [f"v_mul_f32 {v(T + 1)}, {f32(-1.0 / 18):#x}, {v(T)}"]
        o += [f"v_add_f32 {v(S + 2 * i)}, {v(S + 2 * i)}, {v(T + 1)}" for i in range(5)]
        o += [f"v_mul_f32 {v(S + 8)}, {v(S + 8)}, {v(self.V_VAL)}", f"v_mul_f32 {v(T + 3)}, {v(S)}, {v(S)}"]
        o += [f"v_fmac_f32 {v(T + 3)}, {v(S + 2 * i)}, {v(S + 2 * i)}" for i in range(1, 5)]
        o += [f"v_fmac_f32 {v(T + 2)}, {f32(1.0 / 32):#x}, {v(T + 3)}"]
        o += xg("v_add_f32", T + 2, T + 1)
        o += [f"v_mul_f32 {v(T)}, {f32(-1.0 / 576):#x}, {v(T)}"] + rnd(T)
        o += [f"v_mul_f32 {v(T + 2)}, {f32(1.0 / 576):#x}, {v(T + 2)}"] + rnd(T + 2)
        o += [f"v_add_f32 {v(T + 2)}, {f32(1e-5):#x}, {v(T + 2)}"] + rnd(T + 2)
        o += [f"v_sqrt_f32 {v(T + 2)}, {v(T + 2)}"] + rnd(T + 2)
        o += [f"v_rcp_f32 {v(T + 2)}, {v(T + 2)}", f"v_mul_f32 {v(T + 2)}, {v(T + 2)}, {v(T + 2)}"]
        return o

    def compute(self):
        main, fill = [], {}
        bf = lambda c: self.BF + (c % 4) * 4
        rd = lambda c: f"ds_read_b128 {v(bf(c), 4)}, {v(self.V_RD)} offset:{c * 1024}"
        for c in range(3):
            self.A(rd(c))
        for c in range(18):
            for t in range(4):
                acc = v(self.ACC + 4 * t, 4)
                main.append(f"{MF} {acc}, {r(WREG + (c * 4 + t) * 4, 4)}, {v(bf(c), 4)}, {acc if c else 0}")
            if c + 3 < 18:
                fill.setdefault(4 * c, []).append(rd(c + 3))
        spread(fill, self.stats(), 2, 1)
        return main, fill

    def epilogue(self):
        a, T = self.ACC, self.T
        o = [f"v_pk_fma_f32 {v(a + k, 2)}, {v(self.CS + k, 2)}, {v(T, 2)}, {v(a + k, 2)} op_sel_hi:[1,0,1]" for k in range(0, 16, 2)]
        o += [f"v_max_f32 {v(a + k)}, 0, {v(a + k)}" for k in range(8)]
        o += [f"v_pk_mul_f32 {v(a + 8 + k, 2)}, {v(a + 8 + k, 2)}, {v(T + 2, 2)} op_sel_hi:[1,0]" for k in range(0, 8, 2)]
        o += [f"v_pk_mul_f32 {v(a + k, 2)}, {v(a + k, 2)}, {v(a + 8 + k, 2)}" for k in range(0, 8, 2)]
        o += [cvt2(T + 4 + k, a + 2 * k) for k in range(4)] + [unmark(T + 4)]
        o += [f"buffer_store_dwordx4 {v(T + 4, 4)}, {v(V_L16)}, {WS}, {s(self.S_OUT)} offen sc1"]
        return o

    def body(self):
        A = self.A
        sb, st = S_T, S_T + 1
        L = v(V_LANE)
        A(f"s_lshl_b32 {s(self.S_SL)}, {s(self.S_SL)}, 2")
        A(f"s_add_u32 {s(self.S_SL)}, {s(self.S_SL)}, {s(S_W)}")
        A(f"s_lshl_b32 {s(st)}, {s(self.S_SL)}, 6")
        A(f"v_lshrrev_b32 v20, 2, {L}")
        A(f"v_mul_u32_u24 v20, 9216, v20")
        A(f"v_and_b32 v21, 3, {L}")
        A(f"v_lshlrev_b32 v21, 4, v21")
        A(f"v_add3_u32 v20, v20, v21, {s(st)}")
        A(f"s_mul_i32 {s(sb)}, {s(S_W)}, 36864")
        tr_addr(A, 21, 22, 23, 8, 1, 64, 16, sb)
        dmas = lambda c: [((SA, SB)[i // 2], 20, (32 * c + 16 * (i % 2)) * 9216, 1024 * i) for i in range(4)]
        reads = lambda c: [(WREG + (c * 4 + t) * 4 + 2 * rd, 21, 2048 * (t // 2) + 8 * (t % 2) + 256 * rd)
                           for t in range(4) for rd in range(2)]
        load_weights(A, 18, dmas, reads, 4096, 9, sb, st)
        A("s_barrier")
        for k in range(4):
            A(f"v_mov_b32 {v(self.BF + k)}, 0x3f803f80")
        for c in range(18):
            for t in range(4):
                cs = v(self.CS + 4 * t, 4)
                A(f"{MF} {cs}, {r(WREG + (c * 4 + t) * 4, 4)}, {v(self.BF, 4)}, {cs if c else 0}")
        gemm_addr(A, self, 4)
        A(f"s_min_u32 {s(st)}, {s(S_W)}, 1")
        A(f"s_lshl_b32 {s(st)}, {s(st)}, 10")
        A(f"v_add_u32 {v(self.V_WR)}, {s(st)}, {v(self.V_WR)}")
        A(f"v_mov_b32 {v(self.V_LDOFF)}, {v(self.V_WR)}")
        A(f"v_min_u32 {v(self.V_POLLOFF)}, 17, {L}")
        A(f"v_lshlrev_b32 {v(self.V_POLLOFF)}, 2, {v(self.V_POLLOFF)}")
        A(f"v_lshlrev_b32 {v(self.V_ST)}, 3, {L}")
        A(f"v_mov_b32 {v(self.V_ST4)}, {OOR:#x}")
        A(f"v_cmp_gt_u32 vcc, 32, {L}")
        A(f"v_cndmask_b32 {v(self.V_ST4)}, {v(self.V_ST4)}, {v(self.V_ST)}, vcc")
        A(f"v_cndmask_b32 {v(self.V_VAL)}, 0, 1.0, vcc")
        self.emit(flag_at=16, write_at=60)


def role_dd(A, sync):
    A(f"s_and_b32 {s(Gemm.S_IT)}, {s(S_IDX)}, 1")
    A(f"s_lshr_b32 {s(DD.S_SL)}, {s(S_IDX)}, 1")
    srd(A, S_A, KA_WG, SZ_WF)
    srd(A, S_B, KA_WU, SZ_WF)
    A("s_waitcnt lgkmcnt(0)")
    DD(A, sync).body()


NWG_EE = 36


class EE(Gemm):
    ACC, BF, STG, V_OUT, V_OUT2 = 12, 28, 44, 9, 10
    S_KS, S_NS = 50, 51

    def __init__(self, A, sync):
        super().__init__(A, "ee", sync, 2, 128, 6, self.STG, 2 * TAIL)

    def set_load_base(self, s_it):
        A = self.A
        A(f"s_mul_i32 {s(self.S_LD)}, {s(s_it)}, 6")
        A(f"s_add_u32 {s(self.S_LD)}, {s(self.S_LD)}, {s(self.S_KS)}")
        A(f"s_mul_i32 {s(self.S_LD)}, {s(self.S_LD)}, 24576")
        A(f"s_add_u32 {s(self.S_LD)}, {s(self.S_LD)}, {ACT:#x}")

    def set_poll_base(self, s_it):
        self.A(f"s_lshl_b32 {s(self.S_POLL)}, {s(s_it)}, 10")
        self.A(f"s_add_u32 {s(self.S_POLL)}, {s(self.S_POLL)}, {F_D:#x}")

    def set_out_base(self):
        A = self.A
        A(f"s_mul_i32 {s(self.S_OUT)}, {s(self.S_IT)}, 6")
        A(f"s_add_u32 {s(self.S_OUT)}, {s(self.S_OUT)}, {s(self.S_KS)}")
        A(f"s_mul_i32 {s(self.S_OUT)}, {s(self.S_OUT)}, 18432")
        A(f"s_add_u32 {s(self.S_OUT)}, {s(self.S_OUT)}, {P2:#x}")
        A(f"s_lshl_b32 {s(self.S_FLG)}, {s(self.S_IT)}, 9")
        A(f"s_add_u32 {s(self.S_FLG)}, {s(self.S_FLG)}, {s(self.S_NS)}")

    def compute(self):
        main, fill = [], {}
        bf = lambda c: self.BF + (c % 4) * 4
        rd = lambda c: f"ds_read_b128 {v(bf(c), 4)}, {v(self.V_RD)} offset:{c * 1024}"
        for c in range(3):
            self.A(rd(c))
        for c in range(24):
            for t in range(3):
                acc = v(self.ACC + 4 * t, 4)
                main.append(f"{MF} {acc}, {r(WREG + (c * 3 + t) * 4, 4)}, {v(bf(c), 4)}, {acc if c else 0}")
            if c + 3 < 24:
                fill.setdefault(3 * c, []).append(rd(c + 3))
        return main, fill

    def epilogue(self):
        a = self.ACC
        return [cvt2(a + k, a + 2 * k) for k in range(4)] + \
            [unmark(a), f"buffer_store_dwordx4 {v(a, 4)}, {v(self.V_OUT)}, {WS}, {s(self.S_OUT)} offen sc1",
             cvt2(a + 8, a + 8), cvt2(a + 9, a + 10), unmark(a + 8),
             f"buffer_store_dwordx2 {v(a + 8, 2)}, {v(self.V_OUT2)}, {WS}, {s(self.S_OUT)} offen sc1"]

    def body(self):
        A = self.A
        sb, st = S_T, S_T + 1
        pb, po = S_T + 3, S_T + 4
        L = v(V_LANE)
        A(f"s_mul_i32 {s(st)}, {s(self.S_NS)}, 6")
        A(f"s_mul_i32 {s(pb)}, {s(S_W)}, 3")
        A(f"s_add_u32 {s(pb)}, {s(pb)}, 1")
        A(f"s_lshr_b32 {s(pb)}, {s(pb)}, 1")
        A(f"s_add_u32 {s(pb)}, {s(pb)}, {s(st)}")
        A(f"s_lshr_b32 {s(po)}, {s(S_W)}, 1")
        A(f"s_mul_i32 {s(po)}, {s(po)}, 3")
        A(f"s_add_u32 {s(po)}, {s(po)}, 1")
        A(f"s_add_u32 {s(po)}, {s(po)}, {s(st)}")
        A(f"s_mul_i32 {s(st)}, {s(self.S_KS)}, {768 * 1152}")
        A(f"v_lshrrev_b32 v20, 2, {L}")
        A(f"v_mul_u32_u24 v20, 1152, v20")
        A(f"v_and_b32 v21, 3, {L}")
        A(f"v_lshlrev_b32 v21, 4, v21")
        A(f"v_add3_u32 v20, v20, v21, {s(st)}")
        A(f"s_lshl_b32 {s(st)}, {s(po)}, 6")
        A(f"v_add_u32 v21, {s(st)}, v20")
        A(f"s_lshl_b32 {s(st)}, {s(pb)}, 6")
        A(f"v_add_u32 v20, {s(st)}, v20")
        A(f"s_mul_i32 {s(sb)}, {s(S_W)}, 36864")
        tr_addr(A, 22, 24, 25, 8, 1, 64, 16, sb)
        A(f"s_and_b32 {s(st)}, {s(S_W)}, 1")
        A(f"s_lshl_b32 {s(st)}, {s(st)}, 3")
        A(f"v_add_u32 v23, {s(st)}, v22")
        A(f"s_lshl_b32 {s(pb)}, {s(pb)}, 10")
        A(f"v_add_u32 {v(self.V_OUT)}, {s(pb)}, {v(V_L16)}")
        A(f"s_lshl_b32 {s(po)}, {s(po)}, 10")
        A(f"s_lshl_b32 {s(st)}, {s(st)}, 6")
        A(f"s_add_u32 {s(po)}, {s(po)}, {s(st)}")
        A(f"v_lshrrev_b32 {v(self.V_OUT2)}, 1, {v(V_L16)}")
        A(f"v_add_u32 {v(self.V_OUT2)}, {s(po)}, {v(self.V_OUT2)}")
        dmas = lambda c: [(SA, 20 + i // 2, (32 * c + 16 * (i % 2)) * 1152, 1024 * i) for i in range(4)]
        reads = lambda c: [(WREG + (c * 3 + t) * 4 + 2 * rd, 22 + t // 2, 2048 * (t // 2) + 8 * (t % 2) + 256 * rd)
                           for t in range(3) for rd in range(2)]
        load_weights(A, 24, dmas, reads, 4096, 9, sb, st)
        A("s_barrier")
        gemm_addr(A, self, 6)
        A(f"s_mul_i32 {s(st)}, {s(self.S_KS)}, 96")
        A(f"v_min_u32 {v(self.V_POLLOFF)}, 23, {L}")
        A(f"v_lshlrev_b32 {v(self.V_POLLOFF)}, 2, {v(self.V_POLLOFF)}")
        A(f"v_add_u32 {v(self.V_POLLOFF)}, {s(st)}, {v(self.V_POLLOFF)}")
        A(f"s_lshl_b32 {s(self.S_NS)}, {s(self.S_NS)}, 5")
        A(f"s_lshl_b32 {s(st)}, {s(self.S_KS)}, 2")
        A(f"s_add_u32 {s(self.S_NS)}, {s(self.S_NS)}, {s(st)}")
        A(f"s_add_u32 {s(self.S_NS)}, {s(self.S_NS)}, {s(S_W)}")
        A(f"s_lshl_b32 {s(self.S_NS)}, {s(self.S_NS)}, 2")
        A(f"s_add_u32 {s(self.S_NS)}, {s(self.S_NS)}, {F_E:#x}")
        self.emit(flag_at=16, write_at=58)


def role_ee(A, sync):
    A(f"s_and_b32 {s(Gemm.S_IT)}, {s(S_IDX)}, 1")
    A(f"s_lshr_b32 {s(EE.S_KS)}, {s(S_IDX)}, 1")
    A(f"s_mul_i32 {s(EE.S_NS)}, {s(EE.S_KS)}, 43")
    A(f"s_lshr_b32 {s(EE.S_NS)}, {s(EE.S_NS)}, 8")
    A(f"s_mul_i32 {s(S_T)}, {s(EE.S_NS)}, 6")
    A(f"s_sub_u32 {s(EE.S_KS)}, {s(EE.S_KS)}, {s(S_T)}")
    srd(A, S_A, KA_WD, SZ_WF)
    A("s_waitcnt lgkmcnt(0)")
    EE(A, sync).body()
```
